```python
import torch

def _softmax(x, axis=-1):
    return torch.softmax(x, dim=axis)
def _gelu(x):
    return torch.nn.functional.gelu(x, approximate="tanh")
def _silu(x):
    return torch.nn.functional.silu(x)
def _sigmoid(x):
    return torch.sigmoid(x)
def _layernorm(x, axis=-1, eps=1e-5):
    m = x.mean(dim=axis, keepdim=True)
    v = x.var(dim=axis, keepdim=True, unbiased=False)
    return (x - m) / torch.sqrt(v + eps)
def _scatter_add(tgt, idx, src, axis=0):
    return tgt.clone().index_add_(axis, idx, src)
def _segment_sum(src, seg, n):
    out = torch.zeros((n,) + src.shape[1:], dtype=src.dtype)
    return out.index_add_(0, seg, src)
def _pad(x, pw):
    flat = tuple(v for pair in reversed(pw) for v in pair)
    return torch.nn.functional.pad(x, flat)

kernel_name = 'gated_mix__ssm_conv_s5__linear_kernel_hedgehog__prompt'

def setup_inputs():

    _w = (lambda a: (lambda t: t.to(torch.bfloat16) if t.is_floating_point() else t)(torch.as_tensor(a)))
    def _A_setup():
        B, S, D = 1, 2048, 512
        P = D
        Lambda_re = -0.5 * (lambda _x: torch.exp(torch.as_tensor(_x)))((lambda *s: torch.randn(*s, dtype=torch.bfloat16) * 0.8)(P))
        Lambda_im = (lambda *s: torch.randn(*s, dtype=torch.bfloat16) * 0.8)(P) * 1.0
        B_re = (lambda *s: torch.randn(*s, dtype=torch.bfloat16) * 0.8)(P, D) * (D ** -0.5)
        B_im = (lambda *s: torch.randn(*s, dtype=torch.bfloat16) * 0.8)(P, D) * (D ** -0.5)
        C_re = (lambda *s: torch.randn(*s, dtype=torch.bfloat16) * 0.8)(D, P) * (P ** -0.5)
        C_im = (lambda *s: torch.randn(*s, dtype=torch.bfloat16) * 0.8)(D, P) * (P ** -0.5)
        log_dt = (lambda *s: torch.randn(*s, dtype=torch.bfloat16) * 0.8)(P) * 0.3 - 2.0
        Dskip = (lambda *s: torch.randn(*s, dtype=torch.bfloat16) * 0.8)(D)
        return {
            "x": _w((lambda *s: torch.randn(*s, dtype=torch.bfloat16) * 0.05)(B, S, D)),
            "Lambda_re": _w(Lambda_re),
            "Lambda_im": _w(Lambda_im),
            "B_re": _w(B_re),
            "B_im": _w(B_im),
            "C_re": _w(C_re),
            "C_im": _w(C_im),
            "log_dt": _w(log_dt),
            "Dskip": _w(Dskip),
        }
    _A_in = _A_setup()

    def _B_setup():
        B, S, D, H = 1, 2048, 512, 32
        Dh = D // H
        return {
            "x": _w((lambda *s: torch.randn(*s, dtype=torch.bfloat16) * 0.05)(B, S, D)),
            "wqkv": _w((lambda *s: torch.randn(*s, dtype=torch.bfloat16) * 1.6)(D, 3 * D)),
            "w_phi": _w((lambda *s: torch.randn(*s, dtype=torch.bfloat16) * 1.6)(H, Dh, Dh) * (Dh ** -0.5)),
            "wo": _w((lambda *s: torch.randn(*s, dtype=torch.bfloat16) * 0.05)(D, D)),
        }
    _B_in = _B_setup()

    return {
        "A_x": _A_in["x"],
        "A_Lambda_re": _A_in["Lambda_re"],
        "A_Lambda_im": _A_in["Lambda_im"],
        "A_B_re": _A_in["B_re"],
        "A_B_im": _A_in["B_im"],
        "A_C_re": _A_in["C_re"],
        "A_C_im": _A_in["C_im"],
        "A_log_dt": _A_in["log_dt"],
        "A_Dskip": _A_in["Dskip"],
        "B_x": _B_in["x"],
        "B_wqkv": _B_in["wqkv"],
        "B_w_phi": _B_in["w_phi"],
        "B_wo": _B_in["wo"],
        "gate_w": _w((lambda *s: torch.randn(*s, dtype=torch.bfloat16) * 0.05)(512) * 16.0),
    }

def reference(A_x, A_Lambda_re, A_Lambda_im, A_B_re, A_B_im, A_C_re, A_C_im, A_log_dt, A_Dskip, B_x, B_wqkv, B_w_phi, B_wo, gate_w):
    def _A_ref(x, Lambda_re, Lambda_im, B_re, B_im, C_re, C_im, log_dt, Dskip):
        Bsz, L, H = x.shape
        Lam = Lambda_re + 1j * Lambda_im
        Bmat = B_re + 1j * B_im
        Cmat = C_re + 1j * C_im
        dt = torch.exp(log_dt)
        Lam_bar = torch.exp(dt * Lam)
        B_bar = ((Lam_bar - 1.0) / Lam)[:, None] * Bmat
        Bu = torch.einsum("bld,pd->blp", x + 0j, B_bar)
        h = torch.zeros_like(Bu[:, 0, :])
        hs = []
        for t in range(L):
            h = Lam_bar[None, :] * h + Bu[:, t, :]
            hs.append(h)
        hseq = torch.stack(hs, 1)
        y = 2.0 * torch.einsum("blp,dp->bld", hseq, Cmat).real + x * Dskip[None, None, :]
        return y

    def _B_ref(x, wqkv, w_phi, wo):
        B, S, D = x.shape
        H = 32; Dh = D // H
        qkv = (lambda x, *d: x.permute(*d))((x @ wqkv).reshape(B, S, 3, H, Dh), 2, 0, 3, 1, 4)
        q, k, v = qkv[0], qkv[1], qkv[2]
        pq = torch.einsum("bhsd,hdf->bhsf", q, w_phi)
        pk = torch.einsum("bhsd,hdf->bhsf", k, w_phi)
        phi_q = torch.concatenate([_softmax(pq, axis=-1), _softmax(-pq, axis=-1)], axis=-1)
        phi_k = torch.concatenate([_softmax(pk, axis=-1), _softmax(-pk, axis=-1)], axis=-1)
        kv = torch.einsum("bhsf,bhsd->bhfd", phi_k, v)
        z  = torch.einsum("bhsf->bhf", phi_k)
        num = torch.einsum("bhqf,bhfd->bhqd", phi_q, kv)
        den = torch.einsum("bhqf,bhf->bhq", phi_q, z)[..., None] + 1e-6
        o = num / den
        return (lambda x, *d: x.permute(*d))(o, 0, 2, 1, 3).reshape(B, S, D) @ wo

    x = A_x
    g = _sigmoid((x * gate_w).sum(-1, keepdims=True))
    a = _A_ref(x, A_Lambda_re, A_Lambda_im, A_B_re, A_B_im, A_C_re, A_C_im, A_log_dt, A_Dskip)
    b = _B_ref(x, B_wqkv, B_w_phi, B_wo)
    return g * a + (1 - g) * b
```

```python
import re
TRANS = ('v_exp_f32','v_log_f32','v_rcp_f32','v_rsq_f32','v_sqrt_f32','v_sin_f32','v_cos_f32')
def regs(op):
    op = op.strip()
    op = re.sub(r'^-', '', op); op = re.sub(r'^abs\((.*)\)$', r'\1', op); op = op.strip('|')
    m = re.fullmatch(r'([vsa])\[(\d+):(\d+)\]', op)
    if m: return {f"{m.group(1)}{i}" for i in range(int(m.group(2)), int(m.group(3))+1)}
    if re.fullmatch(r'[vsa]\d+', op): return {op}
    if op in ('vcc','vcc_lo','vcc_hi'): return {'vcc'}
    if op in ('exec','exec_lo','exec_hi'): return {'exec'}
    if op == 'm0': return {'m0'}
    return set()
class I:
    def __init__(s, text):
        s.text = text
        t = text.split(';')[0].strip()
        s.label = t.endswith(':'); s.direct = t.startswith('.') and not s.label
        s.real = bool(t) and not s.label and not s.direct
        s.mn = ''; s.w=set(); s.r=set(); s.kind='none'; s.A=set(); s.B=set(); s.C=set(); s.data=set(); s.dpp=False; s.wide=False; s.lds=False
        if not s.real: return
        p = t.split(None,1); s.mn = p[0]; rest = p[1] if len(p)>1 else ''
        ops=[]; cur=''; d=0
        for ch in rest:
            if ch in '[(': d+=1
            if ch in '])': d-=1
            if ch==',' and d==0: ops.append(cur.strip()); cur=''
            else: cur+=ch
        if cur.strip(): ops.append(cur.strip())
        mods=''
        if ops:
            q = ops[-1].split(None,1); ops[-1]=q[0]; mods = q[1] if len(q)>1 else ''
        s.ops=ops; s.mods=mods
        R=[regs(o) for o in ops]
        U=lambda l: set().union(*l) if l else set()
        mn=s.mn
        if mn.startswith('v_mfma'):
            s.kind='mfma'; s.w=R[0]; s.A=R[1]; s.B=R[2]; s.C=R[3]; s.r=s.A|s.B|s.C
        elif mn.startswith('v_'):
            s.kind='trans' if mn.replace('_e32','').replace('_e64','') in TRANS else 'valu'
            s.dpp = 'row_' in mods or 'quad_perm' in mods or 'wave_' in mods
            if mn.startswith('v_permlane'): s.w=R[0]|R[1]; s.r=R[0]|R[1]
            elif mn.startswith(('v_fmac','v_writelane','v_dot2c')): s.w=R[0]; s.r=U(R)
            elif '_co_' in mn: s.w=R[0]|R[1]; s.r=U(R[2:])
            elif mn=='v_nop': pass
            else: s.w=R[0]; s.r=U(R[1:])
            if s.dpp: s.r |= R[0]
        elif mn.startswith('ds_'):
            s.kind='ds'
            if mn.startswith(('ds_read','ds_bpermute','ds_permute','ds_swizzle')) or '_rtn' in mn: s.w=R[0]; s.r=U(R[1:])
            else: s.r=U(R)
        elif mn.startswith(('buffer_','global_')):
            s.kind='vmem'; s.lds = bool(re.search(r'\blds\b', mods)) or '_lds_' in mn
            if s.lds: s.r=U(R)|{'m0'}
            elif 'load' in mn: s.w=R[0]; s.r=U(R[1:])
            elif 'atomic' in mn and 'sc0' in mods: s.w=R[0]; s.r=U(R)
            elif mn.startswith('buffer_'): s.r=U(R); s.data=R[0]
            else: s.r=U(R); s.data=R[1]
            s.wide = ('store' in mn) and mn.endswith(('x3','x4'))
        elif mn.startswith(('s_load','s_buffer_load','s_memtime','s_memrealtime')):
            s.kind='smem'; s.w=R[0]; s.r=U(R[1:])
        elif mn.startswith('s_'):
            s.kind='salu'
            if mn.startswith(('s_cmp','s_bitcmp','s_cbranch','s_branch','s_waitcnt','s_nop','s_barrier','s_sleep','s_setprio','s_endpgm')): s.r=U(R)
            else: s.w=R[0] if R else set(); s.r=U(R[1:])
            if 'saveexec' in mn: s.w |= {'exec'}
    def states(s):
        if not s.real: return 0
        if s.mn=='s_nop': return int(s.ops[0],0)+1
        return 1
isv=lambda S:{x for x in S if x[0] in 'va' and x!='vcc'}
iss=lambda S:{x for x in S if (x[0]=='s') or x=='vcc'}
def need(p, c):
    n=0
    pv = p.kind in ('valu','trans'); cv = c.kind in ('valu','trans')
    if pv:
        if c.kind=='mfma' and isv(p.w)&c.r: n=max(n,2)
        if p.kind=='trans' and c.kind in('valu','mfma') and isv(p.w)&c.r: n=max(n,1)
        if p.kind=='trans' and c.kind in('ds','vmem') and isv(p.w)&c.r: n=max(n,1)
        if cv and c.mn.startswith(('v_readlane','v_readfirstlane')) and isv(p.w)&c.r: n=max(n,1)
        if cv and c.dpp and isv(p.w)&c.r: n=max(n,2)
        if cv and c.mn.startswith('v_permlane') and isv(p.w)&c.r: n=max(n,2)
        if iss(p.w):
            if cv and iss(p.w)&c.r:
                n=max(n,4 if c.mn.startswith(('v_readlane','v_writelane')) else 2)
            if c.kind=='vmem' and iss(p.w)&c.r: n=max(n,5)
            if c.kind in ('salu','smem') and iss(p.w)&c.r: n=max(n,1)
        if p.mn.startswith('v_dot2') and isv(p.w)&(c.r|c.w):
            same = c.mn==p.mn and not (isv(p.w) & set().union(*[regs(x) for x in c.ops[1:3]]))
            if not same: n=max(n,3)
        if ('op_sel' in p.mods or 'sdwa' in p.mn or 'dst_sel' in p.mods) and not p.mn.startswith('v_pk_') and cv and isv(p.w)&(c.r|c.w): n=max(n,1)
    if p.kind=='mfma':
        ps = 8 if '32x32x16' in p.mn else 4
        big = {8:12,4:8}[ps]
        if c.kind=='mfma':
            if p.w&(c.A|c.B): n=max(n,big)
            if p.w&c.C and p.w!=c.C: n=max(n,big-2)
            if p.w&c.w and p.w!=c.C: n=max(n,big)
        elif cv:
            if p.w&(c.r|c.w): n=max(n,big)
            if p.C&c.w: n=max(n,ps-1)
        elif c.kind in('ds','vmem'):
            if p.w&(c.r|c.w): n=max(n,big)
    if p.kind=='salu' and 'm0' in p.w and c.kind=='vmem' and c.lds: n=max(n,1)
    if p.kind=='vmem' and p.wide and p.data&c.w: n=max(n,2)
    return n
def fix(lines):
    out=[]; added=0
    for t in lines:
        c=I(t)
        if c.real:
            d=0; req=0
            for p in reversed(out):
                if d>=20: break
                if p.real:
                    req=max(req, need(p,c)-d)
                    d+=p.states()
            while req>0:
                k=min(req,16); out.append(I(f"s_nop {k-1}")); req-=k; added+=1
        out.append(c)
    return out, added
def check_waits(ins):
    vm=[]; lg=[]; errs=[]
    for n,c in enumerate(ins):
        if c.label and c.text.strip().startswith('L_role'): vm=[]; lg=[]
        if not c.real: continue
        if c.mn=='s_waitcnt':
            t=c.text
            m=re.search(r'vmcnt\((\d+)\)',t)
            if m:
                k=int(m.group(1)); vm=vm[len(vm)-k:] if k<len(vm) and k>0 else ([] if k==0 else vm)
            m=re.search(r'lgkmcnt\((\d+)\)',t)
            if m:
                k=int(m.group(1))
                if k>0 and any(x[0]=='smem' for x in lg): errs.append((n,c.text,'counted lgkmcnt with SMEM outstanding'))
                lg=lg[len(lg)-k:] if k<len(lg) and k>0 else ([] if k==0 else lg)
            continue
        use=c.r|c.w
        for q,nm in ((vm,'vm'),(lg,'lgkm')):
            for k,w,txt in q:
                if w&use and not (c.kind==k and (k!='smem' or 'touch' in txt) and not (w&c.r)): errs.append((n,c.text,f'touches pending {nm} load: {txt}'))
        if c.kind=='vmem':
            vm.append(('vmem',c.w,c.text))
            if len(vm)>63: vm=vm[-63:]
        if c.kind in('ds','smem'):
            lg.append((c.kind,c.w,c.text))
    return errs
```

```python
import sys
from asmfix import fix, check_waits
KNAME = 'gated_mix__ssm_conv_s5__linear_kernel_hedgehog__prompt'

WS_EPOCH = 0
WS_FLAGS = 0x1000
WS_E     = 0x10000
WS_Z     = 0x40000
WS_KV    = 0x80000
WS_A2H   = 0x200000
WS_A2O   = 0x600000
WS_STAMP = 0x900000
WS_SIZE  = 0x1000000
TREG = 0x0
SREG = 0x10000
SCR  = 0x20000
L_TFL  = SCR + 0x0
L_SFL  = SCR + 0x10
L_G    = SCR + 0x200
L_GATE = SCR + 0x400
L_WPHI = SCR + 0x800
L_SEGZ = SCR + 0xC00
L_SEG  = SCR + 0x1400
L_ZD   = SCR + 0x1C00
L_BSL  = SCR + 0x2000
L_KVR  = SCR + 0x2000
L_ZR   = SCR + 0x6000
L_KVD  = SCR + 0x6400
L_HP   = SCR + 0x6C00
LDS_BYTES = 0x28000
LOG2E = 0x3fb8aa3b

def vr(a, n=1): return f"v{a}" if n == 1 else f"v[{a}:{a+n-1}]"
def sr(a, n=1): return f"s{a}" if n == 1 else f"s[{a}:{a+n-1}]"

class G:
    def __init__(self, opt):
        self.o = opt; self.L = []; self.vm = []; self.nlab = 0
    def e(self, *xs):
        for x in xs: self.L.append(x)
    def lab(self, p):
        self.nlab += 1; return f"L_{p}{self.nlab}"
    def vmem(self, text, tag=None):
        self.e(text); self.vm.append(tag)
    def waitvm(self, *tags):
        last = max((i for i, t in enumerate(self.vm) if t in tags), default=-1)
        if last < 0: return
        n = len(self.vm) - 1 - last
        assert n <= 63
        self.e(f"s_waitcnt vmcnt({n})")
        self.vm = self.vm[last+1:]
    def waitvm0(self):
        self.e("s_waitcnt vmcnt(0)"); self.vm = []
    def srd(self, d, base, off=None, size=0):
        if off is None:
            self.e(f"s_mov_b32 s{d}, s{base}", f"s_mov_b32 s{d+1}, s{base+1}", f"s_mov_b32 s{d+2}, {size}")
        else:
            self.e(f"s_add_u32 s{d}, s{base}, s{off}", f"s_addc_u32 s{d+1}, s{base+1}, 0", f"s_sub_u32 s{d+2}, {size}, s{off}")
        self.e(f"s_mov_b32 s{d+3}, 0x20000")
    def stamp(self, i):
        if not self.o.get('stamps'): return
        self.e("s_waitcnt lgkmcnt(0)", "s_memrealtime s[100:101]", "s_waitcnt lgkmcnt(0)", f"v_writelane_b32 v{V_STAMP}, s100, {i}")
    def mfma(self, d, a, b, c=None):
        cc = "0" if c is None else vr(c, 16)
        self.e(f"v_mfma_f32_32x32x16_bf16 {vr(d,16)}, {vr(a,4)}, {vr(b,4)}, {cc}")
    def cvt16(self, dst, src, n=16):
        for q in range(n//2): self.e(f"v_cvt_pk_bf16_f32 v{dst+q}, v{src+2*q}, v{src+2*q+1}")
    def arrive(self, stage, tmp):
        self.e(f"v_mov_b32 v{tmp}, {stage}", "s_mov_b64 exec, 1", f"ds_write_b32 v{V_MYFL}, v{tmp}", "s_mov_b64 exec, -1")
    def rwait(self, stage, tmp):
        l = self.lab('rs')
        self.e(l+":", f"ds_read_b128 {vr(tmp,4)}, v{V_FLB}", "s_waitcnt lgkmcnt(0)",
               f"v_min3_u32 v{tmp}, v{tmp}, v{tmp+1}, v{tmp+2}", f"v_min_u32 v{tmp}, v{tmp}, v{tmp+3}",
               f"v_cmp_gt_u32 vcc, {stage}, v{tmp}", f"s_cbranch_vccnz {l}")
    def setflag(self, slot, tmp):
        self.e(f"v_mov_b32 v{tmp}, s{S_NON}", f"v_mov_b32 v{tmp+1}, s{S_NON+1}", "s_mov_b64 exec, 1")
        self.vmem(f"buffer_store_dwordx2 {vr(tmp,2)}, off, {sr(S_WS,4)}, s{S_FLOFF} offset:{slot*8} sc1", 'flag')
        self.e("s_mov_b64 exec, -1")
    def poll(self, vaddr, n, tmp):
        l = self.lab('pl'); d = self.lab('pd')
        self.e(f"s_mov_b64 exec, {(1<<n)-1}", f"s_mov_b32 s{S_T0}, {self.o.get('timeout', 200000)}")
        self.e(l+":", f"buffer_load_dwordx2 {vr(tmp,2)}, v{vaddr}, {sr(S_WS,4)}, 0 offen sc1",
               f"s_sub_u32 s{S_T0}, s{S_T0}, 1", f"s_cbranch_scc1 {d}", "s_waitcnt vmcnt(0)",
               f"v_cmp_ne_u64 vcc, {sr(S_NON,2)}, {vr(tmp,2)}", f"s_cbranch_vccnz {l}", d+":", "s_waitcnt vmcnt(0)", "s_mov_b64 exec, -1")
        self.vm = []

S_WV = 3
S_X, S_A, S_B, S_WK, S_WVv, S_WQ, S_WS, S_OUT = 4, 8, 12, 16, 20, 24, 28, 32
P_X, P_LRE, P_LIM, P_BRE, P_BIM, P_CRE, P_CIM, P_LDT = 36, 38, 40, 42, 44, 46, 48, 50
P_DSK, P_BX, P_WQKV, P_WPHI, P_WO, P_GATE, P_OUT, P_DBG, P_WS = 52, 54, 56, 58, 60, 62, 64, 66, 68
S_KX = 70
S_KW = 78
S_NON = 86
S_C, S_J, S_W, S_R0 = 88, 89, 90, 91
S_FLOFF = 92
S_M0B = 93
S_T0, S_T1, S_T2, S_T3 = 94, 95, 96, 97
S_M = 98
S_EP = 54
V_LANE = 0
V_MYFL, V_FLB, V_L16, V_STAMP = 1, 2, 3, 4
V_FX = 10

def prologue(g):
    e = g.e; o = g.o
    e("s_cmp_ge_u32 s2, 256", "s_cbranch_scc1 L_end")
    e(f"s_load_dwordx16 s[36:51], s[0:1], 0", f"s_load_dwordx16 s[52:67], s[0:1], 64", f"s_load_dwordx2 s[68:69], s[0:1], 128")
    e("v_lshrrev_b32 v1, 6, v0", "v_and_b32 v0, 63, v0", f"v_readfirstlane_b32 s{S_WV}, v1")
    e(f"s_and_b32 s{S_T0}, s2, 3", f"s_lshl_b32 s{S_T0}, s{S_T0}, 2", f"s_bfe_u32 s{S_C}, s2, 0x20003", f"s_add_u32 s{S_C}, s{S_C}, s{S_T0}")
    e(f"s_and_b32 s{S_T0}, s2, 4", f"s_lshl_b32 s{S_T0}, s{S_T0}, 1", f"s_lshr_b32 s{S_J}, s2, 5", f"s_add_u32 s{S_J}, s{S_J}, s{S_T0}")
    e(f"s_and_b32 s{S_W}, s{S_WV}, 3")
    ra, rb_, rmask = o.get('rot', (2, 1, 7))
    e(f"s_mul_i32 s{S_R0}, s{S_C}, {ra}", f"s_mul_i32 s{S_T0}, s{S_J}, {rb_}", f"s_add_u32 s{S_R0}, s{S_R0}, s{S_T0}")
    if o.get('rotx'):
        e(f"s_lshr_b32 s{S_T0}, s{S_C}, 2", f"s_mul_i32 s{S_T0}, s{S_T0}, {o['rotx']}", f"s_add_u32 s{S_R0}, s{S_R0}, s{S_T0}")
    e(f"s_and_b32 s{S_R0}, s{S_R0}, {rmask}")
    e(f"s_lshl_b32 s{S_T0}, s{S_C}, 4", f"s_add_u32 s{S_T0}, s{S_T0}, s{S_J}", f"s_lshl_b32 s{S_T0}, s{S_T0}, 7",
      f"s_lshl_b32 s{S_T1}, s{S_W}, 3", f"s_add_u32 s{S_T0}, s{S_T0}, s{S_T1}", f"s_add_u32 s{S_FLOFF}, s{S_T0}, {WS_FLAGS}")
    e(f"v_lshlrev_b32 v{V_L16}, 4, v0")
    if o.get('stamps'): e(f"v_mov_b32 v{V_STAMP}, 0")
    e(f"s_lshl_b32 s{S_T0}, s{S_WV}, 2", f"s_add_u32 s{S_T0}, s{S_T0}, {L_TFL}", f"v_mov_b32 v{V_MYFL}, s{S_T0}",
      f"s_and_b32 s{S_T0}, s{S_T0}, 0xfffffff0", f"v_mov_b32 v{V_FLB}, s{S_T0}")
    e(f"s_cmp_ge_u32 s{S_WV}, 4", "s_cbranch_scc1 L_roleS")

def nonce(g):
    g.e(f"s_mul_i32 s{S_NON}, s{S_EP}, 1664525", f"s_add_u32 s{S_NON}, s{S_NON}, 1013904223",
        f"s_mul_i32 s{S_NON+1}, s{S_EP}, 22695477", f"s_add_u32 s{S_NON+1}, s{S_NON+1}, 0x9e3779b9")

def frag_addr(g, dst, tmp, base_s=None, base_c=0):
    e = g.e
    e(f"v_and_b32 v{tmp}, 31, v0", f"v_lshlrev_b32 v{dst}, 7, v{tmp}", f"v_bfe_u32 v{tmp}, v0, 1, 3", f"v_lshrrev_b32 v{tmp+1}, 5, v0",
      f"v_xor_b32 v{tmp}, v{tmp}, v{tmp+1}", f"v_lshl_add_u32 v{dst}, v{tmp}, 4, v{dst}")
    if base_s is not None: e(f"v_add_u32 v{dst}, s{base_s}, v{dst}")
    if base_c: e(f"v_add_u32 v{dst}, {base_c}, v{dst}")
    for k in range(1, 4): e(f"v_xor_b32 v{dst+k}, {32*k}, v{dst}")

def make_sel(g, dst, tmp):
    e = g.e
    e(f"v_bfe_u32 v{tmp}, v0, 3, 2", f"v_and_b32 v{tmp+1}, 3, v0", f"v_lshl_add_u32 v{tmp}, v{tmp}, 2, v{tmp+1}",
      f"v_bfe_u32 v{tmp+1}, v0, 2, 1", f"v_lshrrev_b32 v{tmp+2}, 5, v0", f"v_xor_b32 v{tmp+1}, v{tmp+1}, v{tmp+2}",
      f"v_lshl_add_u32 v{tmp}, v{tmp+1}, 4, v{tmp}",
      f"v_and_b32 v{tmp+1}, 1, v0", f"v_lshlrev_b32 v{tmp+1}, 4, v{tmp+1}", f"v_mov_b32 v{tmp+2}, 0x3f80",
      f"v_lshlrev_b32 v{tmp+1}, v{tmp+1}, v{tmp+2}", f"v_lshrrev_b32 v{tmp}, 1, v{tmp}")
    for q in range(8):
        e(f"v_cmp_eq_u32 vcc, {q}, v{tmp}", f"v_cndmask_b32 v{dst+q}, 0, v{tmp+1}, vcc")

def final_preload(g, tmp):
    e = g.e
    e(f"s_lshl_b32 s{S_T0}, s{S_C}, 7", f"s_and_b32 s{S_T1}, s{S_J}, 1", f"s_lshl_b32 s{S_T1}, s{S_T1}, 6", f"s_add_u32 s{S_T0}, s{S_T0}, s{S_T1}",
      f"s_lshr_b32 s{S_T1}, s{S_WV}, 2", f"s_lshl_b32 s{S_T1}, s{S_T1}, 5", f"s_add_u32 s{S_T0}, s{S_T0}, s{S_T1}",
      f"s_lshl_b32 s{S_T1}, s{S_W}, 2", f"s_add_u32 s{S_T0}, s{S_T0}, s{S_T1}", f"s_lshl_b32 s{S_T0}, s{S_T0}, 10",
      f"s_lshr_b32 s{S_T1}, s{S_J}, 1", f"s_lshl_b32 s{S_T1}, s{S_T1}, 7")
    e(f"v_and_b32 v{tmp}, 15, v0", f"v_lshlrev_b32 v{tmp}, 3, v{tmp}", f"v_add_u32 v{tmp}, s{S_T1}, v{tmp}",
      f"v_lshrrev_b32 v5, 4, v0", f"v_lshl_add_u32 v5, v5, 10, v{tmp}", f"v_add_u32 v5, s{S_T0}, v5", f"v_add_u32 v{tmp+1}, 0x4000, v5")
    g.vmem(f"global_load_dwordx2 {vr(V_FX,2)}, v5, {sr(P_X,2)}", 'fin')
    g.vmem(f"global_load_dwordx2 {vr(V_FX+2,2)}, v{tmp+1}, {sr(P_X,2)}", 'fin')
    g.vmem(f"global_load_dwordx2 {vr(V_FX+4,2)}, v{tmp}, {sr(P_DSK,2)}", 'fin')

def part_addr(g, dst, tmp, base_s):
    e = g.e
    e(f"v_and_b32 v{tmp}, 31, v0", f"v_lshlrev_b32 v{dst}, 8, v{tmp}", f"v_and_b32 v{tmp}, 7, v0", f"v_lshrrev_b32 v{tmp+1}, 5, v0",
      f"v_xor_b32 v{tmp}, v{tmp}, v{tmp+1}", f"v_lshl_add_u32 v{dst}, v{tmp}, 4, v{dst}", f"v_add_u32 v{dst}, s{base_s}, v{dst}")
    for k in range(1, 4): e(f"v_xor_b32 v{dst+k}, {32*k}, v{dst}")

def softmax(g, p, out, tmp):
    e = g.e
    e(f"v_max3_f32 v{tmp}, v{p}, v{p+1}, v{p+2}")
    for i in range(3, 15, 2): e(f"v_max3_f32 v{tmp}, v{tmp}, v{p+i}, v{p+i+1}")
    e(f"v_max_f32 v{tmp}, v{tmp}, v{p+15}", f"v_mul_f32 v{tmp}, s{S_T3}, v{tmp}")
    for i in range(0, 16, 2):
        e(f"v_pk_fma_f32 {vr(p+i,2)}, {vr(p+i,2)}, {sr(S_T2,2)}, {vr(tmp,2)} op_sel_hi:[1,0,0]")
    for i in range(16): e(f"v_exp_f32 v{p+i}, v{p+i}")
    e(f"v_pk_add_f32 {vr(tmp,2)}, {vr(p,2)}, {vr(p+2,2)}", f"v_pk_add_f32 {vr(tmp+2,2)}, {vr(p+4,2)}, {vr(p+6,2)}")
    e(f"v_pk_add_f32 {vr(tmp,2)}, {vr(tmp,2)}, {vr(p+8,2)}", f"v_pk_add_f32 {vr(tmp+2,2)}, {vr(tmp+2,2)}, {vr(p+10,2)}")
    e(f"v_pk_add_f32 {vr(tmp,2)}, {vr(tmp,2)}, {vr(p+12,2)}", f"v_pk_add_f32 {vr(tmp+2,2)}, {vr(tmp+2,2)}, {vr(p+14,2)}")
    e(f"v_pk_add_f32 {vr(tmp,2)}, {vr(tmp,2)}, {vr(tmp+2,2)}", f"v_add_f32 v{tmp}, v{tmp}, v{tmp+1}", f"v_rcp_f32 v{tmp}, v{tmp}")
    for i in range(0, 16, 2):
        e(f"v_pk_mul_f32 {vr(p+i,2)}, {vr(p+i,2)}, {vr(tmp,2)} op_sel_hi:[1,0]")
    g.cvt16(out, p)

def sum16(g, p, tmp):
    e = g.e
    e(f"v_pk_add_f32 {vr(tmp,2)}, {vr(p,2)}, {vr(p+2,2)}", f"v_pk_add_f32 {vr(tmp+2,2)}, {vr(p+4,2)}, {vr(p+6,2)}")
    e(f"v_pk_add_f32 {vr(tmp,2)}, {vr(tmp,2)}, {vr(p+8,2)}", f"v_pk_add_f32 {vr(tmp+2,2)}, {vr(tmp+2,2)}, {vr(p+10,2)}")
    e(f"v_pk_add_f32 {vr(tmp,2)}, {vr(tmp,2)}, {vr(p+12,2)}", f"v_pk_add_f32 {vr(tmp+2,2)}, {vr(tmp+2,2)}, {vr(p+14,2)}")
    e(f"v_pk_add_f32 {vr(tmp,2)}, {vr(tmp,2)}, {vr(tmp+2,2)}", f"v_add_f32 v{tmp}, v{tmp}, v{tmp+1}")

def roleT(g):
    e = g.e; o = g.o
    X = 128
    VXO = 6
    VBO = 5
    VWO = 10
    VXA = 12
    VTR = 11
    WPA, WPB, SEL = 16, 20, 24
    ACC, RING, KP, DA, DB, PA, PB = 32, 48, 72, 80, 96, 112, 120
    e("L_roleT:")
    for s in range(8):
        e(f"s_add_u32 s{S_T0}, s{S_R0}, {s}", f"s_and_b32 s{S_T0}, s{S_T0}, 7", f"s_lshl_b32 s{S_KX+s}, s{S_T0}, 7", f"s_mul_i32 s{S_KW+s}, s{S_T0}, {64*3072}")
    e("v_lshrrev_b32 v32, 5, v0", "v_bfe_u32 v33, v0, 3, 2", "v_and_b32 v34, 7, v0", "v_lshrrev_b32 v35, 4, v0", "v_xor_b32 v34, v34, v35", "v_lshlrev_b32 v34, 4, v34")
    e("v_lshl_add_u32 v36, v32, 4, v33", f"v_lshl_add_u32 v{VXO}, v36, 10, v34")
    e(f"v_xor_b32 v{VXO+1}, 64, v{VXO}", f"v_add_u32 v{VXO+2}, {2*3072}, v{VXO}", f"v_add_u32 v{VXO+3}, {3*3072}, v{VXO+1}", f"v_add_u32 v{VXO+1}, 3072, v{VXO+1}")
    e("v_lshl_add_u32 v36, v32, 3, v33", f"v_lshl_add_u32 v{VBO}, v36, 10, v34")
    e(f"s_and_b32 s{S_T0}, s{S_W}, 1", f"s_lshl_b32 s{S_T1}, s{S_T0}, 6", f"v_xor_b32 v{VBO}, s{S_T1}, v{VBO}",
      f"s_lshl_b32 s{S_T0}, s{S_T0}, 12", f"s_lshr_b32 s{S_T1}, s{S_W}, 1", f"s_lshl_b32 s{S_T1}, s{S_T1}, 14", f"s_add_u32 s{S_T0}, s{S_T0}, s{S_T1}",
      f"s_lshl_b32 s{S_T1}, s{S_J}, 15", f"s_add_u32 s{S_T2}, s{S_T0}, s{S_T1}")
    e(f"s_lshl_b32 s{S_T0}, s{S_C}, 17", f"s_lshl_b32 s{S_T1}, s{S_W}, 15", f"s_add_u32 s{S_T3}, s{S_T0}, s{S_T1}")
    e(f"s_lshl_b32 s{S_M0B}, s{S_W}, 10", f"s_lshl_b32 s{S_M}, s{S_W}, 12")
    e("s_waitcnt lgkmcnt(0)")
    g.srd(S_X, P_X, S_T3, 2097152); g.srd(S_A, P_BRE, S_T2, 524288); g.srd(S_B, P_BIM, S_T2, 524288)
    def dma_x(s):
        e(f"s_add_u32 m0, s{S_M}, {s*16384}")
        for gg in range(4):
            g.vmem(f"buffer_load_dwordx4 v{VXO+gg}, {sr(S_X,4)}, s{S_KX+s} offen offset:{1024*gg} lds", f'x{s}')
    def dma_b(s):
        for part in range(2):
            e(f"s_add_u32 m0, s{S_M0B}, {L_BSL + (s%3)*8192 + part*4096}")
            g.vmem(f"buffer_load_dwordx4 v{VBO}, {sr(S_A if part==0 else S_B,4)}, s{S_KX+s} offen lds", f'b{s}')
    def dma_w(srd, slot, s, tag):
        e(f"s_add_u32 m0, s{S_M0B}, {TREG + slot*32768 + s*4096}")
        g.vmem(f"buffer_load_dwordx4 v{VWO}, {sr(srd,4)}, s{S_KW+s} offen lds", tag)
    dma_x(0); dma_b(0)
    e(f"s_load_dword s{S_EP}, {sr(P_WS,2)}, {WS_EPOCH}")
    dma_x(1); dma_b(1); dma_x(2)
    e(f"s_mul_i32 s{S_T0}, s{S_W}, {16*3072}", f"s_lshl_b32 s{S_T1}, s{S_J}, 6", f"s_add_u32 s{S_T0}, s{S_T0}, s{S_T1}")
    g.srd(S_WQ, P_WQKV, S_T0, 1572864); e(f"s_add_u32 s{S_T0}, s{S_T0}, 1024")
    g.srd(S_WK, P_WQKV, S_T0, 1572864); e(f"s_add_u32 s{S_T0}, s{S_T0}, 1024")
    g.srd(S_WVv, P_WQKV, S_T0, 1572864)
    g.srd(S_WS, P_WS, None, WS_SIZE)
    e(f"v_lshrrev_b32 v32, 2, v0", f"v_mul_u32_u24 v32, 3072, v32", f"v_and_b32 v33, 3, v0", f"v_lshl_add_u32 v{VWO}, v33, 4, v32")
    frag_addr(g, VXA, 32, base_s=S_M)
    e("v_lshrrev_b32 v32, 5, v0", "v_bfe_u32 v33, v0, 2, 2", "v_lshl_add_u32 v32, v32, 3, v33", "v_bfe_u32 v34, v0, 4, 1",
      f"v_lshlrev_b32 v{VTR}, 6, v32", f"v_lshl_add_u32 v{VTR}, v34, 5, v{VTR}", "v_and_b32 v35, 1, v0", f"v_lshl_add_u32 v{VTR}, v35, 4, v{VTR}",
      "v_bfe_u32 v35, v0, 1, 1", f"v_lshl_add_u32 v{VTR}, v35, 3, v{VTR}")
    e("v_lshlrev_b32 v112, 5, v32", "v_lshl_add_u32 v112, v34, 4, v112", "v_lshl_add_u32 v112, v35, 3, v112", f"v_add_u32 v112, {L_WPHI}, v112")
    e("v_lshrrev_b32 v113, 5, v0", "v_lshlrev_b32 v113, 4, v113", f"v_add_u32 v113, {L_GATE}, v113")
    make_sel(g, SEL, 32)
    e("s_waitcnt lgkmcnt(0)")
    nonce(g)
    g.arrive(0, 32)
    g.stamp(0)
    GB = 48
    tail = [(S_WK, 0, s, 'wk') for s in range(8)] + [(S_WVv, 1, s, 'wv') for s in range(8)]
    for s in range(8):
        g.waitvm(f'x{s}', f'b{s}')
        e("s_waitcnt lgkmcnt(0)", "s_barrier")
        if s == 0: g.stamp(1)
        if s == 4:
            for k in range(4): e(f"v_add_u32 v{VXA+k}, 0x10000, v{VXA+k}")
        for k in range(4):
            e(f"ds_read_b128 {vr(X+16*s+4*k,4)}, v{VXA+k} offset:{(s&3)*16384}")
            e(f"ds_read_b128 {vr(GB+16*(s&1)+4*k,4)}, v113 offset:{s*128+k*32}")
        if s == 0:
            for hd, dst in ((0, WPA), (1, WPB)):
                for i in range(2): e(f"ds_read_b64_tr_b16 {vr(dst+2*i,2)}, v112 offset:{hd*512+i*128}")
        if s > 0:
            for k in range(4): g.mfma(ACC, GB+16*((s-1)&1)+4*k, X+16*(s-1)+4*k, None if (s == 1 and k == 0) else ACC)
        if s+2 < 8: dma_b(s+2)
        if s+3 < 8: dma_x(s+3)
        nt = {5: 2, 6: 3, 7: 3}.get(s, 0)
        for _ in range(nt): dma_w(*tail.pop(0))
    e("s_waitcnt lgkmcnt(0)", "s_barrier")
    g.stamp(2)
    for k in range(4): g.mfma(ACC, GB+16+4*k, X+16*7+4*k, ACC)
    for _ in range(4): dma_w(*tail.pop(0))
    e("v_bfe_u32 v112, v0, 2, 1", "v_mul_u32_u24 v112, 0x8000, v112", "v_lshl_or_b32 v112, v112, 16, v112")
    for q in range(8): e(f"v_xor_b32 v{WPA+q}, v{WPA+q}, v112")
    e(f"s_mov_b32 s{S_T2}, {LOG2E}", f"s_mov_b32 s{S_T3}, {LOG2E | 0x80000000}")
    e("v_and_b32 v113, 31, v0", "v_lshlrev_b32 v113, 2, v113", f"s_lshl_b32 s{S_T0}, s{S_W}, 7", f"s_add_u32 s{S_T0}, s{S_T0}, {L_G}", f"v_add_u32 v113, s{S_T0}, v113")
    e(f"v_mul_f32 v114, s{S_T3}, v{ACC}", "v_exp_f32 v114, v114", "v_add_f32 v114, 1.0, v114", "v_rcp_f32 v114, v114", "ds_write_b32 v113, v114")
    def wgemm(slot, transposed, mid=None):
        D = 6
        def rd(ks):
            for i in range(2): e(f"ds_read_b64_tr_b16 {vr(RING+4*(ks%D)+2*i,2)}, v{VTR} offset:{TREG+slot*32768+ks*1024+i*256}")
        for ks in range(D-1): rd(ks)
        for ks in range(32):
            if ks+D-1 < 32: rd(ks+D-1)
            e(f"s_waitcnt lgkmcnt({2*min(D-1, 31-ks)})")
            w = RING+4*(ks%D); x = X+4*ks
            if transposed: g.mfma(ACC, w, x, None if ks == 0 else ACC)
            else: g.mfma(ACC, x, w, None if ks == 0 else ACC)
            if mid and ks in mid: mid[ks]()
    def phi(outA, outB):
        g.cvt16(KP, ACC)
        g.mfma(DA, WPA, KP); g.mfma(DB, WPB, KP+4)
        softmax(g, DA, outA, RING); softmax(g, DB, outB, RING)
    g.waitvm('wk'); g.arrive(1, 116)
    while tail: dma_w(*tail.pop(0))
    g.rwait(1, 116)
    g.stamp(3)
    wgemm(0, True)
    g.arrive(2, 116)
    g.stamp(4)
    g.cvt16(KP, ACC)
    g.mfma(DA, WPA, KP); g.mfma(DB, WPB, KP+4)
    g.rwait(2, 116)
    for s in range(8): dma_w(S_WQ, 0, s, 'wq')
    softmax(g, DA, PA, RING); softmax(g, DB, PB, RING)
    g.mfma(DA, PA, SEL); g.mfma(DB, PB, SEL); g.mfma(DA, PA+4, SEL+4, DA); g.mfma(DB, PB+4, SEL+4, DB)
    g.waitvm('wv'); g.arrive(3, RING)
    sum16(g, DA, RING); sum16(g, DB, RING+4)
    g.cvt16(PA, DA); g.cvt16(PB, DB)
    e(f"v_permlane32_swap_b32 v{RING}, v{RING+4}", f"v_add_f32 v{RING}, v{RING}, v{RING+4}")
    e(f"s_lshl_b32 s{S_T0}, s{S_W}, 8", f"s_add_u32 s{S_T0}, s{S_T0}, {L_ZR}", f"v_lshl_add_u32 v{RING+1}, v0, 2, s{S_T0}", f"ds_write_b32 v{RING+1}, v{RING}")
    g.rwait(3, RING)
    g.stamp(5)
    wgemm(1, False)
    g.cvt16(KP, ACC)
    g.mfma(DA, PA, KP); g.mfma(DB, PB, KP); g.mfma(DA, PA+4, KP+4, DA); g.mfma(DB, PB+4, KP+4, DB)
    e(f"s_mov_b32 s{S_M}, 0xffff", f"s_mov_b32 s{S_M+1}, 0xffff")
    e(f"s_add_u32 s{S_T0}, s{S_M0B}, {L_KVR}", f"v_add_u32 v{RING}, s{S_T0}, v{V_L16}")
    e(f"s_lshl_b32 s{S_T0}, s{S_W}, 12", f"s_add_u32 s{S_T0}, s{S_T0}, {L_KVR}", f"v_add_u32 v{RING+1}, s{S_T0}, v{V_L16}")
    e(f"s_lshl_b32 s{S_T0}, s{S_W}, 6", f"s_add_u32 s{S_T0}, s{S_T0}, {L_ZR}", f"v_and_b32 v{RING+3}, 15, v0", f"v_lshlrev_b32 v{RING+3}, 2, v{RING+3}", f"v_add_u32 v{RING+2}, s{S_T0}, v{RING+3}")
    S_KVG, S_ZG, S_KVP, S_ZP = S_KX, S_KX+1, S_KX+2, S_KX+3
    e(f"s_lshl_b32 s{S_T0}, s{S_J}, 2", f"s_add_u32 s{S_T0}, s{S_T0}, s{S_W}", f"s_lshl_b32 s{S_KVG}, s{S_T0}, 14", f"s_add_u32 s{S_KVG}, s{S_KVG}, {WS_KV}",
      f"s_lshl_b32 s{S_ZG}, s{S_T0}, 11", f"s_add_u32 s{S_ZG}, s{S_ZG}, {WS_Z}",
      f"s_lshl_b32 s{S_T0}, s{S_C}, 10", f"s_add_u32 s{S_KVP}, s{S_KVG}, s{S_T0}", f"s_lshl_b32 s{S_T0}, s{S_C}, 7", f"s_add_u32 s{S_ZP}, s{S_ZG}, s{S_T0}")
    for q in range(4):
        for i in range(4): e(f"v_cndmask_b32 v{DA+4*q+i}, v{DB+4*q+i}, v{DA+4*q+i}, {sr(S_M,2)}")
        e(f"ds_write_b128 v{RING}, {vr(DA+4*q,4)} offset:{q*4096}")
    g.waitvm('wq'); g.arrive(4, RING+4); g.rwait(4, RING+4)
    for q in range(4): e(f"ds_read_b128 {vr(DB+4*q,4)}, v{RING+1} offset:{q*1024}")
    for q in range(4): e(f"ds_read_b32 v{KP+q}, v{RING+2} offset:{q*256}")
    e("s_waitcnt lgkmcnt(4)")
    e(f"v_pk_add_f32 {vr(DB,2)}, {vr(DB,2)}, {vr(DB+4,2)}", f"v_pk_add_f32 {vr(DB+2,2)}, {vr(DB+2,2)}, {vr(DB+6,2)}",
      f"v_pk_add_f32 {vr(DB+8,2)}, {vr(DB+8,2)}, {vr(DB+12,2)}", f"v_pk_add_f32 {vr(DB+10,2)}, {vr(DB+10,2)}, {vr(DB+14,2)}",
      f"v_pk_add_f32 {vr(DB,2)}, {vr(DB,2)}, {vr(DB+8,2)}", f"v_pk_add_f32 {vr(DB+2,2)}, {vr(DB+2,2)}, {vr(DB+10,2)}")
    g.vmem(f"buffer_store_dwordx4 {vr(DB,4)}, v{V_L16}, {sr(S_WS,4)}, s{S_KVP} offen sc1", 'kvst')
    e("s_waitcnt lgkmcnt(0)", f"v_pk_add_f32 {vr(KP,2)}, {vr(KP,2)}, {vr(KP+2,2)}", f"v_add_f32 v{KP}, v{KP}, v{KP+1}", "s_mov_b64 exec, 0xffff")
    g.vmem(f"buffer_store_dword v{KP}, v{RING+3}, {sr(S_WS,4)}, s{S_ZP} offen sc1", 'kvst')
    e("s_mov_b64 exec, -1")
    g.stamp(6)
    def kvflag():
        g.waitvm('kvst'); g.setflag(1, 6)
    wgemm(0, True, mid={o.get('kvflag_ks', 24): kvflag})
    g.arrive(5, 6)
    g.stamp(7)
    g.cvt16(KP, ACC)
    g.mfma(DA, WPA, KP); g.mfma(DB, WPB, KP+4)
    e(f"s_lshl_b32 s{S_T0}, s{S_W}, 17", f"s_lshr_b32 s{S_T1}, s{S_J}, 1", f"s_lshl_b32 s{S_T1}, s{S_T1}, 7", f"s_add_u32 s{S_T0}, s{S_T0}, s{S_T1}")
    g.srd(S_A, P_WO, S_T0, 524288)
    e(f"v_lshrrev_b32 v{VXO}, 3, v0", f"v_lshlrev_b32 v{VXO}, 10, v{VXO}", f"v_and_b32 v{VXO+1}, 7, v0", f"v_bfe_u32 v{VXO+2}, v0, 4, 1",
      f"v_lshlrev_b32 v{VXO+2}, 2, v{VXO+2}", f"v_xor_b32 v{VXO+1}, v{VXO+1}, v{VXO+2}", f"v_lshl_add_u32 v{VXO}, v{VXO+1}, 4, v{VXO}")
    for k in range(1, 4): e(f"v_add_u32 v{VXO+k}, {7168*k}, v{VXO}")
    e(f"s_lshl_b32 s{S_KX+4}, s{S_W}, 14")
    softmax(g, DA, PA, RING)
    g.rwait(5, RING)
    def dma_wo(q4):
        e(f"s_add_u32 m0, s{S_KX+4}, {TREG + q4*4096}", f"s_mov_b32 s{S_T0}, {q4*32768}")
        for k in range(4): g.vmem(f"buffer_load_dwordx4 v{VXO+k}, {sr(S_A,4)}, s{S_T0} offen offset:{1024*k} lds", 'wo')
    wo_early = o.get('wo_early', 0)
    for q4 in range(wo_early): dma_wo(q4)
    softmax(g, DB, PB, RING)
    g.stamp(8)
    e(f"s_lshl_b32 s{S_T0}, s{S_J}, 7", f"s_lshl_b32 s{S_T1}, s{S_W}, 3", f"s_add_u32 s{S_T0}, s{S_T0}, s{S_T1}", f"s_add_u32 s{S_T0}, s{S_T0}, {WS_FLAGS+8}",
      f"v_lshlrev_b32 v32, 11, v0", f"v_add_u32 v32, s{S_T0}, v32")
    e("v_lshrrev_b32 v100, 4, v0", "v_lshlrev_b32 v100, 7, v100", "v_and_b32 v101, 15, v0", "v_lshl_add_u32 v100, v101, 2, v100")
    g.poll(32, 16, 34)
    g.stamp(9)
    for i in range(4): g.vmem(f"buffer_load_dword v{96+i}, v100, {sr(S_WS,4)}, s{S_ZG} offen offset:{512*i} sc1", 'zg')
    for c4 in range(4):
        if c4: e(f"s_add_u32 s{S_KVG}, s{S_KVG}, 4096")
        for k in range(4): g.vmem(f"buffer_load_dwordx4 {vr(32+16*c4+4*k,4)}, v{V_L16}, {sr(S_WS,4)}, s{S_KVG} offen offset:{1024*k} sc1", f'kg{c4}')
    for q4 in range(wo_early, 4): dma_wo(q4)
    e(f"s_lshl_b32 s{S_T0}, s{S_W}, 3", f"s_add_u32 s{S_T0}, s{S_T0}, {L_KVD}", f"v_lshlrev_b32 v106, 5, v0", f"v_add_u32 v102, s{S_T0}, v106", f"v_add_u32 v106, {L_KVD}, v106")
    e("v_bfe_u32 v103, v0, 2, 1", "v_lshlrev_b32 v103, 5, v103", "v_bfe_u32 v107, v0, 3, 1", "v_lshl_add_u32 v103, v107, 3, v103", "v_and_b32 v107, 3, v0", "v_lshl_add_u32 v103, v107, 1, v103",
      f"s_lshr_b32 s{S_T0}, s{S_W}, 1", f"s_lshl_b32 s{S_T0}, s{S_T0}, 6", f"s_and_b32 s{S_T1}, s{S_W}, 1", f"s_lshl_b32 s{S_T1}, s{S_T1}, 4", f"s_add_u32 s{S_T0}, s{S_T0}, s{S_T1}",
      f"s_add_u32 s{S_T0}, s{S_T0}, {L_ZD}", f"v_add_u32 v103, s{S_T0}, v103")
    e("v_and_b32 v107, 32, v0", f"v_add_u32 v107, {L_ZD}, v107", f"v_cndmask_b32 v104, v107, v106, {sr(S_M,2)}", "v_add_u32 v107, 64, v107", f"v_cndmask_b32 v105, v106, v107, {sr(S_M,2)}")
    g.waitvm('zg')
    e("v_pk_add_f32 v[96:97], v[96:97], v[98:99]", "v_add_f32 v96, v96, v97", "v_mov_b32 v97, v96", "v_permlane16_swap_b32 v96, v97", "v_add_f32 v96, v96, v97",
      "v_mov_b32 v97, v96", "v_permlane32_swap_b32 v96, v97", "v_add_f32 v96, v96, v97", "v_cvt_pk_bf16_f32 v96, v96, v96", "s_mov_b64 exec, 0xffff", "ds_write_b16 v103, v96", "s_mov_b64 exec, -1")
    for c4 in range(4):
        g.waitvm(f'kg{c4}')
        for k in range(4):
            if c4 == 0 and k == 0: continue
            r = 32+16*c4+4*k
            e(f"v_pk_add_f32 v[32:33], v[32:33], {vr(r,2)}", f"v_pk_add_f32 v[34:35], v[34:35], {vr(r+2,2)}")
    e("v_cvt_pk_bf16_f32 v32, v32, v33", "v_cvt_pk_bf16_f32 v33, v34, v35", "ds_write_b64 v102, v[32:33]")
    g.arrive(6, 36); g.rwait(6, 36)
    g.stamp(10)
    for a in range(2): e(f"ds_read_b128 {vr(32+4*a,4)}, v104 offset:{16*a}", f"ds_read_b128 {vr(40+4*a,4)}, v105 offset:{16*a}")
    e(f"s_lshl_b32 s{S_T0}, s{S_C}, 2", f"s_add_u32 s{S_T0}, s{S_T0}, s{S_W}", f"s_lshl_b32 s{S_T0}, s{S_T0}, 4", f"s_add_u32 s{S_T0}, s{S_T0}, s{S_J}",
      f"s_lshl_b32 s{S_T0}, s{S_T0}, 11", f"s_add_u32 s{S_KX+5}, s{S_T0}, {WS_A2O}", f"s_mov_b32 s{S_T1}, 0x358637bd")
    e("s_waitcnt lgkmcnt(2)"); g.mfma(48, 32, PA); g.mfma(64, 40, PB)
    e("s_waitcnt lgkmcnt(0)"); g.mfma(48, 36, PA+4, 48); g.mfma(64, 44, PB+4, 64)
    for hd, num, den in ((0, 48, 56), (1, 72, 64)):
        e(f"v_add_f32 v{den}, s{S_T1}, v{den}", f"v_rcp_f32 v{den}, v{den}")
        for i in range(0, 8, 2): e(f"v_pk_mul_f32 {vr(num+i,2)}, {vr(num+i,2)}, {vr(den,2)} op_sel_hi:[1,0]")
        g.cvt16(80+4*hd, num, 8)
        g.vmem(f"buffer_store_dwordx4 {vr(80+4*hd,4)}, v{V_L16}, {sr(S_WS,4)}, s{S_KX+5} offen offset:{1024*hd} sc1", 'ost')
    g.stamp(11)
    g.waitvm('wo'); g.arrive(7, 36)
    e("v_lshrrev_b32 v32, 5, v0", "v_bfe_u32 v33, v0, 2, 2", "v_lshl_add_u32 v32, v32, 3, v33", "v_lshlrev_b32 v32, 7, v32", "v_bfe_u32 v33, v0, 3, 1", "v_lshl_add_u32 v32, v33, 6, v32",
      "v_bfe_u32 v33, v0, 4, 1", "v_lshl_add_u32 v32, v33, 5, v32", "v_and_b32 v33, 3, v0", "v_lshl_add_u32 v32, v33, 3, v32",
      f"s_lshr_b32 s{S_T0}, s{S_W}, 1", f"s_lshl_b32 s{S_T0}, s{S_T0}, 15", f"v_add_u32 v32, s{S_T0}, v32", "v_xor_b32 v33, 64, v32")
    g.waitvm('ost'); g.setflag(9, 34)
    final_preload(g, 34)
    g.rwait(7, 36)
    for ks in range(16):
        for ch in range(2):
            for i in range(2): e(f"ds_read_b64_tr_b16 {vr(X+8*ks+4*ch+2*i,2)}, v{32+ch} offset:{TREG+ks*2048+i*512}")
    e(f"s_and_b32 s{S_T0}, s{S_J}, 1", f"s_lshl_b32 s{S_T0}, s{S_T0}, 1", f"s_and_b32 s{S_T1}, s{S_W}, 1", f"s_add_u32 s{S_T0}, s{S_T0}, s{S_T1}",
      f"s_lshr_b32 s{S_T1}, s{S_W}, 1", f"s_lshl_b32 s{S_T1}, s{S_T1}, 3",
      f"s_lshl_b32 s{S_KX}, s{S_C}, 2", f"s_add_u32 s{S_KX}, s{S_KX}, s{S_T0}", f"s_lshl_b32 s{S_KX}, s{S_KX}, 4", f"s_add_u32 s{S_KX}, s{S_KX}, s{S_T1}",
      f"s_lshl_b32 s{S_KX}, s{S_KX}, 11", f"s_add_u32 s{S_KX}, s{S_KX}, {WS_A2O}",
      f"s_lshl_b32 s{S_KX+1}, s{S_C}, 4", f"s_add_u32 s{S_KX+1}, s{S_KX+1}, s{S_T1}", f"s_lshl_b32 s{S_KX+1}, s{S_KX+1}, 7", f"s_lshl_b32 s{S_T0}, s{S_T0}, 3",
      f"s_add_u32 s{S_KX+1}, s{S_KX+1}, s{S_T0}", f"s_add_u32 s{S_KX+1}, s{S_KX+1}, {WS_FLAGS+72}", f"v_lshlrev_b32 v34, 7, v0", f"v_add_u32 v34, s{S_KX+1}, v34")
    e(f"s_lshl_b32 s{S_T0}, s{S_W}, 13")
    part_addr(g, 6, 36, S_T0)
    e("s_waitcnt lgkmcnt(0)")
    g.arrive(8, 36)
    g.stamp(12)
    g.poll(34, 8, 36)
    g.stamp(13)
    for k4 in range(4):
        if k4: e(f"s_add_u32 s{S_KX}, s{S_KX}, 4096")
        for k in range(4): g.vmem(f"buffer_load_dwordx4 {vr(32+16*k4+4*k,4)}, v{V_L16}, {sr(S_WS,4)}, s{S_KX} offen offset:{1024*k} sc1", f'a{4*k4+k}')
    g.rwait(8, 96)
    for ks in range(16):
        g.waitvm(f'a{ks}')
        for ch in range(2): g.mfma(96+16*ch, X+8*ks+4*ch, 32+4*ks, None if ks == 0 else 96+16*ch)
    g.stamp(14)
    for ch in range(2):
        for q in range(4): e(f"ds_write_b128 v{6+q}, {vr(96+16*ch+4*q,4)} offset:{TREG+ch*128}")
    e("s_branch L_final")

def roleS(g):
    e = g.e; o = g.o
    g.vm = []
    VXA, VBA = 12, 6
    LR, LI, L16R, L16I, LSR, LSI, W0R, W0I, W1R, W1I, CR, CI = range(16, 28)
    PSR, PSI, ER, EI = 28, 29, 30, 31
    VE0, VE1, VSEGR, VN8 = 32, 33, 34, 35
    SEL = 40
    UR, UI, RP = 48, 64, 80
    T = 96
    FB = 128
    e("L_roleS:")
    e(f"s_lshl_b32 s{S_M}, s{S_W}, 12")
    e("v_and_b32 v96, 19, v0", "v_bfe_u32 v97, v0, 2, 1", "v_lshl_add_u32 v96, v97, 3, v96", "v_bfe_u32 v97, v0, 3, 1", "v_lshl_add_u32 v96, v97, 2, v96",
      f"s_lshl_b32 s{S_T0}, s{S_J}, 5", f"v_add_u32 v96, s{S_T0}, v96", "v_lshlrev_b32 v96, 1, v96")
    e(f"s_lshl_b32 s{S_T0}, s{S_R0}, 3", f"v_add_u32 v97, s{S_T0}, v0", "v_and_b32 v97, 63, v97", "v_lshlrev_b32 v97, 4, v97")
    e("s_waitcnt lgkmcnt(0)")
    e(f"s_load_dword s{S_EP}, {sr(P_WS,2)}, {WS_EPOCH}")
    g.vmem(f"global_load_ushort v100, v96, {sr(P_LDT,2)}", 'par')
    g.vmem(f"global_load_ushort v101, v96, {sr(P_LRE,2)}", 'par')
    g.vmem(f"global_load_ushort v102, v96, {sr(P_LIM,2)}", 'par')
    g.srd(S_X, P_GATE, None, 1024)
    e(f"s_lshl_b32 s{S_T0}, s{S_J}, 10"); g.srd(S_WK, P_WPHI, S_T0, 16384)
    e(f"s_cmp_lg_u32 s{S_W}, 0", "s_cbranch_scc1 L_s1", f"s_mov_b32 m0, {L_GATE}", "s_nop 0", f"buffer_load_dwordx4 v97, {sr(S_X,4)}, 0 offen lds", "L_s1:")
    e(f"s_cmp_lg_u32 s{S_W}, 1", "s_cbranch_scc1 L_s2", f"s_mov_b32 m0, {L_WPHI}", "s_nop 0", f"buffer_load_dwordx4 v{V_L16}, {sr(S_WK,4)}, 0 offen lds", "L_s2:")
    if o.get('codepre', 1):
        e(f"s_cmp_lg_u32 s{S_W}, 2", "s_cbranch_scc1 L_s3", f"s_getpc_b64 {sr(S_KX,2)}", "L_pc:",
          f"s_sub_u32 s{S_KX}, s{S_KX}, L_pc-{KNAME}_kernel", f"s_subb_u32 s{S_KX+1}, s{S_KX+1}, 0",
          f"s_bfe_u32 s{S_T0}, s2, 0x40003", f"s_lshl_b32 s{S_T0}, s{S_T0}, 11", f"v_lshlrev_b32 v98, 7, v0", f"v_add_u32 v98, s{S_T0}, v98",
          f"v_min_u32 v98, L_end-{KNAME}_kernel, v98", "s_mov_b64 exec, 0xffff", f"global_load_dword v99, v98, {sr(S_KX,2)}", "s_mov_b64 exec, -1", "L_s3:")
    g.srd(S_WS, P_WS, None, WS_SIZE)
    frag_addr(g, VBA, 104, base_c=L_BSL)
    e(f"s_sub_u32 s{S_T0}, s{S_M}, {L_BSL}")
    for k in range(4): e(f"v_add_u32 v{VXA+k}, s{S_T0}, v{VBA+k}")
    make_sel(g, SEL, 104)
    e(f"s_lshl_b32 s{S_T0}, s{S_W}, 9", f"s_add_u32 s{S_T0}, s{S_T0}, {L_SEGZ}", f"v_lshl_add_u32 v{VSEGR}, v0, 3, s{S_T0}", "v_mov_b32 v104, 0", "v_mov_b32 v105, 0")
    e("s_waitcnt lgkmcnt(0)")
    e(f"ds_write_b64 v{VSEGR}, v[104:105]")
    nonce(g)
    g.arrive(0, 104)
    e(f"v_and_b32 v{VN8}, 31, v0", f"v_lshlrev_b32 v{VN8}, 3, v{VN8}")
    e("v_lshrrev_b32 v106, 5, v0", f"s_lshl_b32 s{S_T0}, s{S_W}, 2", f"v_add_u32 v107, s{S_T0}, v106", "v_add_u32 v108, 2, v107")
    e(f"s_lshl_b32 s{S_T0}, s{S_J}, 13", f"s_add_u32 s{S_T0}, s{S_T0}, {WS_E}", f"v_lshl_add_u32 v109, v{VN8}, 1, s{S_T0}", "v_mov_b32 v110, 0x7ffffff0")
    M0, M1 = S_KX+2, S_KX+4
    for i, (cp, m, d) in enumerate(((107, M0, VE0), (108, M1, VE1))):
        e(f"v_cmp_gt_u32 {sr(m,2)}, s{S_C}, v{cp}", f"v_lshl_add_u32 v{d}, v{cp}, 9, v109", f"v_cndmask_b32 v{d}, v110, v{d}, {sr(m,2)}")
        e(f"v_sub_u32 v{cp}, s{S_C}, v{cp}", f"v_add_u32 v{cp}, -1, v{cp}", f"v_max_i32 v{cp}, 0, v{cp}", f"v_lshlrev_b32 v{cp}, 7, v{cp}", f"v_cvt_f32_u32 v{cp}, v{cp}")
    e(f"s_lshl_b32 s{S_T0}, s{S_W}, 1", f"v_add_u32 v106, s{S_T0}, v106", "v_lshlrev_b32 v106, 4, v106", "v_cvt_f32_u32 v106, v106")
    e(f"s_mov_b32 s{S_T2}, {LOG2E}")
    g.waitvm0()
    e("v_lshlrev_b32 v100, 16, v100", "v_lshlrev_b32 v101, 16, v101", "v_lshlrev_b32 v102, 16, v102")
    e(f"v_mul_f32 v100, s{S_T2}, v100", "v_exp_f32 v100, v100", "v_cvt_pk_bf16_f32 v100, v100, v100", "v_lshlrev_b32 v100, 16, v100")
    e("v_mul_f32 v103, v100, v101", f"v_mul_f32 v103, s{S_T2}, v103", "v_mul_f32 v104, v100, v102", "v_mul_f32 v104, 0.15915494, v104")
    def cpow(dr, di, n):
        if n is None: e("v_exp_f32 v111, v103", "v_rndne_f32 v113, v104", "v_sub_f32 v112, v104, v113")
        else: e(f"v_mul_f32 v111, {n}, v103", f"v_mul_f32 v112, {n}, v104", "v_exp_f32 v111, v111", "v_rndne_f32 v113, v112", "v_sub_f32 v112, v112, v113")
        e(f"v_cos_f32 v{dr}, v112", f"v_sin_f32 v{di}, v112", f"v_mul_f32 v{dr}, v111, v{dr}", f"v_mul_f32 v{di}, v111, v{di}")
    cpow(LR, LI, None); cpow(L16R, L16I, "0x41800000"); cpow(LSR, LSI, "v106"); cpow(W0R, W0I, "v107"); cpow(W1R, W1I, "v108")
    e(f"v_add_f32 v111, -1.0, v{LR}", "v_mul_f32 v112, v101, v101", "v_fmac_f32 v112, v102, v102", "v_rcp_f32 v112, v112",
      f"v_mul_f32 v{CR}, v111, v101", f"v_fmac_f32 v{CR}, v{LI}, v102", f"v_mul_f32 v{CI}, v{LI}, v101", f"v_fma_f32 v{CI}, -v111, v102, v{CI}",
      "v_add_f32 v112, v112, v112", f"v_mul_f32 v{CR}, v{CR}, v112", f"v_mul_f32 v{CI}, v{CI}, v112")
    g.stamp(0)
    def mm(s):
        b = FB+48*(s&1)
        for k in range(4):
            first = (s == 0 and k == 0)
            g.mfma(UR, b+12*k, b+12*k+4, None if first else UR); g.mfma(UI, b+12*k, b+12*k+8, None if first else UI)
    for s in range(8):
        e("s_waitcnt lgkmcnt(0)", "s_barrier")
        if s == 0: g.stamp(1)
        if s == 4:
            for k in range(4): e(f"v_add_u32 v{VXA+k}, 0x10000, v{VXA+k}")
        b = FB+48*(s&1)
        for k in range(4):
            e(f"ds_read_b128 {vr(b+12*k,4)}, v{VXA+k} offset:{(s&3)*16384}",
              f"ds_read_b128 {vr(b+12*k+4,4)}, v{VBA+k} offset:{(s%3)*8192}",
              f"ds_read_b128 {vr(b+12*k+8,4)}, v{VBA+k} offset:{(s%3)*8192+4096}")
        if s > 0: mm(s-1)
    e("s_waitcnt lgkmcnt(0)", "s_barrier")
    mm(7)
    g.stamp(2)
    e(f"s_lshr_b32 s{S_T0}, s{S_J}, 1", f"s_lshl_b32 s{S_T0}, s{S_T0}, 16", f"s_lshl_b32 s{S_T1}, s{S_W}, 8", f"s_add_u32 s{S_T0}, s{S_T0}, s{S_T1}")
    g.srd(S_A, P_CRE, S_T0, 524288); g.srd(S_B, P_CIM, S_T0, 524288)
    e(f"s_lshl_b32 s{S_M0B}, s{S_W}, 14", f"s_add_u32 s{S_M0B}, s{S_M0B}, {SREG}", f"s_sub_u32 s{S_T0}, s{S_M0B}, {L_BSL}")
    for k in range(4): e(f"v_add_u32 v{VBA+k}, s{S_T0}, v{VBA+k}")
    VCO = VXA
    e(f"v_lshrrev_b32 v{VCO}, 3, v0", f"v_lshlrev_b32 v{VCO}, 10, v{VCO}", f"v_and_b32 v{T}, 7, v0", f"v_lshrrev_b32 v{T+1}, 4, v0", f"v_xor_b32 v{T}, v{T}, v{T+1}",
      f"v_lshl_add_u32 v{VCO}, v{T}, 4, v{VCO}", f"v_xor_b32 v{VCO+1}, 64, v{VCO}", f"v_add_u32 v{VCO+2}, {2*7168}, v{VCO}", f"v_add_u32 v{VCO+3}, {3*7168}, v{VCO+1}", f"v_add_u32 v{VCO+1}, 7168, v{VCO+1}")
    def dma_c(pc):
        part, kh2 = pc & 1, pc >> 1
        for q4 in range(2):
            e(f"s_add_u32 m0, s{S_M0B}, {(pc&1)*8192 + q4*4096}", f"s_mov_b32 s{S_T0}, {kh2*128 + q4*32768}")
            for k in range(4): g.vmem(f"buffer_load_dwordx4 v{VCO+k}, {sr(S_A if part == 0 else S_B,4)}, s{S_T0} offen offset:{1024*k} lds", f'c{pc}')
    def creg(jj, part, a, ch): return FB + 4*(((jj*2+part)*2+a)*2+ch)
    def read_c(pc):
        part, kh2 = pc & 1, pc >> 1
        for ks in range(4):
            for ch in range(2): e(f"ds_read_b128 {vr(creg(2*kh2+(ks>>1), part, ks&1, ch),4)}, v{VBA+ks} offset:{(pc&1)*8192+ch*4096}")
    pr, pi = UR, UI
    for t in range(1, 16):
        nr, ni = (ER, EI) if t & 1 else (T, T+1)
        e(f"v_fma_f32 v{nr}, v{LR}, v{pr}, v{UR+t}", f"v_fma_f32 v{ni}, v{LR}, v{pi}, v{UI+t}", f"v_fma_f32 v{nr}, -v{LI}, v{pi}, v{nr}", f"v_fma_f32 v{ni}, v{LI}, v{pr}, v{ni}")
        pr, pi = nr, ni
    e(f"ds_write_b64 v{VSEGR}, {vr(ER,2)} offset:{L_SEG-L_SEGZ}")
    g.arrive(1, T); g.rwait(1, T)
    for k in range(7): e(f"ds_read_b64 {vr(T+2*k,2)}, v{VSEGR} offset:{L_SEG-L_SEGZ-(7-k)*256}")
    e(f"s_lshl_b32 s{S_T0}, s{S_J}, 4", f"s_add_u32 s{S_T0}, s{S_T0}, s{S_C}", f"s_lshl_b32 s{S_T0}, s{S_T0}, 9", f"s_add_u32 s{S_T1}, s{S_T0}, {WS_E}",
      f"v_mov_b32 v{T+18}, s{S_NON}", f"v_mov_b32 v{T+19}, s{S_NON+1}", f"v_lshlrev_b32 v{T+20}, 1, v{VN8}")
    def cmac(dr, di, ar, ai, br, bi, cr, ci):
        e(f"v_fma_f32 v{dr}, v{ar}, v{br}, v{cr}", f"v_fma_f32 v{di}, v{ar}, v{bi}, v{ci}", f"v_fma_f32 v{dr}, -v{ai}, v{bi}, v{dr}", f"v_fma_f32 v{di}, v{ai}, v{br}, v{di}")
    for k in range(1, 7):
        e(f"s_waitcnt lgkmcnt({6-k})")
        d = (PSR, PSI) if k == 6 else (T+2*k, T+2*k+1)
        cmac(d[0], d[1], L16R, L16I, T+2*k-2, T+2*k-1, T+2*k, T+2*k+1)
    cmac(T+16, T+17, L16R, L16I, PSR, PSI, ER, EI)
    e(f"s_cmp_lg_u32 s{S_W}, 3", "s_cbranch_scc1 L_s4", "s_mov_b32 exec_lo, 0",
      f"buffer_store_dwordx4 {vr(T+16,4)}, v{T+20}, {sr(S_WS,4)}, s{S_T1} offen sc1", "s_mov_b64 exec, -1", "L_s4:")
    g.stamp(3)
    for t in range(16):
        e(f"v_mul_f32 v{RP+t}, v{CR}, v{UR+t}", f"v_fma_f32 v{RP+t}, -v{CI}, v{UI+t}, v{RP+t}", f"v_mul_f32 v{UI+t}, -v{CR}, v{UI+t}", f"v_fma_f32 v{UI+t}, -v{CI}, v{UR+t}, v{UI+t}")
    c_early = o.get('c_early', 0)
    for pc in range(c_early): dma_c(pc)
    l = g.lab('ep'); d = g.lab('ed')
    e(f"s_mov_b32 s{S_T0}, {o.get('timeout', 200000)}", l+":",
      f"buffer_load_dwordx4 {vr(T,4)}, v{VE0}, {sr(S_WS,4)}, 0 offen sc1", f"buffer_load_dwordx4 {vr(T+4,4)}, v{VE1}, {sr(S_WS,4)}, 0 offen sc1",
      f"s_sub_u32 s{S_T0}, s{S_T0}, 1", f"s_cbranch_scc1 {d}", "s_waitcnt vmcnt(0)",
      f"v_cmp_ne_u64 vcc, {sr(S_NON,2)}, {vr(T+2,2)}", f"v_cmp_ne_u64 {sr(S_M,2)}, {sr(S_NON,2)}, {vr(T+6,2)}",
      f"s_and_b64 vcc, vcc, {sr(M0,2)}", f"s_and_b64 {sr(S_M,2)}, {sr(S_M,2)}, {sr(M1,2)}", f"s_or_b64 vcc, vcc, {sr(S_M,2)}", f"s_cbranch_scc1 {l}", d+":")
    g.waitvm0()
    g.stamp(4)
    for pc in range(c_early, 2): dma_c(pc)
    e(f"v_mul_f32 v{T+8}, v{W0R}, v{T}", f"v_mul_f32 v{T+9}, v{W0R}, v{T+1}", f"v_fma_f32 v{T+8}, -v{W0I}, v{T+1}, v{T+8}", f"v_fma_f32 v{T+9}, v{W0I}, v{T}, v{T+9}")
    cmac(T+8, T+9, W1R, W1I, T+4, T+5, T+8, T+9)
    e(f"ds_write_b64 v{VSEGR}, {vr(T+8,2)} offset:{L_HP-L_SEGZ}", f"v_add_u32 v{VN8}, {L_HP}, v{VN8}")
    g.arrive(2, T); g.rwait(2, T)
    for k in range(8): e(f"ds_read_b64 {vr(T+2*k,2)}, v{VN8} offset:{k*256}")
    e(f"s_lshl_b32 s{S_T0}, s{S_C}, 2", f"s_add_u32 s{S_T0}, s{S_T0}, s{S_W}", f"s_lshl_b32 s{S_T0}, s{S_T0}, 4", f"s_add_u32 s{S_T0}, s{S_T0}, s{S_J}",
      f"s_lshl_b32 s{S_T0}, s{S_T0}, 12", f"s_add_u32 s{S_KX}, s{S_T0}, {WS_A2H}")
    for k in range(1, 8):
        e(f"s_waitcnt lgkmcnt({7-k})", f"v_add_f32 v{T}, v{T}, v{T+2*k}", f"v_add_f32 v{T+1}, v{T+1}, v{T+2*k+1}")
    cmac(PSR, PSI, LSR, LSI, T, T+1, PSR, PSI)
    e(f"v_mul_f32 v{ER}, v{CR}, v{PSR}", f"v_fma_f32 v{ER}, -v{CI}, v{PSI}, v{ER}", f"v_mul_f32 v{EI}, -v{CR}, v{PSI}", f"v_fma_f32 v{EI}, -v{CI}, v{PSR}, v{EI}")
    pr, pj = ER, EI
    for t in range(16):
        e(f"v_fmac_f32 v{RP+t}, v{LR}, v{pr}", f"v_fmac_f32 v{UI+t}, v{LR}, v{pj}", f"v_fmac_f32 v{RP+t}, v{LI}, v{pj}", f"v_fma_f32 v{UI+t}, -v{LI}, v{pr}, v{UI+t}")
        pr, pj = RP+t, UI+t
    g.cvt16(T, RP); g.cvt16(T+8, UI)
    g.mfma(48, T, SEL); g.mfma(64, T+8, SEL); g.mfma(48, T+4, SEL+4, 48); g.mfma(64, T+12, SEL+4, 64)
    for f in range(4):
        g.cvt16(T+16+4*f, 48+8*f, 8)
        g.vmem(f"buffer_store_dwordx4 {vr(T+16+4*f,4)}, v{V_L16}, {sr(S_WS,4)}, s{S_KX} offen offset:{1024*f} sc1", 'hst')
    g.stamp(5)
    g.waitvm('c0'); read_c(0)
    g.waitvm('c1'); e("s_waitcnt lgkmcnt(0)"); read_c(1); dma_c(2)
    e("s_waitcnt lgkmcnt(0)"); dma_c(3)
    g.waitvm('hst'); g.setflag(5, 16)
    g.stamp(6)
    e(f"s_and_b32 s{S_T0}, s{S_J}, 1", f"s_lshl_b32 s{S_T0}, s{S_T0}, 1", f"s_lshl_b32 s{S_T1}, s{S_W}, 2",
      f"s_lshl_b32 s{S_KX}, s{S_C}, 2", f"s_add_u32 s{S_KX}, s{S_KX}, s{S_T0}", f"s_lshl_b32 s{S_KX}, s{S_KX}, 4", f"s_add_u32 s{S_KX}, s{S_KX}, s{S_T1}",
      f"s_lshl_b32 s{S_KX}, s{S_KX}, 12", f"s_add_u32 s{S_KX}, s{S_KX}, {WS_A2H}")
    for k in range(1, 8): e(f"s_add_u32 s{S_KX+k}, s{S_KX}, {(k>>1)*4096 + (k&1)*65536}")
    e(f"s_lshl_b32 s{S_T2}, s{S_C}, 4", f"s_add_u32 s{S_T2}, s{S_T2}, s{S_T1}", f"s_lshl_b32 s{S_T2}, s{S_T2}, 7", f"s_lshl_b32 s{S_T0}, s{S_T0}, 3",
      f"s_add_u32 s{S_T2}, s{S_T2}, s{S_T0}", f"s_add_u32 s{S_T2}, s{S_T2}, {WS_FLAGS+40}",
      "v_lshrrev_b32 v18, 1, v0", "v_lshlrev_b32 v18, 7, v18", "v_and_b32 v19, 1, v0", "v_lshl_add_u32 v18, v19, 3, v18", f"v_add_u32 v18, s{S_T2}, v18")
    final_preload(g, 20)
    g.waitvm('c2'); read_c(2)
    g.waitvm('c3'); e("s_waitcnt lgkmcnt(0)"); read_c(3)
    g.stamp(7)
    g.poll(18, 8, 16)
    g.stamp(8)
    e("s_waitcnt lgkmcnt(0)")
    part_addr(g, 6, 64, S_M0B)
    AB, NB, ACC = 16, 6, 64
    steps = [(jj, f) for jj in range(4) for f in range(4)]
    def lda(i):
        jj, f = steps[i]
        for rh in range(2):
            g.vmem(f"buffer_load_dwordx4 {vr(AB+8*(i%NB)+4*rh,4)}, v{V_L16}, {sr(S_WS,4)}, s{S_KX+2*jj+rh} offen offset:{1024*f} sc1", f'a{i}')
    for i in range(NB): lda(i)
    for i in range(16):
        jj, f = steps[i]
        g.waitvm(f'a{i}')
        for rh in range(2):
            for ch in range(2):
                acc = ACC+16*(2*rh+ch)
                g.mfma(acc, creg(jj, f >> 1, f & 1, ch), AB+8*(i%NB)+4*rh, None if i == 0 else acc)
        if i+NB < 16: lda(i+NB)
    g.stamp(9)
    for rh in range(2):
        for ch in range(2):
            for q in range(4): e(f"ds_write_b128 v{6+q}, {vr(ACC+16*(2*rh+ch)+4*q,4)} offset:{rh*8192+ch*128}")

def final(g):
    e = g.e; o = g.o
    e("L_final:")
    g.srd(S_OUT, P_OUT, None, 4194304)
    e("v_lshrrev_b32 v16, 4, v0", "v_and_b32 v17, 15, v0", "v_xor_b32 v17, v17, v16", "v_lshlrev_b32 v17, 4, v17", "v_lshl_add_u32 v17, v16, 8, v17",
      f"s_lshl_b32 s{S_T0}, s{S_WV}, 11", f"v_add_u32 v17, s{S_T0}, v17", "v_xor_b32 v18, 64, v17", f"v_add_u32 v19, {SREG}, v17", f"v_add_u32 v20, {SREG}, v18")
    e(f"s_and_b32 s{S_T0}, s{S_J}, 1", f"s_lshl_b32 s{S_T0}, s{S_T0}, 8", f"s_lshl_b32 s{S_T1}, s{S_WV}, 5", f"s_add_u32 s{S_T0}, s{S_T0}, s{S_T1}", f"s_add_u32 s{S_T0}, s{S_T0}, {L_G}",
      f"v_lshl_add_u32 v16, v16, 2, s{S_T0}", "v_lshlrev_b32 v5, 1, v5")
    e("s_waitcnt vmcnt(0)")
    e(f"v_lshlrev_b32 v24, 16, v{V_FX+4}", f"v_and_b32 v25, 0xffff0000, v{V_FX+4}", f"v_lshlrev_b32 v26, 16, v{V_FX+5}", f"v_and_b32 v27, 0xffff0000, v{V_FX+5}")
    for i in range(2):
        e(f"v_lshlrev_b32 v{28+4*i}, 16, v{V_FX+2*i}", f"v_and_b32 v{29+4*i}, 0xffff0000, v{V_FX+2*i}", f"v_lshlrev_b32 v{30+4*i}, 16, v{V_FX+2*i+1}", f"v_and_b32 v{31+4*i}, 0xffff0000, v{V_FX+2*i+1}")
    e("s_waitcnt lgkmcnt(0)", "s_barrier")
    g.stamp(15)
    e("ds_read_b32 v22, v16", "ds_read_b32 v36, v16 offset:16")
    for i in range(2):
        for k in range(4): e(f"ds_read_b128 {vr(40+24*i+4*k,4)}, v{19+i} offset:{k*16384+i*1024}")
        for k in range(2): e(f"ds_read_b128 {vr(56+24*i+4*k,4)}, v{17+i} offset:{TREG+k*16384+i*1024}")
    e(f"s_mov_b32 s{S_T0}, 0x8000")
    for i in range(2):
        b = 40+24*i; gg = 22 if i == 0 else 36
        e(f"s_waitcnt lgkmcnt({6-6*i})")
        for h in (0, 2):
            e(f"v_pk_fma_f32 {vr(b+h,2)}, {vr(28+4*i+h,2)}, {vr(24+h,2)}, {vr(b+h,2)}",
              f"v_pk_add_f32 {vr(b+4+h,2)}, {vr(b+4+h,2)}, {vr(b+8+h,2)}",
              f"v_pk_add_f32 {vr(b+16+h,2)}, {vr(b+16+h,2)}, {vr(b+20+h,2)}",
              f"v_pk_add_f32 {vr(b+h,2)}, {vr(b+h,2)}, {vr(b+12+h,2)}",
              f"v_pk_add_f32 {vr(b+4+h,2)}, {vr(b+4+h,2)}, {vr(b+16+h,2)} neg_lo:[0,1] neg_hi:[0,1]",
              f"v_pk_add_f32 {vr(b+h,2)}, {vr(b+h,2)}, {vr(b+4+h,2)}",
              f"v_pk_fma_f32 {vr(b+h,2)}, {vr(b+h,2)}, {vr(gg,2)}, {vr(b+16+h,2)} op_sel_hi:[1,0,1]")
        e(f"buffer_store_dwordx4 {vr(b,4)}, v5, {sr(S_OUT,4)}, {'0' if i == 0 else 's%d' % S_T0} offen {o.get('outmod','')}")
    e(f"s_or_b32 s{S_T0}, s{S_C}, s{S_J}", f"s_or_b32 s{S_T0}, s{S_T0}, s{S_WV}", "s_cbranch_scc1 L_f1",
      f"v_mov_b32 v16, s{S_NON}", "s_mov_b64 exec, 1", f"buffer_store_dword v16, off, {sr(S_WS,4)}, 0 offset:{WS_EPOCH} sc1", "s_mov_b64 exec, -1", "L_f1:")
    if o.get('stamps'):
        e("s_waitcnt vmcnt(0)")
        g.stamp(16)
        e(f"s_lshl_b32 s{S_T0}, s{S_C}, 4", f"s_add_u32 s{S_T0}, s{S_T0}, s{S_J}", f"s_lshl_b32 s{S_T0}, s{S_T0}, 3", f"s_add_u32 s{S_T0}, s{S_T0}, s{S_WV}",
          f"s_lshl_b32 s{S_T0}, s{S_T0}, 8", f"s_add_u32 s{S_T0}, s{S_T0}, {WS_STAMP}", "v_lshlrev_b32 v16, 2, v0",
          f"buffer_store_dword v{V_STAMP}, v16, {sr(S_WS,4)}, s{S_T0} offen")
    e("L_end:", "s_endpgm")

def build(opt):
    g = G(opt)
    if opt.get('stamps'):
        g.e("s_memrealtime s[100:101]")
    prologue(g)
    if opt.get('stamps'):
        pass
    roleT(g); roleS(g); final(g)
    lines = g.L
    if opt.get('stamps'):
        out = []
        for x in lines:
            out.append(x)
            if x in ("L_roleT:", "L_roleS:"):
                out += ["s_waitcnt lgkmcnt(0)", f"v_writelane_b32 v{V_STAMP}, s100, 31"]
        lines = out
    ins, added = fix(lines)
    errs = check_waits(ins)
    for x in errs: print("WAITCHECK", x, file=sys.stderr)
    ref = open('cdna_kernels/' + KNAME + '.s.ref').read().splitlines() if opt.get('refhdr', True) else []
    hdr = [x for x in ref if x.startswith(';') and '@launch' not in x and 'Override' not in x and 'grid=ceil' not in x]
    txt = "\n".join(hdr) + f"""
; @launch grid=(256,1,1) block=(512,1,1) lds={LDS_BYTES}
.amdgcn_target "amdgcn-amd-amdhsa--gfx950"
.text
.globl {KNAME}_kernel
.p2align 8
.type {KNAME}_kernel,@function
{KNAME}_kernel:
""" + "\n".join((i.text if i.label else "    " + i.text) for i in ins) + f"""
.section .rodata,"a"
.p2align 6
.amdhsa_kernel {KNAME}_kernel
  .amdhsa_next_free_vgpr 256
  .amdhsa_next_free_sgpr 102
  .amdhsa_accum_offset 256
  .amdhsa_group_segment_fixed_size 0
  .amdhsa_kernarg_size 136
  .amdhsa_user_sgpr_count 2
  .amdhsa_user_sgpr_kernarg_segment_ptr 1
  .amdhsa_system_sgpr_workgroup_id_x 1
.end_amdhsa_kernel
"""
    return txt, len([i for i in ins if i.real]), added, errs

if __name__ == '__main__':
    out = sys.argv[1] if len(sys.argv) > 1 else 'k.s'
    opt = eval(sys.argv[2]) if len(sys.argv) > 2 else {}
    txt, n, added, errs = build(opt)
    open(out, 'w').write(txt)
    print(f"{out}: {n} instructions, {added} nops added, {len(errs)} wait errors")
```

```python
import sys
from asmfix import fix, check_waits
KNAME = 'gated_mix__ssm_conv_s5__linear_kernel_hedgehog__prompt'

WS_EPOCH = 0
WS_FLAGS = 0x1000
WS_E     = 0x10000
WS_Z     = 0x40000
WS_KV    = 0x80000
WS_A2H   = 0x200000
WS_A2O   = 0x600000
WS_STAMP = 0x900000
WS_SIZE  = 0x1000000
TREG = 0x0
SREG = 0x10000
SCR  = 0x20000
L_TFL  = SCR + 0x0
L_SFL  = SCR + 0x10
L_G    = SCR + 0x200
L_GATE = SCR + 0x400
L_WPHI = SCR + 0x800
L_SEGZ = SCR + 0xC00
L_SEG  = SCR + 0x1400
L_ZD   = SCR + 0x1C00
L_BSL  = SCR + 0x2000
L_KVR  = SCR + 0x2000
L_ZR   = SCR + 0x6000
L_KVD  = SCR + 0x6400
L_HP   = SCR + 0x6C00
LDS_BYTES = 0x28000
LOG2E = 0x3fb8aa3b

def vr(a, n=1): return f"v{a}" if n == 1 else f"v[{a}:{a+n-1}]"
def sr(a, n=1): return f"s{a}" if n == 1 else f"s[{a}:{a+n-1}]"

class G:
    def __init__(self, opt):
        self.o = opt; self.L = []; self.vm = []; self.nlab = 0
    def e(self, *xs):
        for x in xs: self.L.append(x)
    def lab(self, p):
        self.nlab += 1; return f"L_{p}{self.nlab}"
    def vmem(self, text, tag=None):
        self.e(text); self.vm.append(tag)
    def waitvm(self, *tags):
        last = max((i for i, t in enumerate(self.vm) if t in tags), default=-1)
        if last < 0: return
        n = len(self.vm) - 1 - last
        assert n <= 63
        self.e(f"s_waitcnt vmcnt({n})")
        self.vm = self.vm[last+1:]
    def waitvm0(self):
        self.e("s_waitcnt vmcnt(0)"); self.vm = []
    def srd(self, d, base, off=None, size=0):
        if off is None:
            self.e(f"s_mov_b32 s{d}, s{base}", f"s_mov_b32 s{d+1}, s{base+1}", f"s_mov_b32 s{d+2}, {size}")
        else:
            self.e(f"s_add_u32 s{d}, s{base}, s{off}", f"s_addc_u32 s{d+1}, s{base+1}, 0", f"s_sub_u32 s{d+2}, {size}, s{off}")
        self.e(f"s_mov_b32 s{d+3}, 0x20000")
    def stamp(self, i):
        if self.o.get('amp') == i: self.e("s_waitcnt lgkmcnt(0)", "s_memrealtime s[66:67]", "s_waitcnt lgkmcnt(0)")
        if not self.o.get('stamps'): return
        self.e("s_waitcnt lgkmcnt(0)", "s_memrealtime s[100:101]", "s_waitcnt lgkmcnt(0)", f"v_writelane_b32 v{V_STAMP}, s100, {i}")
    def mfma(self, d, a, b, c=None):
        cc = "0" if c is None else vr(c, 16)
        self.e(f"v_mfma_f32_32x32x16_bf16 {vr(d,16)}, {vr(a,4)}, {vr(b,4)}, {cc}")
    def cvt16(self, dst, src, n=16):
        for q in range(n//2): self.e(f"v_cvt_pk_bf16_f32 v{dst+q}, v{src+2*q}, v{src+2*q+1}")
    def arrive(self, stage, tmp):
        self.e(f"v_mov_b32 v{tmp}, {stage}", "s_mov_b64 exec, 1", f"ds_write_b32 v{V_MYFL}, v{tmp}", "s_mov_b64 exec, -1")
    def rwait(self, stage, tmp):
        l = self.lab('rs')
        self.e(l+":", f"ds_read_b128 {vr(tmp,4)}, v{V_FLB}", "s_waitcnt lgkmcnt(0)",
               f"v_min3_u32 v{tmp}, v{tmp}, v{tmp+1}, v{tmp+2}", f"v_min_u32 v{tmp}, v{tmp}, v{tmp+3}",
               f"v_cmp_gt_u32 vcc, {stage}, v{tmp}", f"s_cbranch_vccnz {l}")
    def setflag(self, slot, tmp):
        self.e(f"v_mov_b32 v{tmp}, s{S_NON}", f"v_mov_b32 v{tmp+1}, s{S_NON+1}", "s_mov_b64 exec, 1")
        self.vmem(f"buffer_store_dwordx2 {vr(tmp,2)}, off, {sr(S_WS,4)}, s{S_FLOFF} offset:{slot*8} sc1", 'flag')
        self.e("s_mov_b64 exec, -1")
    def poll(self, vaddr, n, tmp):
        l = self.lab('pl'); d = self.lab('pd')
        self.e(f"s_mov_b64 exec, {(1<<n)-1}", f"s_mov_b32 s{S_T0}, {self.o.get('timeout', 200000)}")
        self.e(l+":", f"buffer_load_dwordx2 {vr(tmp,2)}, v{vaddr}, {sr(S_WS,4)}, 0 offen sc1",
               f"s_sub_u32 s{S_T0}, s{S_T0}, 1", f"s_cbranch_scc1 {d}", "s_waitcnt vmcnt(0)",
               f"v_cmp_ne_u64 vcc, {sr(S_NON,2)}, {vr(tmp,2)}", f"s_cbranch_vccnz {l}", d+":", "s_waitcnt vmcnt(0)", "s_mov_b64 exec, -1")
        self.vm = []

S_WV = 3
S_X, S_A, S_B, S_WK, S_WVv, S_WQ, S_WS, S_OUT = 4, 8, 12, 16, 20, 24, 28, 32
P_X, P_LRE, P_LIM, P_BRE, P_BIM, P_CRE, P_CIM, P_LDT = 36, 38, 40, 42, 44, 46, 48, 50
P_DSK, P_BX, P_WQKV, P_WPHI, P_WO, P_GATE, P_OUT, P_DBG, P_WS = 52, 54, 56, 58, 60, 62, 64, 66, 68
S_KX = 70
S_KW = 78
S_NON = 86
S_C, S_J, S_W, S_R0 = 88, 89, 90, 91
S_FLOFF = 92
S_M0B = 93
S_T0, S_T1, S_T2, S_T3 = 94, 95, 96, 97
S_M = 98
S_EP = 54
V_LANE = 0
V_MYFL, V_FLB, V_L16, V_STAMP = 1, 2, 3, 4
V_FX = 10

def prologue(g):
    e = g.e; o = g.o
    e("s_cmp_ge_u32 s2, 256", "s_cbranch_scc1 L_end")
    e(f"s_load_dwordx16 s[36:51], s[0:1], 0", f"s_load_dwordx16 s[52:67], s[0:1], 64", f"s_load_dwordx2 s[68:69], s[0:1], 128")
    e("v_lshrrev_b32 v1, 6, v0", "v_and_b32 v0, 63, v0", f"v_readfirstlane_b32 s{S_WV}, v1")
    e(f"s_and_b32 s{S_T0}, s2, 3", f"s_lshl_b32 s{S_T0}, s{S_T0}, 2", f"s_bfe_u32 s{S_C}, s2, 0x20003", f"s_add_u32 s{S_C}, s{S_C}, s{S_T0}")
    e(f"s_and_b32 s{S_T0}, s2, 4", f"s_lshl_b32 s{S_T0}, s{S_T0}, 1", f"s_lshr_b32 s{S_J}, s2, 5", f"s_add_u32 s{S_J}, s{S_J}, s{S_T0}")
    e(f"s_and_b32 s{S_W}, s{S_WV}, 3")
    ra, rb_, rmask = o.get('rot', (2, 1, 7))
    e(f"s_mul_i32 s{S_R0}, s{S_C}, {ra}", f"s_mul_i32 s{S_T0}, s{S_J}, {rb_}", f"s_add_u32 s{S_R0}, s{S_R0}, s{S_T0}")
    if o.get('rotx'):
        e(f"s_lshr_b32 s{S_T0}, s{S_C}, 2", f"s_mul_i32 s{S_T0}, s{S_T0}, {o['rotx']}", f"s_add_u32 s{S_R0}, s{S_R0}, s{S_T0}")
    e(f"s_and_b32 s{S_R0}, s{S_R0}, {rmask}")
    e(f"s_lshl_b32 s{S_T0}, s{S_C}, 4", f"s_add_u32 s{S_T0}, s{S_T0}, s{S_J}", f"s_lshl_b32 s{S_T0}, s{S_T0}, 7",
      f"s_lshl_b32 s{S_T1}, s{S_W}, 3", f"s_add_u32 s{S_T0}, s{S_T0}, s{S_T1}", f"s_add_u32 s{S_FLOFF}, s{S_T0}, {WS_FLAGS}")
    e(f"v_lshlrev_b32 v{V_L16}, 4, v0")
    if o.get('stamps'): e(f"v_mov_b32 v{V_STAMP}, 0")
    e(f"s_lshl_b32 s{S_T0}, s{S_WV}, 2", f"s_add_u32 s{S_T0}, s{S_T0}, {L_TFL}", f"v_mov_b32 v{V_MYFL}, s{S_T0}",
      f"s_and_b32 s{S_T0}, s{S_T0}, 0xfffffff0", f"v_mov_b32 v{V_FLB}, s{S_T0}")
    e(f"s_cmp_ge_u32 s{S_WV}, 4", "s_cbranch_scc1 L_roleS")

def nonce(g):
    g.e(f"s_mul_i32 s{S_NON}, s{S_EP}, 1664525", f"s_add_u32 s{S_NON}, s{S_NON}, 1013904223",
        f"s_mul_i32 s{S_NON+1}, s{S_EP}, 22695477", f"s_add_u32 s{S_NON+1}, s{S_NON+1}, 0x9e3779b9")

def frag_addr(g, dst, tmp, base_s=None, base_c=0):
    e = g.e
    e(f"v_and_b32 v{tmp}, 31, v0", f"v_lshlrev_b32 v{dst}, 7, v{tmp}", f"v_bfe_u32 v{tmp}, v0, 1, 3", f"v_lshrrev_b32 v{tmp+1}, 5, v0",
      f"v_xor_b32 v{tmp}, v{tmp}, v{tmp+1}", f"v_lshl_add_u32 v{dst}, v{tmp}, 4, v{dst}")
    if base_s is not None: e(f"v_add_u32 v{dst}, s{base_s}, v{dst}")
    if base_c: e(f"v_add_u32 v{dst}, {base_c}, v{dst}")
    for k in range(1, 4): e(f"v_xor_b32 v{dst+k}, {32*k}, v{dst}")

def make_sel(g, dst, tmp):
    e = g.e
    e(f"v_bfe_u32 v{tmp}, v0, 3, 2", f"v_and_b32 v{tmp+1}, 3, v0", f"v_lshl_add_u32 v{tmp}, v{tmp}, 2, v{tmp+1}",
      f"v_bfe_u32 v{tmp+1}, v0, 2, 1", f"v_lshrrev_b32 v{tmp+2}, 5, v0", f"v_xor_b32 v{tmp+1}, v{tmp+1}, v{tmp+2}",
      f"v_lshl_add_u32 v{tmp}, v{tmp+1}, 4, v{tmp}",
      f"v_and_b32 v{tmp+1}, 1, v0", f"v_lshlrev_b32 v{tmp+1}, 4, v{tmp+1}", f"v_mov_b32 v{tmp+2}, 0x3f80",
      f"v_lshlrev_b32 v{tmp+1}, v{tmp+1}, v{tmp+2}", f"v_lshrrev_b32 v{tmp}, 1, v{tmp}")
    for q in range(8):
        e(f"v_cmp_eq_u32 vcc, {q}, v{tmp}", f"v_cndmask_b32 v{dst+q}, 0, v{tmp+1}, vcc")

def final_preload(g, tmp):
    e = g.e
    e(f"s_lshl_b32 s{S_T0}, s{S_C}, 7", f"s_and_b32 s{S_T1}, s{S_J}, 1", f"s_lshl_b32 s{S_T1}, s{S_T1}, 6", f"s_add_u32 s{S_T0}, s{S_T0}, s{S_T1}",
      f"s_lshr_b32 s{S_T1}, s{S_WV}, 2", f"s_lshl_b32 s{S_T1}, s{S_T1}, 5", f"s_add_u32 s{S_T0}, s{S_T0}, s{S_T1}",
      f"s_lshl_b32 s{S_T1}, s{S_W}, 2", f"s_add_u32 s{S_T0}, s{S_T0}, s{S_T1}", f"s_lshl_b32 s{S_T0}, s{S_T0}, 10",
      f"s_lshr_b32 s{S_T1}, s{S_J}, 1", f"s_lshl_b32 s{S_T1}, s{S_T1}, 7")
    e(f"v_and_b32 v{tmp}, 15, v0", f"v_lshlrev_b32 v{tmp}, 3, v{tmp}", f"v_add_u32 v{tmp}, s{S_T1}, v{tmp}",
      f"v_lshrrev_b32 v5, 4, v0", f"v_lshl_add_u32 v5, v5, 10, v{tmp}", f"v_add_u32 v5, s{S_T0}, v5", f"v_add_u32 v{tmp+1}, 0x4000, v5")
    g.vmem(f"global_load_dwordx2 {vr(V_FX,2)}, v5, {sr(P_X,2)}", 'fin')
    g.vmem(f"global_load_dwordx2 {vr(V_FX+2,2)}, v{tmp+1}, {sr(P_X,2)}", 'fin')
    g.vmem(f"global_load_dwordx2 {vr(V_FX+4,2)}, v{tmp}, {sr(P_DSK,2)}", 'fin')

def part_addr(g, dst, tmp, base_s):
    e = g.e
    e(f"v_and_b32 v{tmp}, 31, v0", f"v_lshlrev_b32 v{dst}, 8, v{tmp}", f"v_and_b32 v{tmp}, 7, v0", f"v_lshrrev_b32 v{tmp+1}, 5, v0",
      f"v_xor_b32 v{tmp}, v{tmp}, v{tmp+1}", f"v_lshl_add_u32 v{dst}, v{tmp}, 4, v{dst}", f"v_add_u32 v{dst}, s{base_s}, v{dst}")
    for k in range(1, 4): e(f"v_xor_b32 v{dst+k}, {32*k}, v{dst}")

def softmax(g, p, out, tmp):
    e = g.e
    e(f"v_max3_f32 v{tmp}, v{p}, v{p+1}, v{p+2}")
    for i in range(3, 15, 2): e(f"v_max3_f32 v{tmp}, v{tmp}, v{p+i}, v{p+i+1}")
    e(f"v_max_f32 v{tmp}, v{tmp}, v{p+15}", f"v_mul_f32 v{tmp}, s{S_T3}, v{tmp}")
    for i in range(0, 16, 2):
        e(f"v_pk_fma_f32 {vr(p+i,2)}, {vr(p+i,2)}, {sr(S_T2,2)}, {vr(tmp,2)} op_sel_hi:[1,0,0]")
    for i in range(16): e(f"v_exp_f32 v{p+i}, v{p+i}")
    e(f"v_pk_add_f32 {vr(tmp,2)}, {vr(p,2)}, {vr(p+2,2)}", f"v_pk_add_f32 {vr(tmp+2,2)}, {vr(p+4,2)}, {vr(p+6,2)}")
    e(f"v_pk_add_f32 {vr(tmp,2)}, {vr(tmp,2)}, {vr(p+8,2)}", f"v_pk_add_f32 {vr(tmp+2,2)}, {vr(tmp+2,2)}, {vr(p+10,2)}")
    e(f"v_pk_add_f32 {vr(tmp,2)}, {vr(tmp,2)}, {vr(p+12,2)}", f"v_pk_add_f32 {vr(tmp+2,2)}, {vr(tmp+2,2)}, {vr(p+14,2)}")
    e(f"v_pk_add_f32 {vr(tmp,2)}, {vr(tmp,2)}, {vr(tmp+2,2)}", f"v_add_f32 v{tmp}, v{tmp}, v{tmp+1}", f"v_rcp_f32 v{tmp}, v{tmp}")
    for i in range(0, 16, 2):
        e(f"v_pk_mul_f32 {vr(p+i,2)}, {vr(p+i,2)}, {vr(tmp,2)} op_sel_hi:[1,0]")
    g.cvt16(out, p)

def sum16(g, p, tmp):
    e = g.e
    e(f"v_pk_add_f32 {vr(tmp,2)}, {vr(p,2)}, {vr(p+2,2)}", f"v_pk_add_f32 {vr(tmp+2,2)}, {vr(p+4,2)}, {vr(p+6,2)}")
    e(f"v_pk_add_f32 {vr(tmp,2)}, {vr(tmp,2)}, {vr(p+8,2)}", f"v_pk_add_f32 {vr(tmp+2,2)}, {vr(tmp+2,2)}, {vr(p+10,2)}")
    e(f"v_pk_add_f32 {vr(tmp,2)}, {vr(tmp,2)}, {vr(p+12,2)}", f"v_pk_add_f32 {vr(tmp+2,2)}, {vr(tmp+2,2)}, {vr(p+14,2)}")
    e(f"v_pk_add_f32 {vr(tmp,2)}, {vr(tmp,2)}, {vr(tmp+2,2)}", f"v_add_f32 v{tmp}, v{tmp}, v{tmp+1}")

def roleT(g):
    e = g.e; o = g.o
    X = 128
    VXO = 6
    VBO = 5
    VWO = 10
    VXA = 12
    VTR = 11
    WPA, WPB, SEL = 16, 20, 24
    ACC, RING, KP, DA, DB, PA, PB = 32, 48, 72, 80, 96, 112, 120
    e("L_roleT:")
    for s in range(8):
        e(f"s_add_u32 s{S_T0}, s{S_R0}, {s}", f"s_and_b32 s{S_T0}, s{S_T0}, 7", f"s_lshl_b32 s{S_KX+s}, s{S_T0}, 7", f"s_mul_i32 s{S_KW+s}, s{S_T0}, {64*3072}")
    e("v_lshrrev_b32 v32, 5, v0", "v_bfe_u32 v33, v0, 3, 2", "v_and_b32 v34, 7, v0", "v_lshrrev_b32 v35, 4, v0", "v_xor_b32 v34, v34, v35", "v_lshlrev_b32 v34, 4, v34")
    e("v_lshl_add_u32 v36, v32, 4, v33", f"v_lshl_add_u32 v{VXO}, v36, 10, v34")
    e(f"v_xor_b32 v{VXO+1}, 64, v{VXO}", f"v_add_u32 v{VXO+2}, {2*3072}, v{VXO}", f"v_add_u32 v{VXO+3}, {3*3072}, v{VXO+1}", f"v_add_u32 v{VXO+1}, 3072, v{VXO+1}")
    e("v_lshl_add_u32 v36, v32, 3, v33", f"v_lshl_add_u32 v{VBO}, v36, 10, v34")
    e(f"s_and_b32 s{S_T0}, s{S_W}, 1", f"s_lshl_b32 s{S_T1}, s{S_T0}, 6", f"v_xor_b32 v{VBO}, s{S_T1}, v{VBO}",
      f"s_lshl_b32 s{S_T0}, s{S_T0}, 12", f"s_lshr_b32 s{S_T1}, s{S_W}, 1", f"s_lshl_b32 s{S_T1}, s{S_T1}, 14", f"s_add_u32 s{S_T0}, s{S_T0}, s{S_T1}",
      f"s_lshl_b32 s{S_T1}, s{S_J}, 15", f"s_add_u32 s{S_T2}, s{S_T0}, s{S_T1}")
    e(f"s_lshl_b32 s{S_T0}, s{S_C}, 17", f"s_lshl_b32 s{S_T1}, s{S_W}, 15", f"s_add_u32 s{S_T3}, s{S_T0}, s{S_T1}")
    e(f"s_lshl_b32 s{S_M0B}, s{S_W}, 10", f"s_lshl_b32 s{S_M}, s{S_W}, 12")
    e("s_waitcnt lgkmcnt(0)")
    g.srd(S_X, P_X, S_T3, 2097152); g.srd(S_A, P_BRE, S_T2, 524288); g.srd(S_B, P_BIM, S_T2, 524288)
    def dma_x(s):
        e(f"s_add_u32 m0, s{S_M}, {s*16384}")
        for gg in range(4):
            g.vmem(f"buffer_load_dwordx4 v{VXO+gg}, {sr(S_X,4)}, s{S_KX+s} offen offset:{1024*gg} lds", f'x{s}')
    def dma_b(s):
        for part in range(2):
            e(f"s_add_u32 m0, s{S_M0B}, {L_BSL + (s%3)*8192 + part*4096}")
            g.vmem(f"buffer_load_dwordx4 v{VBO}, {sr(S_A if part==0 else S_B,4)}, s{S_KX+s} offen lds", f'b{s}')
    def dma_w(srd, slot, s, tag):
        e(f"s_add_u32 m0, s{S_M0B}, {TREG + slot*32768 + s*4096}")
        g.vmem(f"buffer_load_dwordx4 v{VWO}, {sr(srd,4)}, s{S_KW+s} offen lds", tag)
    dma_x(0); dma_b(0)
    e(f"s_load_dword s{S_EP}, {sr(P_WS,2)}, {WS_EPOCH}")
    dma_x(1); dma_b(1); dma_x(2)
    e(f"s_mul_i32 s{S_T0}, s{S_W}, {16*3072}", f"s_lshl_b32 s{S_T1}, s{S_J}, 6", f"s_add_u32 s{S_T0}, s{S_T0}, s{S_T1}")
    g.srd(S_WQ, P_WQKV, S_T0, 1572864); e(f"s_add_u32 s{S_T0}, s{S_T0}, 1024")
    g.srd(S_WK, P_WQKV, S_T0, 1572864); e(f"s_add_u32 s{S_T0}, s{S_T0}, 1024")
    g.srd(S_WVv, P_WQKV, S_T0, 1572864)
    g.srd(S_WS, P_WS, None, WS_SIZE)
    e(f"v_lshrrev_b32 v32, 2, v0", f"v_mul_u32_u24 v32, 3072, v32", f"v_and_b32 v33, 3, v0", f"v_lshl_add_u32 v{VWO}, v33, 4, v32")
    frag_addr(g, VXA, 32, base_s=S_M)
    e("v_lshrrev_b32 v32, 5, v0", "v_bfe_u32 v33, v0, 2, 2", "v_lshl_add_u32 v32, v32, 3, v33", "v_bfe_u32 v34, v0, 4, 1",
      f"v_lshlrev_b32 v{VTR}, 6, v32", f"v_lshl_add_u32 v{VTR}, v34, 5, v{VTR}", "v_and_b32 v35, 1, v0", f"v_lshl_add_u32 v{VTR}, v35, 4, v{VTR}",
      "v_bfe_u32 v35, v0, 1, 1", f"v_lshl_add_u32 v{VTR}, v35, 3, v{VTR}")
    e("v_lshlrev_b32 v112, 5, v32", "v_lshl_add_u32 v112, v34, 4, v112", "v_lshl_add_u32 v112, v35, 3, v112", f"v_add_u32 v112, {L_WPHI}, v112")
    e("v_lshrrev_b32 v113, 5, v0", "v_lshlrev_b32 v113, 4, v113", f"v_add_u32 v113, {L_GATE}, v113")
    make_sel(g, SEL, 32)
    e("s_waitcnt lgkmcnt(0)")
    nonce(g)
    g.arrive(0, 32)
    g.stamp(0)
    GB = 48
    tail = [(S_WK, 0, s, 'wk') for s in range(8)] + [(S_WVv, 1, s, 'wv') for s in range(8)]
    for s in range(8):
        g.waitvm(f'x{s}', f'b{s}')
        e("s_waitcnt lgkmcnt(0)", "s_barrier")
        if s == 0: g.stamp(1)
        if s == 4:
            for k in range(4): e(f"v_add_u32 v{VXA+k}, 0x10000, v{VXA+k}")
        for k in range(4):
            e(f"ds_read_b128 {vr(X+16*s+4*k,4)}, v{VXA+k} offset:{(s&3)*16384}")
            e(f"ds_read_b128 {vr(GB+16*(s&1)+4*k,4)}, v113 offset:{s*128+k*32}")
        if s == 0:
            for hd, dst in ((0, WPA), (1, WPB)):
                for i in range(2): e(f"ds_read_b64_tr_b16 {vr(dst+2*i,2)}, v112 offset:{hd*512+i*128}")
        if s > 0:
            for k in range(4): g.mfma(ACC, GB+16*((s-1)&1)+4*k, X+16*(s-1)+4*k, None if (s == 1 and k == 0) else ACC)
        if s+2 < 8: dma_b(s+2)
        if s+3 < 8: dma_x(s+3)
        nt = {5: 2, 6: 3, 7: 3}.get(s, 0)
        for _ in range(nt): dma_w(*tail.pop(0))
    e("s_waitcnt lgkmcnt(0)", "s_barrier")
    g.stamp(2)
    for k in range(4): g.mfma(ACC, GB+16+4*k, X+16*7+4*k, ACC)
    for _ in range(4): dma_w(*tail.pop(0))
    e("v_bfe_u32 v112, v0, 2, 1", "v_mul_u32_u24 v112, 0x8000, v112", "v_lshl_or_b32 v112, v112, 16, v112")
    for q in range(8): e(f"v_xor_b32 v{WPA+q}, v{WPA+q}, v112")
    e(f"s_mov_b32 s{S_T2}, {LOG2E}", f"s_mov_b32 s{S_T3}, {LOG2E | 0x80000000}")
    e("v_and_b32 v113, 31, v0", "v_lshlrev_b32 v113, 2, v113", f"s_lshl_b32 s{S_T0}, s{S_W}, 7", f"s_add_u32 s{S_T0}, s{S_T0}, {L_G}", f"v_add_u32 v113, s{S_T0}, v113")
    e(f"v_mul_f32 v114, s{S_T3}, v{ACC}", "v_exp_f32 v114, v114", "v_add_f32 v114, 1.0, v114", "v_rcp_f32 v114, v114", "ds_write_b32 v113, v114")
    def wgemm(slot, transposed, mid=None):
        D = 6
        def rd(ks):
            for i in range(2): e(f"ds_read_b64_tr_b16 {vr(RING+4*(ks%D)+2*i,2)}, v{VTR} offset:{TREG+slot*32768+ks*1024+i*256}")
        for ks in range(D-1): rd(ks)
        for ks in range(32):
            if ks+D-1 < 32: rd(ks+D-1)
            e(f"s_waitcnt lgkmcnt({2*min(D-1, 31-ks)})")
            w = RING+4*(ks%D); x = X+4*ks
            if transposed: g.mfma(ACC, w, x, None if ks == 0 else ACC)
            else: g.mfma(ACC, x, w, None if ks == 0 else ACC)
            if mid and ks in mid: mid[ks]()
    def phi(outA, outB):
        g.cvt16(KP, ACC)
        g.mfma(DA, WPA, KP); g.mfma(DB, WPB, KP+4)
        softmax(g, DA, outA, RING); softmax(g, DB, outB, RING)
    g.waitvm('wk'); g.arrive(1, 116)
    while tail: dma_w(*tail.pop(0))
    g.rwait(1, 116)
    g.stamp(3)
    wgemm(0, True)
    g.arrive(2, 116)
    g.stamp(4)
    g.cvt16(KP, ACC)
    g.mfma(DA, WPA, KP); g.mfma(DB, WPB, KP+4)
    g.rwait(2, 116)
    for s in range(8): dma_w(S_WQ, 0, s, 'wq')
    softmax(g, DA, PA, RING); softmax(g, DB, PB, RING)
    g.mfma(DA, PA, SEL); g.mfma(DB, PB, SEL); g.mfma(DA, PA+4, SEL+4, DA); g.mfma(DB, PB+4, SEL+4, DB)
    g.waitvm('wv'); g.arrive(3, RING)
    sum16(g, DA, RING); sum16(g, DB, RING+4)
    g.cvt16(PA, DA); g.cvt16(PB, DB)
    e(f"v_permlane32_swap_b32 v{RING}, v{RING+4}", f"v_add_f32 v{RING}, v{RING}, v{RING+4}")
    e(f"s_lshl_b32 s{S_T0}, s{S_W}, 8", f"s_add_u32 s{S_T0}, s{S_T0}, {L_ZR}", f"v_lshl_add_u32 v{RING+1}, v0, 2, s{S_T0}", f"ds_write_b32 v{RING+1}, v{RING}")
    g.rwait(3, RING)
    g.stamp(5)
    wgemm(1, False)
    g.cvt16(KP, ACC)
    g.mfma(DA, PA, KP); g.mfma(DB, PB, KP); g.mfma(DA, PA+4, KP+4, DA); g.mfma(DB, PB+4, KP+4, DB)
    e(f"s_mov_b32 s{S_M}, 0xffff", f"s_mov_b32 s{S_M+1}, 0xffff")
    e(f"s_add_u32 s{S_T0}, s{S_M0B}, {L_KVR}", f"v_add_u32 v{RING}, s{S_T0}, v{V_L16}")
    e(f"s_lshl_b32 s{S_T0}, s{S_W}, 12", f"s_add_u32 s{S_T0}, s{S_T0}, {L_KVR}", f"v_add_u32 v{RING+1}, s{S_T0}, v{V_L16}")
    e(f"s_lshl_b32 s{S_T0}, s{S_W}, 6", f"s_add_u32 s{S_T0}, s{S_T0}, {L_ZR}", f"v_and_b32 v{RING+3}, 15, v0", f"v_lshlrev_b32 v{RING+3}, 2, v{RING+3}", f"v_add_u32 v{RING+2}, s{S_T0}, v{RING+3}")
    S_KVG, S_ZG, S_KVP, S_ZP = S_KX, S_KX+1, S_KX+2, S_KX+3
    e(f"s_lshl_b32 s{S_T0}, s{S_J}, 2", f"s_add_u32 s{S_T0}, s{S_T0}, s{S_W}", f"s_lshl_b32 s{S_KVG}, s{S_T0}, 14", f"s_add_u32 s{S_KVG}, s{S_KVG}, {WS_KV}",
      f"s_lshl_b32 s{S_ZG}, s{S_T0}, 11", f"s_add_u32 s{S_ZG}, s{S_ZG}, {WS_Z}",
      f"s_lshl_b32 s{S_T0}, s{S_C}, 10", f"s_add_u32 s{S_KVP}, s{S_KVG}, s{S_T0}", f"s_lshl_b32 s{S_T0}, s{S_C}, 7", f"s_add_u32 s{S_ZP}, s{S_ZG}, s{S_T0}")
    for q in range(4):
        for i in range(4): e(f"v_cndmask_b32 v{DA+4*q+i}, v{DB+4*q+i}, v{DA+4*q+i}, {sr(S_M,2)}")
        e(f"ds_write_b128 v{RING}, {vr(DA+4*q,4)} offset:{q*4096}")
    g.waitvm('wq'); g.arrive(4, RING+4); g.rwait(4, RING+4)
    for q in range(4): e(f"ds_read_b128 {vr(DB+4*q,4)}, v{RING+1} offset:{q*1024}")
    for q in range(4): e(f"ds_read_b32 v{KP+q}, v{RING+2} offset:{q*256}")
    e("s_waitcnt lgkmcnt(4)")
    e(f"v_pk_add_f32 {vr(DB,2)}, {vr(DB,2)}, {vr(DB+4,2)}", f"v_pk_add_f32 {vr(DB+2,2)}, {vr(DB+2,2)}, {vr(DB+6,2)}",
      f"v_pk_add_f32 {vr(DB+8,2)}, {vr(DB+8,2)}, {vr(DB+12,2)}", f"v_pk_add_f32 {vr(DB+10,2)}, {vr(DB+10,2)}, {vr(DB+14,2)}",
      f"v_pk_add_f32 {vr(DB,2)}, {vr(DB,2)}, {vr(DB+8,2)}", f"v_pk_add_f32 {vr(DB+2,2)}, {vr(DB+2,2)}, {vr(DB+10,2)}")
    g.vmem(f"buffer_store_dwordx4 {vr(DB,4)}, v{V_L16}, {sr(S_WS,4)}, s{S_KVP} offen sc1", 'kvst')
    e("s_waitcnt lgkmcnt(0)", f"v_pk_add_f32 {vr(KP,2)}, {vr(KP,2)}, {vr(KP+2,2)}", f"v_add_f32 v{KP}, v{KP}, v{KP+1}", "s_mov_b64 exec, 0xffff")
    g.vmem(f"buffer_store_dword v{KP}, v{RING+3}, {sr(S_WS,4)}, s{S_ZP} offen sc1", 'kvst')
    e("s_mov_b64 exec, -1")
    g.stamp(6)
    def kvflag():
        g.waitvm('kvst'); g.setflag(1, 6)
    wgemm(0, True, mid={o.get('kvflag_ks', 24): kvflag})
    g.arrive(5, 6)
    g.stamp(7)
    g.cvt16(KP, ACC)
    g.mfma(DA, WPA, KP); g.mfma(DB, WPB, KP+4)
    e(f"s_lshl_b32 s{S_T0}, s{S_W}, 17", f"s_lshr_b32 s{S_T1}, s{S_J}, 1", f"s_lshl_b32 s{S_T1}, s{S_T1}, 7", f"s_add_u32 s{S_T0}, s{S_T0}, s{S_T1}")
    g.srd(S_A, P_WO, S_T0, 524288)
    e(f"v_lshrrev_b32 v{VXO}, 3, v0", f"v_lshlrev_b32 v{VXO}, 10, v{VXO}", f"v_and_b32 v{VXO+1}, 7, v0", f"v_bfe_u32 v{VXO+2}, v0, 4, 1",
      f"v_lshlrev_b32 v{VXO+2}, 2, v{VXO+2}", f"v_xor_b32 v{VXO+1}, v{VXO+1}, v{VXO+2}", f"v_lshl_add_u32 v{VXO}, v{VXO+1}, 4, v{VXO}")
    for k in range(1, 4): e(f"v_add_u32 v{VXO+k}, {7168*k}, v{VXO}")
    e(f"s_lshl_b32 s{S_KX+4}, s{S_W}, 14")
    softmax(g, DA, PA, RING)
    g.rwait(5, RING)
    def dma_wo(q4):
        e(f"s_add_u32 m0, s{S_KX+4}, {TREG + q4*4096}", f"s_mov_b32 s{S_T0}, {q4*32768}")
        for k in range(4): g.vmem(f"buffer_load_dwordx4 v{VXO+k}, {sr(S_A,4)}, s{S_T0} offen offset:{1024*k} lds", 'wo')
    wo_early = o.get('wo_early', 0)
    for q4 in range(wo_early): dma_wo(q4)
    softmax(g, DB, PB, RING)
    g.stamp(8)
    e(f"s_lshl_b32 s{S_T0}, s{S_J}, 7", f"s_lshl_b32 s{S_T1}, s{S_W}, 3", f"s_add_u32 s{S_T0}, s{S_T0}, s{S_T1}", f"s_add_u32 s{S_T0}, s{S_T0}, {WS_FLAGS+8}",
      f"v_lshlrev_b32 v32, 11, v0", f"v_add_u32 v32, s{S_T0}, v32")
    e("v_lshrrev_b32 v100, 4, v0", "v_lshlrev_b32 v100, 7, v100", "v_and_b32 v101, 15, v0", "v_lshl_add_u32 v100, v101, 2, v100")
    g.poll(32, 16, 34)
    g.stamp(9)
    for i in range(4): g.vmem(f"buffer_load_dword v{96+i}, v100, {sr(S_WS,4)}, s{S_ZG} offen offset:{512*i} sc1", 'zg')
    for c4 in range(4):
        if c4: e(f"s_add_u32 s{S_KVG}, s{S_KVG}, 4096")
        for k in range(4): g.vmem(f"buffer_load_dwordx4 {vr(32+16*c4+4*k,4)}, v{V_L16}, {sr(S_WS,4)}, s{S_KVG} offen offset:{1024*k} sc1", f'kg{c4}')
    for q4 in range(wo_early, 4): dma_wo(q4)
    e(f"s_lshl_b32 s{S_T0}, s{S_W}, 3", f"s_add_u32 s{S_T0}, s{S_T0}, {L_KVD}", f"v_lshlrev_b32 v106, 5, v0", f"v_add_u32 v102, s{S_T0}, v106", f"v_add_u32 v106, {L_KVD}, v106")
    e("v_bfe_u32 v103, v0, 2, 1", "v_lshlrev_b32 v103, 5, v103", "v_bfe_u32 v107, v0, 3, 1", "v_lshl_add_u32 v103, v107, 3, v103", "v_and_b32 v107, 3, v0", "v_lshl_add_u32 v103, v107, 1, v103",
      f"s_lshr_b32 s{S_T0}, s{S_W}, 1", f"s_lshl_b32 s{S_T0}, s{S_T0}, 6", f"s_and_b32 s{S_T1}, s{S_W}, 1", f"s_lshl_b32 s{S_T1}, s{S_T1}, 4", f"s_add_u32 s{S_T0}, s{S_T0}, s{S_T1}",
      f"s_add_u32 s{S_T0}, s{S_T0}, {L_ZD}", f"v_add_u32 v103, s{S_T0}, v103")
    e("v_and_b32 v107, 32, v0", f"v_add_u32 v107, {L_ZD}, v107", f"v_cndmask_b32 v104, v107, v106, {sr(S_M,2)}", "v_add_u32 v107, 64, v107", f"v_cndmask_b32 v105, v106, v107, {sr(S_M,2)}")
    g.waitvm('zg')
    e("v_pk_add_f32 v[96:97], v[96:97], v[98:99]", "v_add_f32 v96, v96, v97", "v_mov_b32 v97, v96", "v_permlane16_swap_b32 v96, v97", "v_add_f32 v96, v96, v97",
      "v_mov_b32 v97, v96", "v_permlane32_swap_b32 v96, v97", "v_add_f32 v96, v96, v97", "v_cvt_pk_bf16_f32 v96, v96, v96", "s_mov_b64 exec, 0xffff", "ds_write_b16 v103, v96", "s_mov_b64 exec, -1")
    for c4 in range(4):
        g.waitvm(f'kg{c4}')
        for k in range(4):
            if c4 == 0 and k == 0: continue
            r = 32+16*c4+4*k
            e(f"v_pk_add_f32 v[32:33], v[32:33], {vr(r,2)}", f"v_pk_add_f32 v[34:35], v[34:35], {vr(r+2,2)}")
    e("v_cvt_pk_bf16_f32 v32, v32, v33", "v_cvt_pk_bf16_f32 v33, v34, v35", "ds_write_b64 v102, v[32:33]")
    g.arrive(6, 36); g.rwait(6, 36)
    g.stamp(10)
    for a in range(2): e(f"ds_read_b128 {vr(32+4*a,4)}, v104 offset:{16*a}", f"ds_read_b128 {vr(40+4*a,4)}, v105 offset:{16*a}")
    e(f"s_lshl_b32 s{S_T0}, s{S_C}, 2", f"s_add_u32 s{S_T0}, s{S_T0}, s{S_W}", f"s_lshl_b32 s{S_T0}, s{S_T0}, 4", f"s_add_u32 s{S_T0}, s{S_T0}, s{S_J}",
      f"s_lshl_b32 s{S_T0}, s{S_T0}, 11", f"s_add_u32 s{S_KX+5}, s{S_T0}, {WS_A2O}", f"s_mov_b32 s{S_T1}, 0x358637bd")
    e("s_waitcnt lgkmcnt(2)"); g.mfma(48, 32, PA); g.mfma(64, 40, PB)
    e("s_waitcnt lgkmcnt(0)"); g.mfma(48, 36, PA+4, 48); g.mfma(64, 44, PB+4, 64)
    for hd, num, den in ((0, 48, 56), (1, 72, 64)):
        e(f"v_add_f32 v{den}, s{S_T1}, v{den}", f"v_rcp_f32 v{den}, v{den}")
        for i in range(0, 8, 2): e(f"v_pk_mul_f32 {vr(num+i,2)}, {vr(num+i,2)}, {vr(den,2)} op_sel_hi:[1,0]")
        g.cvt16(80+4*hd, num, 8)
        g.vmem(f"buffer_store_dwordx4 {vr(80+4*hd,4)}, v{V_L16}, {sr(S_WS,4)}, s{S_KX+5} offen offset:{1024*hd} sc1", 'ost')
    g.stamp(11)
    g.waitvm('wo'); g.arrive(7, 36)
    e("v_lshrrev_b32 v32, 5, v0", "v_bfe_u32 v33, v0, 2, 2", "v_lshl_add_u32 v32, v32, 3, v33", "v_lshlrev_b32 v32, 7, v32", "v_bfe_u32 v33, v0, 3, 1", "v_lshl_add_u32 v32, v33, 6, v32",
      "v_bfe_u32 v33, v0, 4, 1", "v_lshl_add_u32 v32, v33, 5, v32", "v_and_b32 v33, 3, v0", "v_lshl_add_u32 v32, v33, 3, v32",
      f"s_lshr_b32 s{S_T0}, s{S_W}, 1", f"s_lshl_b32 s{S_T0}, s{S_T0}, 15", f"v_add_u32 v32, s{S_T0}, v32", "v_xor_b32 v33, 64, v32")
    g.waitvm('ost'); g.setflag(9, 34)
    final_preload(g, 34)
    g.rwait(7, 36)
    for ks in range(16):
        for ch in range(2):
            for i in range(2): e(f"ds_read_b64_tr_b16 {vr(X+8*ks+4*ch+2*i,2)}, v{32+ch} offset:{TREG+ks*2048+i*512}")
    e(f"s_and_b32 s{S_T0}, s{S_J}, 1", f"s_lshl_b32 s{S_T0}, s{S_T0}, 1", f"s_and_b32 s{S_T1}, s{S_W}, 1", f"s_add_u32 s{S_T0}, s{S_T0}, s{S_T1}",
      f"s_lshr_b32 s{S_T1}, s{S_W}, 1", f"s_lshl_b32 s{S_T1}, s{S_T1}, 3",
      f"s_lshl_b32 s{S_KX}, s{S_C}, 2", f"s_add_u32 s{S_KX}, s{S_KX}, s{S_T0}", f"s_lshl_b32 s{S_KX}, s{S_KX}, 4", f"s_add_u32 s{S_KX}, s{S_KX}, s{S_T1}",
      f"s_lshl_b32 s{S_KX}, s{S_KX}, 11", f"s_add_u32 s{S_KX}, s{S_KX}, {WS_A2O}",
      f"s_lshl_b32 s{S_KX+1}, s{S_C}, 4", f"s_add_u32 s{S_KX+1}, s{S_KX+1}, s{S_T1}", f"s_lshl_b32 s{S_KX+1}, s{S_KX+1}, 7", f"s_lshl_b32 s{S_T0}, s{S_T0}, 3",
      f"s_add_u32 s{S_KX+1}, s{S_KX+1}, s{S_T0}", f"s_add_u32 s{S_KX+1}, s{S_KX+1}, {WS_FLAGS+72}", f"v_lshlrev_b32 v34, 7, v0", f"v_add_u32 v34, s{S_KX+1}, v34")
    e(f"s_lshl_b32 s{S_T0}, s{S_W}, 13")
    part_addr(g, 6, 36, S_T0)
    e("s_waitcnt lgkmcnt(0)")
    g.arrive(8, 36)
    g.stamp(12)
    g.poll(34, 8, 36)
    g.stamp(13)
    for k4 in range(4):
        if k4: e(f"s_add_u32 s{S_KX}, s{S_KX}, 4096")
        for k in range(4): g.vmem(f"buffer_load_dwordx4 {vr(32+16*k4+4*k,4)}, v{V_L16}, {sr(S_WS,4)}, s{S_KX} offen offset:{1024*k} sc1", f'a{4*k4+k}')
    g.rwait(8, 96)
    for ks in range(16):
        g.waitvm(f'a{ks}')
        for ch in range(2): g.mfma(96+16*ch, X+8*ks+4*ch, 32+4*ks, None if ks == 0 else 96+16*ch)
    g.stamp(14)
    for ch in range(2):
        for q in range(4): e(f"ds_write_b128 v{6+q}, {vr(96+16*ch+4*q,4)} offset:{TREG+ch*128}")
    e("s_branch L_final")

def roleS(g):
    e = g.e; o = g.o
    g.vm = []
    VXA, VBA = 12, 6
    LR, LI, L16R, L16I, LSR, LSI, W0R, W0I, W1R, W1I, CR, CI = range(16, 28)
    PSR, PSI, ER, EI = 28, 29, 30, 31
    VE0, VE1, VSEGR, VN8 = 32, 33, 34, 35
    SEL = 40
    UR, UI, RP = 48, 64, 80
    T = 96
    FB = 128
    e("L_roleS:")
    e(f"s_lshl_b32 s{S_M}, s{S_W}, 12")
    e("v_and_b32 v96, 19, v0", "v_bfe_u32 v97, v0, 2, 1", "v_lshl_add_u32 v96, v97, 3, v96", "v_bfe_u32 v97, v0, 3, 1", "v_lshl_add_u32 v96, v97, 2, v96",
      f"s_lshl_b32 s{S_T0}, s{S_J}, 5", f"v_add_u32 v96, s{S_T0}, v96", "v_lshlrev_b32 v96, 1, v96")
    e(f"s_lshl_b32 s{S_T0}, s{S_R0}, 3", f"v_add_u32 v97, s{S_T0}, v0", "v_and_b32 v97, 63, v97", "v_lshlrev_b32 v97, 4, v97")
    e("s_waitcnt lgkmcnt(0)")
    e(f"s_load_dword s{S_EP}, {sr(P_WS,2)}, {WS_EPOCH}")
    g.vmem(f"global_load_ushort v100, v96, {sr(P_LDT,2)}", 'par')
    g.vmem(f"global_load_ushort v101, v96, {sr(P_LRE,2)}", 'par')
    g.vmem(f"global_load_ushort v102, v96, {sr(P_LIM,2)}", 'par')
    g.srd(S_X, P_GATE, None, 1024)
    e(f"s_lshl_b32 s{S_T0}, s{S_J}, 10"); g.srd(S_WK, P_WPHI, S_T0, 16384)
    e(f"s_cmp_lg_u32 s{S_W}, 0", "s_cbranch_scc1 L_s1", f"s_mov_b32 m0, {L_GATE}", "s_nop 0", f"buffer_load_dwordx4 v97, {sr(S_X,4)}, 0 offen lds", "L_s1:")
    e(f"s_cmp_lg_u32 s{S_W}, 1", "s_cbranch_scc1 L_s2", f"s_mov_b32 m0, {L_WPHI}", "s_nop 0", f"buffer_load_dwordx4 v{V_L16}, {sr(S_WK,4)}, 0 offen lds", "L_s2:")
    if o.get('codepre', 1):
        e(f"s_cmp_lg_u32 s{S_W}, 2", "s_cbranch_scc1 L_s3", f"s_getpc_b64 {sr(S_KX,2)}", "L_pc:",
          f"s_sub_u32 s{S_KX}, s{S_KX}, L_pc-{KNAME}_kernel", f"s_subb_u32 s{S_KX+1}, s{S_KX+1}, 0",
          f"s_bfe_u32 s{S_T0}, s2, 0x40003", f"s_lshl_b32 s{S_T0}, s{S_T0}, 11", f"v_lshlrev_b32 v98, 7, v0", f"v_add_u32 v98, s{S_T0}, v98",
          f"v_min_u32 v98, L_end-{KNAME}_kernel, v98", "s_mov_b64 exec, 0xffff", f"global_load_dword v99, v98, {sr(S_KX,2)}", "s_mov_b64 exec, -1", "L_s3:")
    g.srd(S_WS, P_WS, None, WS_SIZE)
    frag_addr(g, VBA, 104, base_c=L_BSL)
    e(f"s_sub_u32 s{S_T0}, s{S_M}, {L_BSL}")
    for k in range(4): e(f"v_add_u32 v{VXA+k}, s{S_T0}, v{VBA+k}")
    make_sel(g, SEL, 104)
    e(f"s_lshl_b32 s{S_T0}, s{S_W}, 9", f"s_add_u32 s{S_T0}, s{S_T0}, {L_SEGZ}", f"v_lshl_add_u32 v{VSEGR}, v0, 3, s{S_T0}", "v_mov_b32 v104, 0", "v_mov_b32 v105, 0")
    e("s_waitcnt lgkmcnt(0)")
    e(f"ds_write_b64 v{VSEGR}, v[104:105]")
    nonce(g)
    g.arrive(0, 104)
    e(f"v_and_b32 v{VN8}, 31, v0", f"v_lshlrev_b32 v{VN8}, 3, v{VN8}")
    e("v_lshrrev_b32 v106, 5, v0", f"s_lshl_b32 s{S_T0}, s{S_W}, 2", f"v_add_u32 v107, s{S_T0}, v106", "v_add_u32 v108, 2, v107")
    e(f"s_lshl_b32 s{S_T0}, s{S_J}, 13", f"s_add_u32 s{S_T0}, s{S_T0}, {WS_E}", f"v_lshl_add_u32 v109, v{VN8}, 1, s{S_T0}", "v_mov_b32 v110, 0x7ffffff0")
    M0, M1 = S_KX+2, S_KX+4
    for i, (cp, m, d) in enumerate(((107, M0, VE0), (108, M1, VE1))):
        e(f"v_cmp_gt_u32 {sr(m,2)}, s{S_C}, v{cp}", f"v_lshl_add_u32 v{d}, v{cp}, 9, v109", f"v_cndmask_b32 v{d}, v110, v{d}, {sr(m,2)}")
        e(f"v_sub_u32 v{cp}, s{S_C}, v{cp}", f"v_add_u32 v{cp}, -1, v{cp}", f"v_max_i32 v{cp}, 0, v{cp}", f"v_lshlrev_b32 v{cp}, 7, v{cp}", f"v_cvt_f32_u32 v{cp}, v{cp}")
    e(f"s_lshl_b32 s{S_T0}, s{S_W}, 1", f"v_add_u32 v106, s{S_T0}, v106", "v_lshlrev_b32 v106, 4, v106", "v_cvt_f32_u32 v106, v106")
    e(f"s_mov_b32 s{S_T2}, {LOG2E}")
    g.waitvm0()
    e("v_lshlrev_b32 v100, 16, v100", "v_lshlrev_b32 v101, 16, v101", "v_lshlrev_b32 v102, 16, v102")
    e(f"v_mul_f32 v100, s{S_T2}, v100", "v_exp_f32 v100, v100", "v_cvt_pk_bf16_f32 v100, v100, v100", "v_lshlrev_b32 v100, 16, v100")
    e("v_mul_f32 v103, v100, v101", f"v_mul_f32 v103, s{S_T2}, v103", "v_mul_f32 v104, v100, v102", "v_mul_f32 v104, 0.15915494, v104")
    def cpow(dr, di, n):
        if n is None: e("v_exp_f32 v111, v103", "v_rndne_f32 v113, v104", "v_sub_f32 v112, v104, v113")
        else: e(f"v_mul_f32 v111, {n}, v103", f"v_mul_f32 v112, {n}, v104", "v_exp_f32 v111, v111", "v_rndne_f32 v113, v112", "v_sub_f32 v112, v112, v113")
        e(f"v_cos_f32 v{dr}, v112", f"v_sin_f32 v{di}, v112", f"v_mul_f32 v{dr}, v111, v{dr}", f"v_mul_f32 v{di}, v111, v{di}")
    cpow(LR, LI, None); cpow(L16R, L16I, "0x41800000"); cpow(LSR, LSI, "v106"); cpow(W0R, W0I, "v107"); cpow(W1R, W1I, "v108")
    e(f"v_add_f32 v111, -1.0, v{LR}", "v_mul_f32 v112, v101, v101", "v_fmac_f32 v112, v102, v102", "v_rcp_f32 v112, v112",
      f"v_mul_f32 v{CR}, v111, v101", f"v_fmac_f32 v{CR}, v{LI}, v102", f"v_mul_f32 v{CI}, v{LI}, v101", f"v_fma_f32 v{CI}, -v111, v102, v{CI}",
      "v_add_f32 v112, v112, v112", f"v_mul_f32 v{CR}, v{CR}, v112", f"v_mul_f32 v{CI}, v{CI}, v112")
    g.stamp(0)
    def mm(s):
        b = FB+48*(s&1)
        for k in range(4):
            first = (s == 0 and k == 0)
            g.mfma(UR, b+12*k, b+12*k+4, None if first else UR); g.mfma(UI, b+12*k, b+12*k+8, None if first else UI)
    for s in range(8):
        e("s_waitcnt lgkmcnt(0)", "s_barrier")
        if s == 0: g.stamp(1)
        if s == 4:
            for k in range(4): e(f"v_add_u32 v{VXA+k}, 0x10000, v{VXA+k}")
        b = FB+48*(s&1)
        for k in range(4):
            e(f"ds_read_b128 {vr(b+12*k,4)}, v{VXA+k} offset:{(s&3)*16384}",
              f"ds_read_b128 {vr(b+12*k+4,4)}, v{VBA+k} offset:{(s%3)*8192}",
              f"ds_read_b128 {vr(b+12*k+8,4)}, v{VBA+k} offset:{(s%3)*8192+4096}")
        if s > 0: mm(s-1)
    e("s_waitcnt lgkmcnt(0)", "s_barrier")
    mm(7)
    g.stamp(2)
    e(f"s_lshr_b32 s{S_T0}, s{S_J}, 1", f"s_lshl_b32 s{S_T0}, s{S_T0}, 16", f"s_lshl_b32 s{S_T1}, s{S_W}, 8", f"s_add_u32 s{S_T0}, s{S_T0}, s{S_T1}")
    g.srd(S_A, P_CRE, S_T0, 524288); g.srd(S_B, P_CIM, S_T0, 524288)
    e(f"s_lshl_b32 s{S_M0B}, s{S_W}, 14", f"s_add_u32 s{S_M0B}, s{S_M0B}, {SREG}", f"s_sub_u32 s{S_T0}, s{S_M0B}, {L_BSL}")
    for k in range(4): e(f"v_add_u32 v{VBA+k}, s{S_T0}, v{VBA+k}")
    VCO = VXA
    e(f"v_lshrrev_b32 v{VCO}, 3, v0", f"v_lshlrev_b32 v{VCO}, 10, v{VCO}", f"v_and_b32 v{T}, 7, v0", f"v_lshrrev_b32 v{T+1}, 4, v0", f"v_xor_b32 v{T}, v{T}, v{T+1}",
      f"v_lshl_add_u32 v{VCO}, v{T}, 4, v{VCO}", f"v_xor_b32 v{VCO+1}, 64, v{VCO}", f"v_add_u32 v{VCO+2}, {2*7168}, v{VCO}", f"v_add_u32 v{VCO+3}, {3*7168}, v{VCO+1}", f"v_add_u32 v{VCO+1}, 7168, v{VCO+1}")
    def dma_c(pc):
        part, kh2 = pc & 1, pc >> 1
        for q4 in range(2):
            e(f"s_add_u32 m0, s{S_M0B}, {(pc&1)*8192 + q4*4096}", f"s_mov_b32 s{S_T0}, {kh2*128 + q4*32768}")
            for k in range(4): g.vmem(f"buffer_load_dwordx4 v{VCO+k}, {sr(S_A if part == 0 else S_B,4)}, s{S_T0} offen offset:{1024*k} lds", f'c{pc}')
    def creg(jj, part, a, ch): return FB + 4*(((jj*2+part)*2+a)*2+ch)
    def read_c(pc):
        part, kh2 = pc & 1, pc >> 1
        for ks in range(4):
            for ch in range(2): e(f"ds_read_b128 {vr(creg(2*kh2+(ks>>1), part, ks&1, ch),4)}, v{VBA+ks} offset:{(pc&1)*8192+ch*4096}")
    pr, pi = UR, UI
    for t in range(1, 16):
        nr, ni = (ER, EI) if t & 1 else (T, T+1)
        e(f"v_fma_f32 v{nr}, v{LR}, v{pr}, v{UR+t}", f"v_fma_f32 v{ni}, v{LR}, v{pi}, v{UI+t}", f"v_fma_f32 v{nr}, -v{LI}, v{pi}, v{nr}", f"v_fma_f32 v{ni}, v{LI}, v{pr}, v{ni}")
        pr, pi = nr, ni
    e(f"ds_write_b64 v{VSEGR}, {vr(ER,2)} offset:{L_SEG-L_SEGZ}")
    g.arrive(1, T); g.rwait(1, T)
    for k in range(7): e(f"ds_read_b64 {vr(T+2*k,2)}, v{VSEGR} offset:{L_SEG-L_SEGZ-(7-k)*256}")
    e(f"s_lshl_b32 s{S_T0}, s{S_J}, 4", f"s_add_u32 s{S_T0}, s{S_T0}, s{S_C}", f"s_lshl_b32 s{S_T0}, s{S_T0}, 9", f"s_add_u32 s{S_T1}, s{S_T0}, {WS_E}",
      f"v_mov_b32 v{T+18}, s{S_NON}", f"v_mov_b32 v{T+19}, s{S_NON+1}", f"v_lshlrev_b32 v{T+20}, 1, v{VN8}")
    def cmac(dr, di, ar, ai, br, bi, cr, ci):
        e(f"v_fma_f32 v{dr}, v{ar}, v{br}, v{cr}", f"v_fma_f32 v{di}, v{ar}, v{bi}, v{ci}", f"v_fma_f32 v{dr}, -v{ai}, v{bi}, v{dr}", f"v_fma_f32 v{di}, v{ai}, v{br}, v{di}")
    for k in range(1, 7):
        e(f"s_waitcnt lgkmcnt({6-k})")
        d = (PSR, PSI) if k == 6 else (T+2*k, T+2*k+1)
        cmac(d[0], d[1], L16R, L16I, T+2*k-2, T+2*k-1, T+2*k, T+2*k+1)
    cmac(T+16, T+17, L16R, L16I, PSR, PSI, ER, EI)
    e(f"s_cmp_lg_u32 s{S_W}, 3", "s_cbranch_scc1 L_s4", "s_mov_b32 exec_lo, 0",
      f"buffer_store_dwordx4 {vr(T+16,4)}, v{T+20}, {sr(S_WS,4)}, s{S_T1} offen sc1", "s_mov_b64 exec, -1", "L_s4:")
    g.stamp(3)
    for t in range(16):
        e(f"v_mul_f32 v{RP+t}, v{CR}, v{UR+t}", f"v_fma_f32 v{RP+t}, -v{CI}, v{UI+t}, v{RP+t}", f"v_mul_f32 v{UI+t}, -v{CR}, v{UI+t}", f"v_fma_f32 v{UI+t}, -v{CI}, v{UR+t}, v{UI+t}")
    c_early = o.get('c_early', 0)
    for pc in range(c_early): dma_c(pc)
    l = g.lab('ep'); d = g.lab('ed')
    e(f"s_mov_b32 s{S_T0}, {o.get('timeout', 200000)}", l+":",
      f"buffer_load_dwordx4 {vr(T,4)}, v{VE0}, {sr(S_WS,4)}, 0 offen sc1", f"buffer_load_dwordx4 {vr(T+4,4)}, v{VE1}, {sr(S_WS,4)}, 0 offen sc1",
      f"s_sub_u32 s{S_T0}, s{S_T0}, 1", f"s_cbranch_scc1 {d}", "s_waitcnt vmcnt(0)",
      f"v_cmp_ne_u64 vcc, {sr(S_NON,2)}, {vr(T+2,2)}", f"v_cmp_ne_u64 {sr(S_M,2)}, {sr(S_NON,2)}, {vr(T+6,2)}",
      f"s_and_b64 vcc, vcc, {sr(M0,2)}", f"s_and_b64 {sr(S_M,2)}, {sr(S_M,2)}, {sr(M1,2)}", f"s_or_b64 vcc, vcc, {sr(S_M,2)}", f"s_cbranch_scc1 {l}", d+":")
    g.waitvm0()
    g.stamp(4)
    for pc in range(c_early, 2): dma_c(pc)
    e(f"v_mul_f32 v{T+8}, v{W0R}, v{T}", f"v_mul_f32 v{T+9}, v{W0R}, v{T+1}", f"v_fma_f32 v{T+8}, -v{W0I}, v{T+1}, v{T+8}", f"v_fma_f32 v{T+9}, v{W0I}, v{T}, v{T+9}")
    cmac(T+8, T+9, W1R, W1I, T+4, T+5, T+8, T+9)
    e(f"ds_write_b64 v{VSEGR}, {vr(T+8,2)} offset:{L_HP-L_SEGZ}", f"v_add_u32 v{VN8}, {L_HP}, v{VN8}")
    g.arrive(2, T); g.rwait(2, T)
    for k in range(8): e(f"ds_read_b64 {vr(T+2*k,2)}, v{VN8} offset:{k*256}")
    e(f"s_lshl_b32 s{S_T0}, s{S_C}, 2", f"s_add_u32 s{S_T0}, s{S_T0}, s{S_W}", f"s_lshl_b32 s{S_T0}, s{S_T0}, 4", f"s_add_u32 s{S_T0}, s{S_T0}, s{S_J}",
      f"s_lshl_b32 s{S_T0}, s{S_T0}, 12", f"s_add_u32 s{S_KX}, s{S_T0}, {WS_A2H}")
    for k in range(1, 8):
        e(f"s_waitcnt lgkmcnt({7-k})", f"v_add_f32 v{T}, v{T}, v{T+2*k}", f"v_add_f32 v{T+1}, v{T+1}, v{T+2*k+1}")
    cmac(PSR, PSI, LSR, LSI, T, T+1, PSR, PSI)
    e(f"v_mul_f32 v{ER}, v{CR}, v{PSR}", f"v_fma_f32 v{ER}, -v{CI}, v{PSI}, v{ER}", f"v_mul_f32 v{EI}, -v{CR}, v{PSI}", f"v_fma_f32 v{EI}, -v{CI}, v{PSR}, v{EI}")
    pr, pj = ER, EI
    for t in range(16):
        e(f"v_fmac_f32 v{RP+t}, v{LR}, v{pr}", f"v_fmac_f32 v{UI+t}, v{LR}, v{pj}", f"v_fmac_f32 v{RP+t}, v{LI}, v{pj}", f"v_fma_f32 v{UI+t}, -v{LI}, v{pr}, v{UI+t}")
        pr, pj = RP+t, UI+t
    g.cvt16(T, RP); g.cvt16(T+8, UI)
    g.mfma(48, T, SEL); g.mfma(64, T+8, SEL); g.mfma(48, T+4, SEL+4, 48); g.mfma(64, T+12, SEL+4, 64)
    for f in range(4):
        g.cvt16(T+16+4*f, 48+8*f, 8)
        g.vmem(f"buffer_store_dwordx4 {vr(T+16+4*f,4)}, v{V_L16}, {sr(S_WS,4)}, s{S_KX} offen offset:{1024*f} sc1", 'hst')
    g.stamp(5)
    g.waitvm('c0'); read_c(0)
    g.waitvm('c1'); e("s_waitcnt lgkmcnt(0)"); read_c(1); dma_c(2)
    e("s_waitcnt lgkmcnt(0)"); dma_c(3)
    g.waitvm('hst'); g.setflag(5, 16)
    g.stamp(6)
    e(f"s_and_b32 s{S_T0}, s{S_J}, 1", f"s_lshl_b32 s{S_T0}, s{S_T0}, 1", f"s_lshl_b32 s{S_T1}, s{S_W}, 2",
      f"s_lshl_b32 s{S_KX}, s{S_C}, 2", f"s_add_u32 s{S_KX}, s{S_KX}, s{S_T0}", f"s_lshl_b32 s{S_KX}, s{S_KX}, 4", f"s_add_u32 s{S_KX}, s{S_KX}, s{S_T1}",
      f"s_lshl_b32 s{S_KX}, s{S_KX}, 12", f"s_add_u32 s{S_KX}, s{S_KX}, {WS_A2H}")
    for k in range(1, 8): e(f"s_add_u32 s{S_KX+k}, s{S_KX}, {(k>>1)*4096 + (k&1)*65536}")
    e(f"s_lshl_b32 s{S_T2}, s{S_C}, 4", f"s_add_u32 s{S_T2}, s{S_T2}, s{S_T1}", f"s_lshl_b32 s{S_T2}, s{S_T2}, 7", f"s_lshl_b32 s{S_T0}, s{S_T0}, 3",
      f"s_add_u32 s{S_T2}, s{S_T2}, s{S_T0}", f"s_add_u32 s{S_T2}, s{S_T2}, {WS_FLAGS+40}",
      "v_lshrrev_b32 v18, 1, v0", "v_lshlrev_b32 v18, 7, v18", "v_and_b32 v19, 1, v0", "v_lshl_add_u32 v18, v19, 3, v18", f"v_add_u32 v18, s{S_T2}, v18")
    final_preload(g, 20)
    g.waitvm('c2'); read_c(2)
    g.waitvm('c3'); e("s_waitcnt lgkmcnt(0)"); read_c(3)
    g.stamp(7)
    g.poll(18, 8, 16)
    g.stamp(8)
    e("s_waitcnt lgkmcnt(0)")
    part_addr(g, 6, 64, S_M0B)
    AB, NB, ACC = 16, 6, 64
    steps = [(jj, f) for jj in range(4) for f in range(4)]
    def lda(i):
        jj, f = steps[i]
        for rh in range(2):
            g.vmem(f"buffer_load_dwordx4 {vr(AB+8*(i%NB)+4*rh,4)}, v{V_L16}, {sr(S_WS,4)}, s{S_KX+2*jj+rh} offen offset:{1024*f} sc1", f'a{i}')
    for i in range(NB): lda(i)
    for i in range(16):
        jj, f = steps[i]
        g.waitvm(f'a{i}')
        for rh in range(2):
            for ch in range(2):
                acc = ACC+16*(2*rh+ch)
                g.mfma(acc, creg(jj, f >> 1, f & 1, ch), AB+8*(i%NB)+4*rh, None if i == 0 else acc)
        if i+NB < 16: lda(i+NB)
    g.stamp(9)
    for rh in range(2):
        for ch in range(2):
            for q in range(4): e(f"ds_write_b128 v{6+q}, {vr(ACC+16*(2*rh+ch)+4*q,4)} offset:{rh*8192+ch*128}")

def final(g):
    e = g.e; o = g.o
    e("L_final:")
    g.srd(S_OUT, P_OUT, None, 4194304)
    e("v_lshrrev_b32 v16, 4, v0", "v_and_b32 v17, 15, v0", "v_xor_b32 v17, v17, v16", "v_lshlrev_b32 v17, 4, v17", "v_lshl_add_u32 v17, v16, 8, v17",
      f"s_lshl_b32 s{S_T0}, s{S_WV}, 11", f"v_add_u32 v17, s{S_T0}, v17", "v_xor_b32 v18, 64, v17", f"v_add_u32 v19, {SREG}, v17", f"v_add_u32 v20, {SREG}, v18")
    e(f"s_and_b32 s{S_T0}, s{S_J}, 1", f"s_lshl_b32 s{S_T0}, s{S_T0}, 8", f"s_lshl_b32 s{S_T1}, s{S_WV}, 5", f"s_add_u32 s{S_T0}, s{S_T0}, s{S_T1}", f"s_add_u32 s{S_T0}, s{S_T0}, {L_G}",
      f"v_lshl_add_u32 v16, v16, 2, s{S_T0}", "v_lshlrev_b32 v5, 1, v5")
    e("s_waitcnt vmcnt(0)")
    e(f"v_lshlrev_b32 v24, 16, v{V_FX+4}", f"v_and_b32 v25, 0xffff0000, v{V_FX+4}", f"v_lshlrev_b32 v26, 16, v{V_FX+5}", f"v_and_b32 v27, 0xffff0000, v{V_FX+5}")
    for i in range(2):
        e(f"v_lshlrev_b32 v{28+4*i}, 16, v{V_FX+2*i}", f"v_and_b32 v{29+4*i}, 0xffff0000, v{V_FX+2*i}", f"v_lshlrev_b32 v{30+4*i}, 16, v{V_FX+2*i+1}", f"v_and_b32 v{31+4*i}, 0xffff0000, v{V_FX+2*i+1}")
    e("s_waitcnt lgkmcnt(0)", "s_barrier")
    g.stamp(15)
    e("ds_read_b32 v22, v16", "ds_read_b32 v36, v16 offset:16")
    for i in range(2):
        for k in range(4): e(f"ds_read_b128 {vr(40+24*i+4*k,4)}, v{19+i} offset:{k*16384+i*1024}")
        for k in range(2): e(f"ds_read_b128 {vr(56+24*i+4*k,4)}, v{17+i} offset:{TREG+k*16384+i*1024}")
    e(f"s_mov_b32 s{S_T0}, 0x8000")
    for i in range(2):
        b = 40+24*i; gg = 22 if i == 0 else 36
        e(f"s_waitcnt lgkmcnt({6-6*i})")
        for h in (0, 2):
            e(f"v_pk_fma_f32 {vr(b+h,2)}, {vr(28+4*i+h,2)}, {vr(24+h,2)}, {vr(b+h,2)}",
              f"v_pk_add_f32 {vr(b+4+h,2)}, {vr(b+4+h,2)}, {vr(b+8+h,2)}",
              f"v_pk_add_f32 {vr(b+16+h,2)}, {vr(b+16+h,2)}, {vr(b+20+h,2)}",
              f"v_pk_add_f32 {vr(b+h,2)}, {vr(b+h,2)}, {vr(b+12+h,2)}",
              f"v_pk_add_f32 {vr(b+4+h,2)}, {vr(b+4+h,2)}, {vr(b+16+h,2)} neg_lo:[0,1] neg_hi:[0,1]",
              f"v_pk_add_f32 {vr(b+h,2)}, {vr(b+h,2)}, {vr(b+4+h,2)}",
              f"v_pk_fma_f32 {vr(b+h,2)}, {vr(b+h,2)}, {vr(gg,2)}, {vr(b+16+h,2)} op_sel_hi:[1,0,1]")
        e(f"buffer_store_dwordx4 {vr(b,4)}, v5, {sr(S_OUT,4)}, {'0' if i == 0 else 's%d' % S_T0} offen {o.get('outmod','')}")
    e(f"s_or_b32 s{S_T0}, s{S_C}, s{S_J}", f"s_or_b32 s{S_T0}, s{S_T0}, s{S_WV}", "s_cbranch_scc1 L_f1",
      f"v_mov_b32 v16, s{S_NON}", "s_mov_b64 exec, 1", f"buffer_store_dword v16, off, {sr(S_WS,4)}, 0 offset:{WS_EPOCH} sc1", "s_mov_b64 exec, -1", "L_f1:")
    if o.get('stamps'):
        e("s_waitcnt vmcnt(0)")
        g.stamp(16)
        e(f"s_lshl_b32 s{S_T0}, s{S_C}, 4", f"s_add_u32 s{S_T0}, s{S_T0}, s{S_J}", f"s_lshl_b32 s{S_T0}, s{S_T0}, 3", f"s_add_u32 s{S_T0}, s{S_T0}, s{S_WV}",
          f"s_lshl_b32 s{S_T0}, s{S_T0}, 8", f"s_add_u32 s{S_T0}, s{S_T0}, {WS_STAMP}", "v_lshlrev_b32 v16, 2, v0",
          f"buffer_store_dword v{V_STAMP}, v16, {sr(S_WS,4)}, s{S_T0} offen")
    if o.get('amp') is not None:
        e("s_waitcnt vmcnt(0)")
        g.stamp(16)
        e(f"s_cmp_lg_u32 s2, {o.get('ampwg',0)}", "s_cbranch_scc1 L_end", f"s_cmp_lg_u32 s{S_WV}, {o.get('ampwave',0)}", "s_cbranch_scc1 L_end",
          "s_sub_u32 s66, s66, s100", "s_mul_i32 s66, s66, 10", "s_memrealtime s[100:101]", "s_waitcnt lgkmcnt(0)", "s_add_u32 s66, s66, s100",
          "L_amp:", "s_memrealtime s[100:101]", "s_waitcnt lgkmcnt(0)", "s_sub_u32 s67, s100, s66", "s_cmp_lt_i32 s67, 0", "s_cbranch_scc1 L_amp")
    e("L_end:", "s_endpgm")

def build(opt):
    g = G(opt)
    if opt.get('stamps') or opt.get('amp') is not None:
        g.e("s_memrealtime s[100:101]")
    prologue(g)
    if opt.get('stamps'):
        pass
    roleT(g); roleS(g); final(g)
    lines = g.L
    if opt.get('stamps'):
        out = []
        for x in lines:
            out.append(x)
            if x in ("L_roleT:", "L_roleS:"):
                out += ["s_waitcnt lgkmcnt(0)", f"v_writelane_b32 v{V_STAMP}, s100, 31"]
        lines = out
    ins, added = fix(lines)
    errs = check_waits(ins)
    for x in errs: print("WAITCHECK", x, file=sys.stderr)
    ref = open('cdna_kernels/' + KNAME + '.s.ref').read().splitlines() if opt.get('refhdr', True) else []
    hdr = [x for x in ref if x.startswith(';') and '@launch' not in x and 'Override' not in x and 'grid=ceil' not in x]
    txt = "\n".join(hdr) + f"""
; @launch grid=(256,1,1) block=(512,1,1) lds={LDS_BYTES}
.amdgcn_target "amdgcn-amd-amdhsa--gfx950"
.text
.globl {KNAME}_kernel
.p2align 8
.type {KNAME}_kernel,@function
{KNAME}_kernel:
""" + "\n".join((i.text if i.label else "    " + i.text) for i in ins) + f"""
.section .rodata,"a"
.p2align 6
.amdhsa_kernel {KNAME}_kernel
  .amdhsa_next_free_vgpr 256
  .amdhsa_next_free_sgpr 102
  .amdhsa_accum_offset 256
  .amdhsa_group_segment_fixed_size 0
  .amdhsa_kernarg_size 136
  .amdhsa_user_sgpr_count 2
  .amdhsa_user_sgpr_kernarg_segment_ptr 1
  .amdhsa_system_sgpr_workgroup_id_x 1
.end_amdhsa_kernel
"""
    return txt, len([i for i in ins if i.real]), added, errs

if __name__ == '__main__':
    out = sys.argv[1] if len(sys.argv) > 1 else 'k.s'
    opt = eval(sys.argv[2]) if len(sys.argv) > 2 else {}
    txt, n, added, errs = build(opt)
    open(out, 'w').write(txt)
    print(f"{out}: {n} instructions, {added} nops added, {len(errs)} wait errors")
```

```python
import sys
from asmfix import fix, check_waits
KNAME = 'gated_mix__ssm_conv_s5__linear_kernel_hedgehog__prompt'

WS_EPOCH = 0
WS_FLAGS = 0x60000
FL_H, FL_O = 0, 0x8000
WS_E     = 0x10000
WS_Z     = 0x40000
WS_KV    = 0x80000
WS_A2H   = 0x200000
WS_A2O   = 0x600000
WS_STAMP = 0x900000
WS_SIZE  = 0x1000000
TREG = 0x0
SREG = 0x10000
SCR  = 0x20000
L_TFL  = SCR + 0x0
L_SFL  = SCR + 0x10
L_G    = SCR + 0x200
L_GATE = SCR + 0x400
L_WPHI = SCR + 0x800
L_SEGZ = SCR + 0xC00
L_SEG  = SCR + 0x1400
L_ZD   = SCR + 0x1C00
L_BSL  = SCR + 0x2000
L_KVR  = SCR + 0x2000
L_ZR   = SCR + 0x6000
L_KVD  = SCR + 0x6400
L_HP   = SCR + 0x6C00
LDS_BYTES = 0x28000
LOG2E = 0x3fb8aa3b

def vr(a, n=1): return f"v{a}" if n == 1 else f"v[{a}:{a+n-1}]"
def sr(a, n=1): return f"s{a}" if n == 1 else f"s[{a}:{a+n-1}]"

class G:
    def __init__(self, opt):
        self.o = opt; self.L = []; self.vm = []; self.nlab = 0; self.cap = None
    def e(self, *xs):
        for x in xs: (self.L if self.cap is None else self.cap).append(x)
    def capture(self, fn):
        old = self.cap; self.cap = []; fn(); r = self.cap; self.cap = old; return r
    def play(self, items):
        for it in items:
            if isinstance(it, str): self.e(it)
            elif it[0] == 'vm': self.vmem(it[1], it[2])
            elif it[0] == 'wait': self.waitvm(*it[1])
            elif it[0] == 'grp': self.play(it[1])
    def weave(self, main, groups, start=0, end=None):
        end = len(main) if end is None else end
        n = len(groups); out = []; k = 0
        for i, it in enumerate(main):
            while k < n and i >= start + (end-start)*k//n and i >= start:
                out += groups[k]; k += 1
            out.append(it)
        while k < n: out += groups[k]; k += 1
        self.play(out)
    def lab(self, p):
        self.nlab += 1; return f"L_{p}{self.nlab}"
    def vmem(self, text, tag=None):
        if self.cap is not None: self.cap.append(('vm', text, tag)); return
        if tag and any(tag.startswith(x) for x in self.o.get('skip', ())): return
        self.e(text); self.vm.append(tag)
    def waitvm(self, *tags):
        if self.cap is not None: self.cap.append(('wait', tags)); return
        last = max((i for i, t in enumerate(self.vm) if t in tags), default=-1)
        if last < 0: return
        n = len(self.vm) - 1 - last
        assert n <= 63
        self.e(f"s_waitcnt vmcnt({n})")
        self.vm = self.vm[last+1:]
    def waitvm0(self):
        self.e("s_waitcnt vmcnt(0)"); self.vm = []
    def srd(self, d, base, off=None, size=0):
        if off is None:
            self.e(f"s_mov_b32 s{d}, s{base}", f"s_mov_b32 s{d+1}, s{base+1}", f"s_mov_b32 s{d+2}, {size}")
        else:
            self.e(f"s_add_u32 s{d}, s{base}, s{off}", f"s_addc_u32 s{d+1}, s{base+1}, 0", f"s_sub_u32 s{d+2}, {size}, s{off}")
        self.e(f"s_mov_b32 s{d+3}, 0x20000")
    def stamp(self, i):
        if self.o.get('amp') == i: self.e("s_waitcnt lgkmcnt(0)", "s_memrealtime s[66:67]", "s_waitcnt lgkmcnt(0)")
        if not self.o.get('stamps'): return
        self.e("s_waitcnt lgkmcnt(0)", "s_memrealtime s[100:101]", "s_memtime s[66:67]", "s_waitcnt lgkmcnt(0)", f"v_writelane_b32 v{V_STAMP}, s100, {i}", f"v_writelane_b32 v{V_STAMP}, s66, {i+32}")
    def mfma(self, d, a, b, c=None):
        cc = "0" if c is None else vr(c, 16)
        self.e(f"v_mfma_f32_32x32x16_bf16 {vr(d,16)}, {vr(a,4)}, {vr(b,4)}, {cc}")
    def cvt16(self, dst, src, n=16):
        for q in range(n//2): self.e(f"v_cvt_pk_bf16_f32 v{dst+q}, v{src+2*q}, v{src+2*q+1}")
    def arrive(self, stage, tmp):
        self.e(f"v_mov_b32 v{tmp}, {stage}", "s_mov_b64 exec, 1", f"ds_write_b32 v{V_MYFL}, v{tmp}", "s_mov_b64 exec, -1")
    def rwait(self, stage, tmp):
        l = self.lab('rs')
        self.e(l+":", f"ds_read_b128 {vr(tmp,4)}, v{V_FLB}", "s_waitcnt lgkmcnt(0)",
               f"v_min3_u32 v{tmp}, v{tmp}, v{tmp+1}, v{tmp+2}", f"v_min_u32 v{tmp}, v{tmp}, v{tmp+3}",
               f"v_cmp_gt_u32 vcc, {stage}, v{tmp}", f"s_cbranch_vccnz {l}")
    def setflag(self, slot, tmp):
        self.e(f"v_mov_b32 v{tmp}, s{S_NON}", f"v_mov_b32 v{tmp+1}, s{S_NON+1}", "s_mov_b64 exec, 1")
        if slot: self.e(f"s_add_u32 s{S_FLOFF}, s{S_FLOFF}, {slot}")
        self.vmem(f"buffer_store_dwordx2 {vr(tmp,2)}, off, {sr(S_WS,4)}, s{S_FLOFF} sc1", 'flag')
        self.e("s_mov_b64 exec, -1")
    def poll(self, vaddr, n, tmp):
        l = self.lab('pl'); d = self.lab('pd')
        self.e(f"s_mov_b64 exec, {(1<<n)-1}", f"s_mov_b32 s{S_T0}, {self.o.get('timeout', 200000)}")
        self.e(l+":", f"buffer_load_dwordx2 {vr(tmp,2)}, v{vaddr}, {sr(S_WS,4)}, 0 offen sc1",
               f"s_sub_u32 s{S_T0}, s{S_T0}, 1", f"s_cbranch_scc1 {d}", "s_waitcnt vmcnt(0)",
               f"v_cmp_ne_u64 vcc, {sr(S_NON,2)}, {vr(tmp,2)}", f"s_cbranch_vccz {d}", f"s_sleep {self.o.get('psleep',2)}", f"s_branch {l}", d+":", "s_waitcnt vmcnt(0)", "s_mov_b64 exec, -1")
        self.vm = []

S_WV = 3
S_X, S_A, S_B, S_WK, S_WVv, S_WQ, S_WS, S_OUT = 4, 8, 12, 16, 20, 24, 28, 32
P_X, P_LRE, P_LIM, P_BRE, P_BIM, P_CRE, P_CIM, P_LDT = 36, 38, 40, 42, 44, 46, 48, 50
P_DSK, P_BX, P_WQKV, P_WPHI, P_WO, P_GATE, P_OUT, P_DBG, P_WS = 52, 54, 56, 58, 60, 62, 64, 66, 68
S_KX = 70
S_KW = 78
S_NON = 86
S_C, S_J, S_W, S_R0 = 88, 89, 90, 91
S_FLOFF = 92
S_M0B = 93
S_T0, S_T1, S_T2, S_T3 = 94, 95, 96, 97
S_M = 98
S_EP = 54
S_DS = 55
V_LANE = 0
V_MYFL, V_FLB, V_L16, V_STAMP = 1, 2, 3, 4
V_FX = 10

def prologue(g):
    e = g.e; o = g.o
    e("s_cmp_ge_u32 s2, 256", "s_cbranch_scc1 L_end")
    e(f"s_load_dwordx16 s[36:51], s[0:1], 0", f"s_load_dwordx16 s[52:67], s[0:1], 64", f"s_load_dwordx2 s[68:69], s[0:1], 128")
    e("v_lshrrev_b32 v1, 6, v0", "v_and_b32 v0, 63, v0", f"v_readfirstlane_b32 s{S_WV}, v1")
    e(f"s_and_b32 s{S_T0}, s2, 3", f"s_lshl_b32 s{S_T0}, s{S_T0}, 2", f"s_bfe_u32 s{S_C}, s2, 0x20003", f"s_add_u32 s{S_C}, s{S_C}, s{S_T0}")
    e(f"s_and_b32 s{S_T0}, s2, 4", f"s_lshl_b32 s{S_T0}, s{S_T0}, 1", f"s_lshr_b32 s{S_J}, s2, 5", f"s_add_u32 s{S_J}, s{S_J}, s{S_T0}")
    e(f"s_and_b32 s{S_W}, s{S_WV}, 3")
    ra, rb_, rmask = o.get('rot', (2, 1, 7))
    e(f"s_mul_i32 s{S_R0}, s{S_C}, {ra}", f"s_mul_i32 s{S_T0}, s{S_J}, {rb_}", f"s_add_u32 s{S_R0}, s{S_R0}, s{S_T0}")
    if o.get('rotx'):
        e(f"s_lshr_b32 s{S_T0}, s{S_C}, 2", f"s_mul_i32 s{S_T0}, s{S_T0}, {o['rotx']}", f"s_add_u32 s{S_R0}, s{S_R0}, s{S_T0}")
    e(f"s_and_b32 s{S_R0}, s{S_R0}, {rmask}")
    e(f"s_lshl_b32 s{S_T0}, s{S_C}, 4", f"s_add_u32 s{S_T0}, s{S_T0}, s{S_J}", f"s_lshl_b32 s{S_T0}, s{S_T0}, 7",
      f"s_lshl_b32 s{S_T1}, s{S_W}, 3", f"s_add_u32 s{S_T0}, s{S_T0}, s{S_T1}", f"s_add_u32 s{S_FLOFF}, s{S_T0}, {WS_FLAGS}")
    e(f"v_lshlrev_b32 v{V_L16}, 4, v0")
    if o.get('stamps'): e(f"v_mov_b32 v{V_STAMP}, 0")
    e(f"s_lshl_b32 s{S_T0}, s{S_WV}, 2", f"s_add_u32 s{S_T0}, s{S_T0}, {L_TFL}", f"v_mov_b32 v{V_MYFL}, s{S_T0}",
      f"s_and_b32 s{S_T0}, s{S_T0}, 0xfffffff0", f"v_mov_b32 v{V_FLB}, s{S_T0}")
    e(f"s_cmp_ge_u32 s{S_WV}, 4", "s_cbranch_scc1 L_roleS")

def nonce(g):
    g.e(f"s_mul_i32 s{S_NON}, s{S_EP}, 1664525", f"s_add_u32 s{S_NON}, s{S_NON}, 1013904223",
        f"s_mul_i32 s{S_NON+1}, s{S_EP}, 22695477", f"s_add_u32 s{S_NON+1}, s{S_NON+1}, 0x9e3779b9")

def frag_addr(g, dst, tmp, base_s=None, base_c=0):
    e = g.e
    e(f"v_and_b32 v{tmp}, 31, v0", f"v_lshlrev_b32 v{dst}, 7, v{tmp}", f"v_bfe_u32 v{tmp}, v0, 1, 3", f"v_lshrrev_b32 v{tmp+1}, 5, v0",
      f"v_xor_b32 v{tmp}, v{tmp}, v{tmp+1}", f"v_lshl_add_u32 v{dst}, v{tmp}, 4, v{dst}")
    if base_s is not None: e(f"v_add_u32 v{dst}, s{base_s}, v{dst}")
    if base_c: e(f"v_add_u32 v{dst}, {base_c}, v{dst}")
    for k in range(1, 4): e(f"v_xor_b32 v{dst+k}, {32*k}, v{dst}")

def make_sel(g, dst, tmp):
    e = g.e
    e(f"v_bfe_u32 v{tmp}, v0, 3, 2", f"v_and_b32 v{tmp+1}, 3, v0", f"v_lshl_add_u32 v{tmp}, v{tmp}, 2, v{tmp+1}",
      f"v_bfe_u32 v{tmp+1}, v0, 2, 1", f"v_lshrrev_b32 v{tmp+2}, 5, v0", f"v_xor_b32 v{tmp+1}, v{tmp+1}, v{tmp+2}",
      f"v_lshl_add_u32 v{tmp}, v{tmp+1}, 4, v{tmp}",
      f"v_and_b32 v{tmp+1}, 1, v0", f"v_lshlrev_b32 v{tmp+1}, 4, v{tmp+1}", f"v_mov_b32 v{tmp+2}, 0x3f80",
      f"v_lshlrev_b32 v{tmp+1}, v{tmp+1}, v{tmp+2}", f"v_lshrrev_b32 v{tmp}, 1, v{tmp}")
    for q in range(8):
        e(f"v_cmp_eq_u32 vcc, {q}, v{tmp}", f"v_cndmask_b32 v{dst+q}, 0, v{tmp+1}, vcc")

def final_preload(g, tmp):
    e = g.e
    e(f"s_lshl_b32 s{S_T0}, s{S_C}, 7", f"s_and_b32 s{S_T1}, s{S_J}, 1", f"s_lshl_b32 s{S_T1}, s{S_T1}, 6", f"s_add_u32 s{S_T0}, s{S_T0}, s{S_T1}",
      f"s_lshr_b32 s{S_T1}, s{S_WV}, 2", f"s_lshl_b32 s{S_T1}, s{S_T1}, 5", f"s_add_u32 s{S_T0}, s{S_T0}, s{S_T1}",
      f"s_lshl_b32 s{S_T1}, s{S_W}, 2", f"s_add_u32 s{S_T0}, s{S_T0}, s{S_T1}", f"s_lshl_b32 s{S_T0}, s{S_T0}, 10",
      f"s_lshr_b32 s{S_T1}, s{S_J}, 1", f"s_lshl_b32 s{S_T1}, s{S_T1}, 7")
    e(f"v_and_b32 v{tmp}, 15, v0", f"v_lshlrev_b32 v{tmp}, 3, v{tmp}", f"v_add_u32 v{tmp}, s{S_T1}, v{tmp}",
      f"v_lshrrev_b32 v5, 4, v0", f"v_lshl_add_u32 v5, v5, 10, v{tmp}", f"v_add_u32 v5, s{S_T0}, v5", f"v_add_u32 v{tmp+1}, 0x4000, v5")
    g.vmem(f"global_load_dwordx2 {vr(V_FX,2)}, v5, {sr(P_X,2)}", 'fin')
    g.vmem(f"global_load_dwordx2 {vr(V_FX+2,2)}, v{tmp+1}, {sr(P_X,2)}", 'fin')
    g.vmem(f"global_load_dwordx2 {vr(V_FX+4,2)}, v{tmp}, {sr(P_DSK,2)}", 'fin')

def part_addr(g, dst, tmp, base_s):
    e = g.e
    e(f"v_and_b32 v{tmp}, 31, v0", f"v_lshlrev_b32 v{dst}, 8, v{tmp}", f"v_and_b32 v{tmp}, 7, v0", f"v_lshrrev_b32 v{tmp+1}, 5, v0",
      f"v_xor_b32 v{tmp}, v{tmp}, v{tmp+1}", f"v_lshl_add_u32 v{dst}, v{tmp}, 4, v{dst}", f"v_add_u32 v{dst}, s{base_s}, v{dst}")
    for k in range(1, 4): e(f"v_xor_b32 v{dst+k}, {32*k}, v{dst}")

def softmax(g, p, out, tmp):
    e = g.e
    e(f"v_max3_f32 v{tmp}, v{p}, v{p+1}, v{p+2}")
    for i in range(3, 15, 2): e(f"v_max3_f32 v{tmp}, v{tmp}, v{p+i}, v{p+i+1}")
    e(f"v_max_f32 v{tmp}, v{tmp}, v{p+15}", f"v_mul_f32 v{tmp}, s{S_T3}, v{tmp}")
    for i in range(0, 16, 2):
        e(f"v_pk_fma_f32 {vr(p+i,2)}, {vr(p+i,2)}, {sr(S_T2,2)}, {vr(tmp,2)} op_sel_hi:[1,0,0]")
    for i in range(16): e(f"v_exp_f32 v{p+i}, v{p+i}")
    e(f"v_pk_add_f32 {vr(tmp,2)}, {vr(p,2)}, {vr(p+2,2)}", f"v_pk_add_f32 {vr(tmp+2,2)}, {vr(p+4,2)}, {vr(p+6,2)}")
    e(f"v_pk_add_f32 {vr(tmp,2)}, {vr(tmp,2)}, {vr(p+8,2)}", f"v_pk_add_f32 {vr(tmp+2,2)}, {vr(tmp+2,2)}, {vr(p+10,2)}")
    e(f"v_pk_add_f32 {vr(tmp,2)}, {vr(tmp,2)}, {vr(p+12,2)}", f"v_pk_add_f32 {vr(tmp+2,2)}, {vr(tmp+2,2)}, {vr(p+14,2)}")
    e(f"v_pk_add_f32 {vr(tmp,2)}, {vr(tmp,2)}, {vr(tmp+2,2)}", f"v_add_f32 v{tmp}, v{tmp}, v{tmp+1}", f"v_rcp_f32 v{tmp}, v{tmp}")
    for i in range(0, 16, 2):
        e(f"v_pk_mul_f32 {vr(p+i,2)}, {vr(p+i,2)}, {vr(tmp,2)} op_sel_hi:[1,0]")
    g.cvt16(out, p)

def sum16(g, p, tmp):
    e = g.e
    e(f"v_pk_add_f32 {vr(tmp,2)}, {vr(p,2)}, {vr(p+2,2)}", f"v_pk_add_f32 {vr(tmp+2,2)}, {vr(p+4,2)}, {vr(p+6,2)}")
    e(f"v_pk_add_f32 {vr(tmp,2)}, {vr(tmp,2)}, {vr(p+8,2)}", f"v_pk_add_f32 {vr(tmp+2,2)}, {vr(tmp+2,2)}, {vr(p+10,2)}")
    e(f"v_pk_add_f32 {vr(tmp,2)}, {vr(tmp,2)}, {vr(p+12,2)}", f"v_pk_add_f32 {vr(tmp+2,2)}, {vr(tmp+2,2)}, {vr(p+14,2)}")
    e(f"v_pk_add_f32 {vr(tmp,2)}, {vr(tmp,2)}, {vr(tmp+2,2)}", f"v_add_f32 v{tmp}, v{tmp}, v{tmp+1}")

def epoch_load(g, v):
    g.e(f"v_mov_b32 v{v}, {WS_EPOCH}")
    g.vmem(f"global_load_dword v{v}, v{v}, {sr(P_WS,2)} sc1", 'ep')
def epoch_use(g, v):
    g.e(f"v_readfirstlane_b32 s{S_EP}, v{v}"); nonce(g)

def roleT(g):
    e = g.e; o = g.o
    X = 128
    VXO = 6
    VBO = 5
    VWO = 10
    VXA = 12
    VTR = 11
    WPA, WPB, SEL = 16, 20, 24
    ACC, RING, KP, DA, DB, PA, PB = 32, 48, 72, 80, 96, 112, 120
    e("L_roleT:")
    def slice_offs(s):
        e(f"s_add_u32 s{S_T0}, s{S_R0}, {s}", f"s_and_b32 s{S_T0}, s{S_T0}, 7", f"s_lshl_b32 s{S_KX+s}, s{S_T0}, 7", f"s_mul_i32 s{S_KW+s}, s{S_T0}, {64*3072}")
    for s in range(3): slice_offs(s)
    e("v_lshrrev_b32 v32, 5, v0", "v_bfe_u32 v33, v0, 3, 2", "v_and_b32 v34, 7, v0", "v_lshrrev_b32 v35, 4, v0", "v_xor_b32 v34, v34, v35", "v_lshlrev_b32 v34, 4, v34")
    e("v_lshl_add_u32 v36, v32, 4, v33", f"v_lshl_add_u32 v{VXO}, v36, 10, v34")
    e(f"v_xor_b32 v{VXO+1}, 64, v{VXO}", f"v_add_u32 v{VXO+2}, {2*3072}, v{VXO}", f"v_add_u32 v{VXO+3}, {3*3072}, v{VXO+1}", f"v_add_u32 v{VXO+1}, 3072, v{VXO+1}")
    e("v_lshl_add_u32 v36, v32, 3, v33", f"v_lshl_add_u32 v{VBO}, v36, 10, v34")
    e(f"s_and_b32 s{S_T0}, s{S_W}, 1", f"s_lshl_b32 s{S_T1}, s{S_T0}, 6", f"v_xor_b32 v{VBO}, s{S_T1}, v{VBO}",
      f"s_lshl_b32 s{S_T0}, s{S_T0}, 12", f"s_lshr_b32 s{S_T1}, s{S_W}, 1", f"s_lshl_b32 s{S_T1}, s{S_T1}, 14", f"s_add_u32 s{S_T0}, s{S_T0}, s{S_T1}",
      f"s_lshl_b32 s{S_T1}, s{S_J}, 15", f"s_add_u32 s{S_T2}, s{S_T0}, s{S_T1}")
    e(f"s_lshl_b32 s{S_T0}, s{S_C}, 17", f"s_lshl_b32 s{S_T1}, s{S_W}, 15", f"s_add_u32 s{S_T3}, s{S_T0}, s{S_T1}")
    e(f"s_lshl_b32 s{S_M0B}, s{S_W}, 10", f"s_lshl_b32 s{S_M}, s{S_W}, 12")
    e("s_waitcnt lgkmcnt(0)")
    def dma_x(s):
        e(f"s_add_u32 m0, s{S_M}, {s*16384}")
        for gg in range(4):
            g.vmem(f"buffer_load_dwordx4 v{VXO+gg}, {sr(S_X,4)}, s{S_KX+s} offen offset:{1024*gg} lds", f'x{s}')
    def dma_b(s):
        for part in range(2):
            e(f"s_add_u32 m0, s{S_M0B}, {L_BSL + (s%3)*8192 + part*4096}")
            g.vmem(f"buffer_load_dwordx4 v{VBO}, {sr(S_A if part==0 else S_B,4)}, s{S_KX+s} offen lds", f'b{s}')
    def dma_w(srd, slot, s, tag):
        e(f"s_add_u32 m0, s{S_M0B}, {TREG + slot*32768 + s*4096}")
        g.vmem(f"buffer_load_dwordx4 v{VWO}, {sr(srd,4)}, s{S_KW+s} offen lds", tag)
    def wgroups(srd, slot, tag, rng): return [g.capture(lambda s=s: dma_w(srd, slot, s, tag)) for s in rng]
    g.srd(S_X, P_X, S_T3, 2097152)
    dma_x(0)
    g.srd(S_A, P_BRE, S_T2, 524288); g.srd(S_B, P_BIM, S_T2, 524288)
    dma_b(0); dma_x(1); dma_b(1)
    if o.get('xahead', 1): dma_x(2)
    epoch_load(g, 114)
    for s in range(3, 8): slice_offs(s)
    e(f"s_mul_i32 s{S_T0}, s{S_W}, {16*3072}", f"s_lshl_b32 s{S_T1}, s{S_J}, 6", f"s_add_u32 s{S_T0}, s{S_T0}, s{S_T1}")
    g.srd(S_WQ, P_WQKV, S_T0, 1572864); e(f"s_add_u32 s{S_T0}, s{S_T0}, 1024")
    g.srd(S_WK, P_WQKV, S_T0, 1572864); e(f"s_add_u32 s{S_T0}, s{S_T0}, 1024")
    g.srd(S_WVv, P_WQKV, S_T0, 1572864)
    g.srd(S_WS, P_WS, None, WS_SIZE)
    e(f"v_add_u32 v113, {L_GATE}, v34", f"s_and_b32 s{S_T0}, s{S_J}, 1", f"s_lshl_b32 s{S_T0}, s{S_T0}, 13", f"s_lshl_b32 s{S_T1}, s{S_W}, 11", f"s_add_u32 s{S_T0}, s{S_T0}, s{S_T1}",
      f"v_add_u32 v115, s{S_T0}, v{V_L16}", "v_xor_b32 v116, 64, v115", "v_mov_b32 v118, 0", "v_mov_b32 v119, 0")
    e(f"v_lshrrev_b32 v32, 2, v0", f"v_mul_u32_u24 v32, 3072, v32", f"v_and_b32 v33, 3, v0", f"v_lshl_add_u32 v{VWO}, v33, 4, v32")
    frag_addr(g, VXA, 32, base_s=S_M)
    e("v_lshrrev_b32 v32, 5, v0", "v_bfe_u32 v33, v0, 2, 2", "v_lshl_add_u32 v32, v32, 3, v33", "v_bfe_u32 v34, v0, 4, 1",
      f"v_lshlrev_b32 v{VTR}, 6, v32", f"v_lshl_add_u32 v{VTR}, v34, 5, v{VTR}", "v_and_b32 v35, 1, v0", f"v_lshl_add_u32 v{VTR}, v35, 4, v{VTR}",
      "v_bfe_u32 v35, v0, 1, 1", f"v_lshl_add_u32 v{VTR}, v35, 3, v{VTR}")
    e("v_lshlrev_b32 v112, 5, v32", "v_lshl_add_u32 v112, v34, 4, v112", "v_lshl_add_u32 v112, v35, 3, v112", f"v_add_u32 v112, {L_WPHI}, v112")
    make_sel(g, SEL, 32)
    g.arrive(0, 32)
    e(f"s_mov_b32 s{S_T2}, {LOG2E}", f"s_mov_b32 s{S_T3}, {LOG2E | 0x80000000}")
    g.stamp(0)
    GB = 48
    def gate_rd(s):
        b = GB+12*(s & 1)
        e(f"ds_read_b128 {vr(b,4)}, v115 offset:{(s&3)*16384}", f"ds_read_b128 {vr(b+4,4)}, v116 offset:{(s&3)*16384+1024}", f"ds_read_b128 {vr(b+8,4)}, v113 offset:{s*128}")
    def gate_dot(s):
        b = GB+12*(s & 1)
        for q in range(4): e(f"v_dot2c_f32_bf16 v118, v{b+q}, v{b+8+q}", f"v_dot2c_f32_bf16 v119, v{b+4+q}, v{b+8+q}")
    tail = wgroups(S_WK, 0, 'wk', range(8))
    xa = o.get('xahead', 1)
    for s in range(8):
        g.waitvm(f'x{s}', f'b{s}')
        e("s_waitcnt lgkmcnt(0)", "s_barrier")
        if s == 0: g.stamp(1)
        if s+2 < 8: dma_b(s+2)
        if s+2+xa < 8: dma_x(s+2+xa)
        for _ in range(o.get('wk_sched', {5: 2, 6: 3, 7: 3}).get(s, 0)): g.play(tail.pop(0))
        if s == 4:
            for k in range(4): e(f"v_add_u32 v{VXA+k}, 0x10000, v{VXA+k}")
        for k in range(4): e(f"ds_read_b128 {vr(X+16*s+4*k,4)}, v{VXA+k} offset:{(s&3)*16384}")
        if s == 5: e("v_add_u32 v115, 0x10000, v115", "v_add_u32 v116, 0x10000, v116")
        if s >= 1: gate_rd(s-1)
        if s >= 2: gate_dot(s-2)
        if s == 2:
            for hd, dst in ((0, WPA), (1, WPB)):
                for i in range(2): e(f"ds_read_b64_tr_b16 {vr(dst+2*i,2)}, v112 offset:{hd*512+i*128}")
        if s == 3:
            epoch_use(g, 114)
            e("v_bfe_u32 v112, v0, 2, 1", "v_mul_u32_u24 v112, 0x8000, v112", "v_lshl_or_b32 v112, v112, 16, v112")
            for q in range(8): e(f"v_xor_b32 v{WPA+q}, v{WPA+q}, v112")
    assert not tail
    e("s_waitcnt lgkmcnt(0)"); gate_rd(7); gate_dot(6)
    wv = wgroups(S_WVv, 1, 'wv', range(8))
    for _ in range(o.get('wv_pre', 2)): g.play(wv.pop(0))
    e("s_waitcnt lgkmcnt(0)"); gate_dot(7)
    e("v_lshrrev_b32 v113, 3, v0", f"s_lshl_b32 s{S_T0}, s{S_W}, 6", f"s_add_u32 s{S_T0}, s{S_T0}, {L_G}", f"v_lshl_add_u32 v113, v113, 2, s{S_T0}")
    for md in ("quad_perm:[1,0,3,2]", "quad_perm:[2,3,0,1]", "row_half_mirror"):
        e(f"v_add_f32_dpp v118, v118, v118 {md} row_mask:0xf bank_mask:0xf", f"v_add_f32_dpp v119, v119, v119 {md} row_mask:0xf bank_mask:0xf")
    e(f"v_mul_f32 v118, s{S_T3}, v118", f"v_mul_f32 v119, s{S_T3}, v119", "v_exp_f32 v118, v118", "v_exp_f32 v119, v119", "v_add_f32 v118, 1.0, v118", "v_add_f32 v119, 1.0, v119",
      "v_rcp_f32 v118, v118", "v_rcp_f32 v119, v119", "ds_write_b32 v113, v118", "ds_write_b32 v113, v119 offset:32")
    g.stamp(2)
    g.waitvm('wk'); e("s_barrier")
    g.stamp(3)
    def wgemm(slot, transposed, groups=(), k0=0, k1=32):
        D = 6
        groups = list(groups); n = len(groups); k = 0
        def rd(ks):
            for i in range(2): e(f"ds_read_b64_tr_b16 {vr(RING+4*(ks%D)+2*i,2)}, v{VTR} offset:{TREG+slot*32768+ks*1024+i*256}")
        for ks in range(D-1): rd(ks)
        for ks in range(32):
            if ks+D-1 < 32: rd(ks+D-1)
            e(f"s_waitcnt lgkmcnt({2*min(D-1, 31-ks)})")
            w = RING+4*(ks%D); x = X+4*ks
            if transposed: g.mfma(ACC, w, x, None if ks == 0 else ACC)
            else: g.mfma(ACC, x, w, None if ks == 0 else ACC)
            while k < n and ks >= k0 + (k1-k0)*k//n: g.play(groups[k]); k += 1
    wgemm(0, True, wv, 0, o.get('wv_end', 24))
    g.arrive(1, 116)
    g.stamp(4)
    g.cvt16(KP, ACC)
    g.mfma(DA, WPA, KP); g.mfma(DB, WPB, KP+4)
    g.rwait(1, 116)
    g.weave(g.capture(lambda: softmax(g, DA, PA, RING)), wgroups(S_WQ, 0, 'wq', range(4)))
    g.waitvm('wv'); g.arrive(2, RING)
    g.mfma(DA, PA, SEL); g.mfma(DA, PA+4, SEL+4, DA)
    g.weave(g.capture(lambda: softmax(g, DB, PB, RING)), wgroups(S_WQ, 0, 'wq', range(4, 8)))
    g.mfma(DB, PB, SEL); g.mfma(DB, PB+4, SEL+4, DB)
    g.cvt16(PA, DA)
    sum16(g, DA, RING)
    g.cvt16(PB, DB)
    sum16(g, DB, RING+4)
    e(f"v_permlane32_swap_b32 v{RING}, v{RING+4}", f"v_add_f32 v{RING}, v{RING}, v{RING+4}")
    e(f"s_lshl_b32 s{S_T0}, s{S_W}, 8", f"s_add_u32 s{S_T0}, s{S_T0}, {L_ZR}", f"v_lshl_add_u32 v{RING+1}, v0, 2, s{S_T0}", f"ds_write_b32 v{RING+1}, v{RING}")
    g.rwait(2, RING)
    g.stamp(5)
    S_KVG, S_ZG, S_KVP, S_ZP, S_WOM, S_OST = S_KX, S_KX+1, S_KX+2, S_KX+3, S_KX+4, S_KX+5
    VKW, VKR, VZR, VZ8 = 12, 13, 14, 15
    def su1():
        e(f"s_mov_b32 s{S_M}, 0xffff", f"s_mov_b32 s{S_M+1}, 0xffff")
        e(f"s_add_u32 s{S_T0}, s{S_M0B}, {L_KVR}", f"v_add_u32 v{VKW}, s{S_T0}, v{V_L16}")
    def su2():
        e(f"s_lshl_b32 s{S_T0}, s{S_W}, 12", f"s_add_u32 s{S_T0}, s{S_T0}, {L_KVR}", f"v_add_u32 v{VKR}, s{S_T0}, v{V_L16}")
    def su3():
        e(f"s_lshl_b32 s{S_T0}, s{S_W}, 6", f"s_add_u32 s{S_T0}, s{S_T0}, {L_ZR}", f"v_and_b32 v{VZ8}, 15, v0", f"v_lshl_add_u32 v{VZR}, v{VZ8}, 2, s{S_T0}", f"v_lshlrev_b32 v{VZ8}, 3, v0")
    def su4():
        e(f"s_lshl_b32 s{S_T0}, s{S_J}, 2", f"s_add_u32 s{S_T0}, s{S_T0}, s{S_W}", f"s_lshl_b32 s{S_KVG}, s{S_T0}, 14", f"s_add_u32 s{S_KVG}, s{S_KVG}, {WS_KV}",
          f"s_lshl_b32 s{S_ZG}, s{S_T0}, 11", f"s_add_u32 s{S_ZG}, s{S_ZG}, {WS_Z}")
    def su5():
        e(f"s_lshl_b32 s{S_T0}, s{S_C}, 10", f"s_add_u32 s{S_KVP}, s{S_KVG}, s{S_T0}", f"s_lshl_b32 s{S_T0}, s{S_C}, 7", f"s_add_u32 s{S_ZP}, s{S_ZG}, s{S_T0}")
    def su6():
        e(f"s_lshl_b32 s{S_T0}, s{S_W}, 16", f"s_lshr_b32 s{S_T1}, s{S_J}, 1", f"s_lshl_b32 s{S_T1}, s{S_T1}, 7", f"s_add_u32 s{S_T0}, s{S_T0}, s{S_T1}")
        g.srd(S_A, P_WO, S_T0, 524288)
    def su7():
        e(f"v_lshrrev_b32 v{VXO}, 3, v0", f"v_lshlrev_b32 v{VXO}, 10, v{VXO}", f"v_and_b32 v{VXO+1}, 7, v0", f"v_bfe_u32 v{VXO+2}, v0, 4, 1")
    def su8():
        e(f"v_lshlrev_b32 v{VXO+2}, 2, v{VXO+2}", f"v_xor_b32 v{VXO+1}, v{VXO+1}, v{VXO+2}", f"v_lshl_add_u32 v{VXO}, v{VXO+1}, 4, v{VXO}")
    def su9():
        for k in range(1, 4): e(f"v_add_u32 v{VXO+k}, {7168*k}, v{VXO}")
        e(f"s_lshl_b32 s{S_WOM}, s{S_W}, 13")
    def su10():
        e(f"s_lshl_b32 s{S_T0}, s{S_C}, 2", f"s_add_u32 s{S_T0}, s{S_T0}, s{S_W}", f"s_lshl_b32 s{S_T0}, s{S_T0}, 4", f"s_add_u32 s{S_T0}, s{S_T0}, s{S_J}",
          f"s_lshl_b32 s{S_T0}, s{S_T0}, 11", f"s_add_u32 s{S_OST}, s{S_T0}, {WS_A2O}")
    wgemm(1, False, [g.capture(f) for f in (su1, su2, su3, su4, su5, su6, su7, su8, su9, su10)], 2, 30)
    g.cvt16(KP, ACC, 8)
    g.mfma(DA, PA, KP); g.mfma(DB, PB, KP)
    g.cvt16(KP+4, ACC+8, 8)
    g.mfma(DA, PA+4, KP+4, DA); g.mfma(DB, PB+4, KP+4, DB)
    g.waitvm('wq')
    for q in range(4):
        for i in range(4): e(f"v_cndmask_b32 v{DA+4*q+i}, v{DB+4*q+i}, v{DA+4*q+i}, {sr(S_M,2)}")
        e(f"ds_write_b128 v{VKW}, {vr(DA+4*q,4)} offset:{q*4096}")
    g.arrive(3, RING); g.rwait(3, RING)
    for q in range(4): e(f"ds_read_b128 {vr(DB+4*q,4)}, v{VKR} offset:{q*1024}")
    for q in range(4): e(f"ds_read_b32 v{KP+q}, v{VZR} offset:{q*256}")
    e("s_waitcnt lgkmcnt(6)")
    e(f"v_pk_add_f32 {vr(DB,2)}, {vr(DB,2)}, {vr(DB+4,2)}", f"v_pk_add_f32 {vr(DB+2,2)}, {vr(DB+2,2)}, {vr(DB+6,2)}", "s_waitcnt lgkmcnt(4)",
      f"v_pk_add_f32 {vr(DB+8,2)}, {vr(DB+8,2)}, {vr(DB+12,2)}", f"v_pk_add_f32 {vr(DB+10,2)}, {vr(DB+10,2)}, {vr(DB+14,2)}",
      f"v_pk_add_f32 {vr(DB+2,2)}, {vr(DB+2,2)}, {vr(DB+10,2)}", f"v_pk_add_f32 {vr(DB,2)}, {vr(DB,2)}, {vr(DB+8,2)}",
      f"v_cvt_pk_bf16_f32 v{DB+2}, v{DB+2}, v{DB+3}", f"v_mov_b32 v{DB+3}, s{S_NON}")
    g.vmem(f"buffer_store_dwordx4 {vr(DB,4)}, v{V_L16}, {sr(S_WS,4)}, s{S_KVP} offen sc1", 'kvst')
    e("s_waitcnt lgkmcnt(0)", f"v_pk_add_f32 {vr(KP,2)}, {vr(KP,2)}, {vr(KP+2,2)}", f"v_add_f32 v{KP}, v{KP}, v{KP+1}", f"v_mov_b32 v{KP+1}, s{S_NON}", "s_mov_b64 exec, 0xffff")
    g.vmem(f"buffer_store_dwordx2 {vr(KP,2)}, v{VZ8}, {sr(S_WS,4)}, s{S_ZP} offen sc1", 'kvst')
    e("s_mov_b64 exec, -1")
    g.stamp(6)
    def wo_groups(kh):
        r = []
        for q in range(8):
            def f(q=q):
                if q % 4 == 0: e(f"s_add_u32 m0, s{S_WOM}, {TREG + kh*32768 + q*1024}", f"s_mov_b32 s{S_DS}, {kh*262144 + q*8192}")
                g.vmem(f"buffer_load_dwordx4 v{VXO+q%4}, {sr(S_A,4)}, s{S_DS} offen offset:{1024*(q%4)} lds", f'wo')
            r.append(g.capture(f))
        return r
    wgemm(0, True, wo_groups(1), o.get('wo1_start', 0), o.get('wo1_end', 24))
    g.arrive(4, RING)
    g.stamp(7)
    KG, ZG = X, X+64
    def gload(i, track):
        st = [f"s_add_u32 s{S_T1}, s{S_KVG}, {4096*i}"]
        ld = [f"buffer_load_dwordx2 {vr(ZG+2*i,2)}, v{VZ8}, {sr(S_WS,4)}, s{S_ZG} offen offset:{512*i} sc1"]
        ld += [f"buffer_load_dwordx4 {vr(KG+16*i+4*k,4)}, v{V_L16}, {sr(S_WS,4)}, s{S_T1} offen offset:{1024*k} sc1" for k in range(4)]
        e(*st)
        for x in ld:
            if track: g.vmem(x, f'kg{i}')
            else: e(x)
    def gcheck(i):
        t = X+72
        e(f"v_xor_b32 v{t}, s{S_NON}, v{ZG+2*i+1}")
        for k in range(4): e(f"v_bitop3_b32 v{t}, v{t}, s{S_NON}, v{KG+16*i+4*k+3} bitop3:0xf6")
        e(f"v_cmp_ne_u32 vcc, 0, v{t}")
    g.cvt16(KP, ACC)
    g.mfma(DA, WPA, KP); g.mfma(DB, WPB, KP+4)
    gat = o.get('gather_at', 0)
    ggr = [g.capture(lambda i=i: gload(i, True)) for i in range(4)]
    smA = g.capture(lambda: softmax(g, DA, PA, RING)); smB = g.capture(lambda: softmax(g, DB, PB, RING))
    if gat == 0: g.weave(smA, ggr); g.play(smB)
    elif gat == 1: g.play(smA); g.weave(smB, ggr)
    else:
        g.play(smA); g.play(smB)
        for x in ggr: g.play(x)
    g.rwait(4, RING)
    wo0 = wo_groups(0)
    if o.get('wo0_early', 0):
        for x in wo0: g.play(x)
        wo0 = []
    e(f"s_lshl_b32 s{S_T0}, s{S_W}, 3", f"s_add_u32 s{S_T0}, s{S_T0}, {L_KVD}", f"v_lshlrev_b32 v106, 5, v0", f"v_add_u32 v102, s{S_T0}, v106", f"v_add_u32 v106, {L_KVD}, v106")
    e("v_bfe_u32 v103, v0, 2, 1", "v_lshlrev_b32 v103, 5, v103", "v_bfe_u32 v107, v0, 3, 1", "v_lshl_add_u32 v103, v107, 3, v103", "v_and_b32 v107, 3, v0", "v_lshl_add_u32 v103, v107, 1, v103",
      f"s_lshr_b32 s{S_T0}, s{S_W}, 1", f"s_lshl_b32 s{S_T0}, s{S_T0}, 6", f"s_and_b32 s{S_T1}, s{S_W}, 1", f"s_lshl_b32 s{S_T1}, s{S_T1}, 4", f"s_add_u32 s{S_T0}, s{S_T0}, s{S_T1}",
      f"s_add_u32 s{S_T0}, s{S_T0}, {L_ZD}", f"v_add_u32 v103, s{S_T0}, v103")
    e("v_and_b32 v107, 32, v0", f"v_add_u32 v107, {L_ZD}, v107", f"v_cndmask_b32 v104, v107, v106, {sr(S_M,2)}", "v_add_u32 v107, 64, v107", f"v_cndmask_b32 v105, v106, v107, {sr(S_M,2)}")
    e(f"s_mov_b32 s{S_T2}, 0x3f80", f"s_mov_b32 s{S_T3}, 0x3f800000", "v_mov_b32 v32, 0", "v_mov_b32 v33, 0", "v_mov_b32 v34, 0", "v_mov_b32 v35, 0", "v_mov_b32 v96, 0")
    g.stamp(8)
    retry = []
    for i in range(4):
        lr = g.lab('gr'); lo = g.lab('go')
        e(f"s_mov_b32 s{S_T0}, {o.get('timeout', 200000)}")
        g.waitvm(f'kg{i}')
        gcheck(i)
        e(f"s_cbranch_vccnz {lr}", lo+":")
        def rt(i=i, lr=lr, lo=lo):
            e(lr+":", f"s_sleep {o.get('psleep', 2)}"); gload(i, False)
            e(f"s_sub_u32 s{S_T0}, s{S_T0}, 1", "s_waitcnt vmcnt(0)", f"s_cbranch_scc1 {lo}"); gcheck(i)
            e(f"s_cbranch_vccnz {lr}", f"s_branch {lo}")
        retry.append(g.capture(rt))
        e(f"v_add_f32 v96, v96, v{ZG+2*i}")
        for k in range(4):
            r = KG+16*i+4*k
            e(f"v_pk_add_f32 v[32:33], v[32:33], {vr(r,2)}", f"v_dot2c_f32_bf16 v34, s{S_T2}, v{r+2}", f"v_dot2c_f32_bf16 v35, s{S_T3}, v{r+2}")
    g.stamp(9)
    e("v_mov_b32 v97, v96", "v_cvt_pk_bf16_f32 v32, v32, v33", "v_permlane16_swap_b32 v96, v97", "v_cvt_pk_bf16_f32 v33, v34, v35", "v_add_f32 v96, v96, v97", "ds_write_b64 v102, v[32:33]",
      "v_mov_b32 v97, v96", "v_permlane32_swap_b32 v96, v97", "v_add_f32 v96, v96, v97", "v_cvt_pk_bf16_f32 v96, v96, v96", "s_mov_b64 exec, 0xffff", "ds_write_b16 v103, v96", "s_mov_b64 exec, -1")
    g.arrive(5, 36); g.rwait(5, 36)
    g.stamp(10)
    for a in range(2): e(f"ds_read_b128 {vr(32+4*a,4)}, v104 offset:{16*a}", f"ds_read_b128 {vr(40+4*a,4)}, v105 offset:{16*a}")
    e(f"s_mov_b32 s{S_T1}, 0x358637bd")
    e("s_waitcnt lgkmcnt(3)"); g.mfma(48, 32, PA)
    e("s_waitcnt lgkmcnt(1)"); g.mfma(48, 36, PA+4, 48); g.mfma(64, 40, PB)
    e("s_waitcnt lgkmcnt(0)"); g.mfma(64, 44, PB+4, 64)
    for hd, num, den in ((0, 48, 56), (1, 72, 64)):
        e(f"v_add_f32 v{den}, s{S_T1}, v{den}", f"v_rcp_f32 v{den}, v{den}")
        for i in range(0, 8, 2): e(f"v_pk_mul_f32 {vr(num+i,2)}, {vr(num+i,2)}, {vr(den,2)} op_sel_hi:[1,0]")
        g.cvt16(80+4*hd, num, 8)
        g.vmem(f"buffer_store_dwordx4 {vr(80+4*hd,4)}, v{V_L16}, {sr(S_WS,4)}, s{S_OST} offen offset:{1024*hd} sc1", 'ost')
    g.stamp(11)
    for x in wo0: g.play(x)
    e("v_lshrrev_b32 v32, 5, v0", "v_bfe_u32 v33, v0, 2, 2", "v_lshl_add_u32 v32, v32, 3, v33", "v_lshlrev_b32 v32, 7, v32", "v_bfe_u32 v33, v0, 3, 1", "v_lshl_add_u32 v32, v33, 6, v32",
      "v_bfe_u32 v33, v0, 4, 1", "v_lshl_add_u32 v32, v33, 5, v32", "v_and_b32 v33, 3, v0", "v_lshl_add_u32 v32, v33, 3, v32",
      f"s_lshr_b32 s{S_T0}, s{S_W}, 1", f"s_lshl_b32 s{S_T0}, s{S_T0}, 15", f"v_add_u32 v32, s{S_T0}, v32", "v_xor_b32 v33, 64, v32")
    e(f"s_and_b32 s{S_T0}, s{S_J}, 1", f"s_lshl_b32 s{S_T0}, s{S_T0}, 1", f"s_and_b32 s{S_T1}, s{S_W}, 1", f"s_add_u32 s{S_T0}, s{S_T0}, s{S_T1}",
      f"s_lshr_b32 s{S_T1}, s{S_W}, 1", f"s_lshl_b32 s{S_T1}, s{S_T1}, 3",
      f"s_lshl_b32 s{S_KX}, s{S_C}, 2", f"s_add_u32 s{S_KX}, s{S_KX}, s{S_T0}", f"s_lshl_b32 s{S_KX}, s{S_KX}, 4", f"s_add_u32 s{S_KX}, s{S_KX}, s{S_T1}",
      f"s_lshl_b32 s{S_KX}, s{S_KX}, 11", f"s_add_u32 s{S_KX}, s{S_KX}, {WS_A2O}",
      f"s_lshl_b32 s{S_KX+1}, s{S_C}, 4", f"s_add_u32 s{S_KX+1}, s{S_KX+1}, s{S_T1}", f"s_lshl_b32 s{S_KX+1}, s{S_KX+1}, 7", f"s_lshl_b32 s{S_T0}, s{S_T0}, 3",
      f"s_add_u32 s{S_KX+1}, s{S_KX+1}, s{S_T0}", f"s_add_u32 s{S_KX+1}, s{S_KX+1}, {WS_FLAGS+FL_O}", f"v_lshlrev_b32 v40, 7, v0", f"v_add_u32 v40, s{S_KX+1}, v40")
    e(f"s_lshl_b32 s{S_T0}, s{S_W}, 13")
    part_addr(g, 6, 36, S_T0)
    g.waitvm('ost'); g.setflag(FL_O, 34)
    g.waitvm('wo'); g.arrive(6, 36)
    final_preload(g, 34)
    g.rwait(6, 36)
    for ks in range(16):
        for ch in range(2):
            for i in range(2): e(f"ds_read_b64_tr_b16 {vr(X+8*ks+4*ch+2*i,2)}, v{32+ch} offset:{TREG+ks*2048+i*512}")
    g.arrive(7, 36)
    g.stamp(12)
    g.poll(40, 8, 36)
    g.stamp(13)
    for k4 in range(4):
        if k4: e(f"s_add_u32 s{S_KX}, s{S_KX}, 4096")
        for k in range(4): g.vmem(f"buffer_load_dwordx4 {vr(32+16*k4+4*k,4)}, v{V_L16}, {sr(S_WS,4)}, s{S_KX} offen offset:{1024*k} sc1", f'a{4*k4+k}')
    g.rwait(7, 96)
    for ks in range(16):
        g.waitvm(f'a{ks}')
        for ch in range(2): g.mfma(96+16*ch, X+8*ks+4*ch, 32+4*ks, None if ks == 0 else 96+16*ch)
    g.stamp(14)
    for ch in range(2):
        for q in range(4): e(f"ds_write_b128 v{6+q}, {vr(96+16*ch+4*q,4)} offset:{TREG+ch*128}")
    e("s_branch L_final")
    e("L_role_cold:")
    for r in retry: g.play(r)

def roleS(g):
    e = g.e; o = g.o
    g.vm = []
    VXA, VBA = 12, 6
    LR, LI, L16R, L16I, LSR, LSI, W0R, W0I, W1R, W1I, CR, CI = range(16, 28)
    PSR, PSI, ER, EI = 28, 29, 30, 31
    VE0, VE1, VSEGR, VN8 = 32, 33, 34, 35
    VCO = 36
    SEL = 40
    UR, UI, RP = 48, 64, 80
    T = 96
    FB = 128
    e("L_roleS:")
    e(f"s_lshl_b32 s{S_M}, s{S_W}, 12")
    e("v_and_b32 v96, 19, v0", "v_bfe_u32 v97, v0, 2, 1", "v_lshl_add_u32 v96, v97, 3, v96", "v_bfe_u32 v97, v0, 3, 1", "v_lshl_add_u32 v96, v97, 2, v96",
      f"s_lshl_b32 s{S_T0}, s{S_J}, 5", f"v_add_u32 v96, s{S_T0}, v96", "v_lshlrev_b32 v96, 1, v96")
    e(f"s_lshl_b32 s{S_T0}, s{S_R0}, 3", f"v_add_u32 v97, s{S_T0}, v0", "v_and_b32 v97, 63, v97", "v_lshlrev_b32 v97, 4, v97")
    e("s_waitcnt lgkmcnt(0)")
    if o.get('codepre', 1):
        e(f"s_cmp_lg_u32 s{S_W}, 2", "s_cbranch_scc1 L_s3", f"s_getpc_b64 {sr(S_KX,2)}", "L_pc:",
          f"s_sub_u32 s{S_KX}, s{S_KX}, L_pc-{KNAME}_kernel", f"s_subb_u32 s{S_KX+1}, s{S_KX+1}, 0",
          f"s_bfe_u32 s{S_T0}, s2, 0x40003", f"s_lshl_b32 s{S_T0}, s{S_T0}, 11", f"v_lshlrev_b32 v98, 7, v0", f"v_add_u32 v98, s{S_T0}, v98",
          f"v_min_u32 v98, L_end-{KNAME}_kernel, v98", "s_mov_b64 exec, 0xffff", f"global_load_dword v99, v98, {sr(S_KX,2)}", "s_mov_b64 exec, -1", "L_s3:")
    g.srd(S_X, P_GATE, None, 1024)
    e(f"s_lshl_b32 s{S_T0}, s{S_J}, 10"); g.srd(S_WK, P_WPHI, S_T0, 16384)
    e(f"s_cmp_lg_u32 s{S_W}, 0", "s_cbranch_scc1 L_s1", f"s_mov_b32 m0, {L_GATE}", "s_nop 0", f"buffer_load_dwordx4 v97, {sr(S_X,4)}, 0 offen lds", "L_s1:")
    e(f"s_cmp_lg_u32 s{S_W}, 1", "s_cbranch_scc1 L_s2", f"s_mov_b32 m0, {L_WPHI}", "s_nop 0", f"buffer_load_dwordx4 v{V_L16}, {sr(S_WK,4)}, 0 offen lds", "L_s2:")
    g.vmem(f"global_load_ushort v100, v96, {sr(P_LDT,2)}", 'par')
    g.vmem(f"global_load_ushort v101, v96, {sr(P_LRE,2)}", 'par')
    g.vmem(f"global_load_ushort v102, v96, {sr(P_LIM,2)}", 'par')
    epoch_load(g, 114)
    spre = o.get('spre', 0)
    if spre:
        e(f"s_lshl_b32 s{S_T0}, s2, 2", f"s_add_u32 s{S_T0}, s{S_T0}, s{S_W}")
        e(f"s_mul_i32 s{S_T1}, s{S_T0}, 1536", f"s_add_u32 s{S_KX}, s{P_WQKV}, s{S_T1}", f"s_addc_u32 s{S_KX+1}, s{P_WQKV+1}, 0")
        for i in range(12): e(f"s_load_dword s{S_DS}, {sr(S_KX,2)}, {128*i}")
        if spre > 1:
            e(f"s_lshl_b32 s{S_T1}, s{S_T0}, 9")
            for pp, d in ((P_CRE, S_KX+2), (P_CIM, S_KX+4), (P_WO, S_KX+6)):
                e(f"s_add_u32 s{d}, s{pp}, s{S_T1}", f"s_addc_u32 s{d+1}, s{pp+1}, 0")
                for i in range(4): e(f"s_load_dword s{S_DS}, {sr(d,2)}, {128*i}")
    g.srd(S_WS, P_WS, None, WS_SIZE)
    frag_addr(g, VBA, 104, base_c=L_BSL)
    e(f"s_sub_u32 s{S_T0}, s{S_M}, {L_BSL}")
    for k in range(4): e(f"v_add_u32 v{VXA+k}, s{S_T0}, v{VBA+k}")
    make_sel(g, SEL, 104)
    e(f"s_lshl_b32 s{S_T0}, s{S_W}, 9", f"s_add_u32 s{S_T0}, s{S_T0}, {L_SEGZ}", f"v_lshl_add_u32 v{VSEGR}, v0, 3, s{S_T0}", "v_mov_b32 v104, 0", "v_mov_b32 v105, 0")
    e(f"ds_write_b64 v{VSEGR}, v[104:105]")
    g.arrive(0, 104)
    e(f"v_and_b32 v{VN8}, 31, v0", f"v_lshlrev_b32 v{VN8}, 3, v{VN8}")
    e("v_lshrrev_b32 v106, 5, v0", f"s_lshl_b32 s{S_T0}, s{S_W}, 2", f"v_add_u32 v107, s{S_T0}, v106", "v_add_u32 v108, 2, v107")
    e(f"s_lshl_b32 s{S_T0}, s{S_J}, 13", f"s_add_u32 s{S_T0}, s{S_T0}, {WS_E}", f"v_lshl_add_u32 v109, v{VN8}, 1, s{S_T0}", "v_mov_b32 v110, 0x7ffffff0")
    M0, M1 = S_KW, S_KW+2
    S_EST, S_HST = S_KW+4, S_KW+5
    for i, (cp, m, d) in enumerate(((107, M0, VE0), (108, M1, VE1))):
        e(f"v_cmp_gt_u32 {sr(m,2)}, s{S_C}, v{cp}", f"v_lshl_add_u32 v{d}, v{cp}, 9, v109", f"v_cndmask_b32 v{d}, v110, v{d}, {sr(m,2)}")
        e(f"v_sub_u32 v{cp}, s{S_C}, v{cp}", f"v_add_u32 v{cp}, -1, v{cp}", f"v_max_i32 v{cp}, 0, v{cp}", f"v_lshlrev_b32 v{cp}, 7, v{cp}", f"v_cvt_f32_u32 v{cp}, v{cp}")
    e(f"s_lshl_b32 s{S_T0}, s{S_W}, 1", f"v_add_u32 v106, s{S_T0}, v106", "v_lshlrev_b32 v106, 4, v106", "v_cvt_f32_u32 v106, v106")
    e(f"s_mov_b32 s{S_T2}, {LOG2E}")
    e(f"s_lshr_b32 s{S_T0}, s{S_J}, 1", f"s_lshl_b32 s{S_T0}, s{S_T0}, 16", f"s_lshl_b32 s{S_T1}, s{S_W}, 8", f"s_add_u32 s{S_T0}, s{S_T0}, s{S_T1}")
    g.srd(S_A, P_CRE, S_T0, 524288); g.srd(S_B, P_CIM, S_T0, 524288)
    e(f"s_lshl_b32 s{S_M0B}, s{S_W}, 14", f"s_add_u32 s{S_M0B}, s{S_M0B}, {SREG}")
    e(f"v_lshrrev_b32 v{VCO}, 3, v0", f"v_lshlrev_b32 v{VCO}, 10, v{VCO}", f"v_and_b32 v109, 7, v0", f"v_lshrrev_b32 v110, 4, v0", f"v_xor_b32 v109, v109, v110",
      f"v_lshl_add_u32 v{VCO}, v109, 4, v{VCO}", f"v_xor_b32 v{VCO+1}, 64, v{VCO}", f"v_add_u32 v{VCO+2}, {2*7168}, v{VCO}", f"v_add_u32 v{VCO+3}, {3*7168}, v{VCO+1}", f"v_add_u32 v{VCO+1}, 7168, v{VCO+1}")
    e(f"s_lshl_b32 s{S_T0}, s{S_J}, 4", f"s_add_u32 s{S_T0}, s{S_T0}, s{S_C}", f"s_lshl_b32 s{S_T0}, s{S_T0}, 9", f"s_add_u32 s{S_EST}, s{S_T0}, {WS_E}")
    e(f"s_lshl_b32 s{S_T0}, s{S_C}, 2", f"s_add_u32 s{S_T0}, s{S_T0}, s{S_W}", f"s_lshl_b32 s{S_T0}, s{S_T0}, 4", f"s_add_u32 s{S_T0}, s{S_T0}, s{S_J}",
      f"s_lshl_b32 s{S_T0}, s{S_T0}, 12", f"s_add_u32 s{S_HST}, s{S_T0}, {WS_A2H}")
    def cpow(dr, di, n):
        if n is None: e("v_exp_f32 v111, v103", "v_rndne_f32 v113, v104", "v_sub_f32 v112, v104, v113")
        else: e(f"v_mul_f32 v111, {n}, v103", f"v_mul_f32 v112, {n}, v104", "v_exp_f32 v111, v111", "v_rndne_f32 v113, v112", "v_sub_f32 v112, v112, v113")
        e(f"v_cos_f32 v{dr}, v112", f"v_sin_f32 v{di}, v112", f"v_mul_f32 v{dr}, v111, v{dr}", f"v_mul_f32 v{di}, v111, v{di}")
    def params():
        e("v_lshlrev_b32 v100, 16, v100", "v_lshlrev_b32 v101, 16, v101", "v_lshlrev_b32 v102, 16, v102")
        e(f"v_mul_f32 v100, s{S_T2}, v100", "v_exp_f32 v100, v100", "v_cvt_pk_bf16_f32 v100, v100, v100", "v_lshlrev_b32 v100, 16, v100")
        e("v_mul_f32 v103, v100, v101", f"v_mul_f32 v103, s{S_T2}, v103", "v_mul_f32 v104, v100, v102", "v_mul_f32 v104, 0.15915494, v104")
        cpow(LR, LI, None); cpow(L16R, L16I, "0x41800000"); cpow(LSR, LSI, "v106"); cpow(W0R, W0I, "v107"); cpow(W1R, W1I, "v108")
        e(f"v_add_f32 v111, -1.0, v{LR}", "v_mul_f32 v112, v101, v101", "v_fmac_f32 v112, v102, v102", "v_rcp_f32 v112, v112",
          f"v_mul_f32 v{CR}, v111, v101", f"v_fmac_f32 v{CR}, v{LI}, v102", f"v_mul_f32 v{CI}, v{LI}, v101", f"v_fma_f32 v{CI}, -v111, v102, v{CI}",
          "v_add_f32 v112, v112, v112", f"v_mul_f32 v{CR}, v{CR}, v112", f"v_mul_f32 v{CI}, v{CI}, v112")
        e(f"v_mov_b32 v{T+18}, s{S_NON}", f"v_mov_b32 v{T+19}, s{S_NON+1}", f"v_lshlrev_b32 v{T+20}, 1, v{VN8}")
    par = g.capture(params)
    g.stamp(0)
    def mm(s):
        b = FB+48*(s&1); r = []
        for k in range(4):
            first = (s == 0 and k == 0)
            r.append(g.capture(lambda: g.mfma(UR, b+12*k, b+12*k+4, None if first else UR)))
            r.append(g.capture(lambda: g.mfma(UI, b+12*k, b+12*k+8, None if first else UI)))
        return r
    for s in range(8):
        e("s_waitcnt lgkmcnt(0)", "s_barrier")
        if s == 0: g.stamp(1)
        b = FB+48*(s&1)
        rd = []
        for k in range(4):
            rd += [f"ds_read_b128 {vr(b+12*k,4)}, v{VXA+k} offset:{(s&3)*16384}",
                   f"ds_read_b128 {vr(b+12*k+4,4)}, v{VBA+k} offset:{(s%3)*8192}",
                   f"ds_read_b128 {vr(b+12*k+8,4)}, v{VBA+k} offset:{(s%3)*8192+4096}"]
        if s == 0:
            e(*rd); g.waitvm0(); epoch_use(g, 114)
        else:
            m = mm(s-1)
            for k in range(8):
                g.play(m[k])
                if k < 4: e(*rd[3*k:3*k+3])
                else:
                    g.play(par[:4]); par = par[4:]
        if s == 3:
            for k in range(4): e(f"v_add_u32 v{VXA+k}, 0x10000, v{VXA+k}")
    assert not par
    m = mm(7)
    for k in range(8):
        if k % 2 == 0: e(f"s_waitcnt lgkmcnt({9-3*(k//2)})")
        g.play(m[k])
    e(f"s_sub_u32 s{S_T0}, s{S_M0B}, {L_BSL}")
    for k in range(4): e(f"v_add_u32 v{VBA+k}, s{S_T0}, v{VBA+k}")
    g.stamp(2)
    def c_groups(pc):
        part, kh2 = pc & 1, pc >> 1; r = []
        for q in range(8):
            def f(q=q):
                if q % 4 == 0: e(f"s_add_u32 m0, s{S_M0B}, {(pc&1)*8192 + q*1024}", f"s_mov_b32 s{S_DS}, {kh2*128 + q*8192}")
                g.vmem(f"buffer_load_dwordx4 v{VCO+q%4}, {sr(S_A if part == 0 else S_B,4)}, s{S_DS} offen offset:{1024*(q%4)} lds", f'c{pc}')
            r.append(g.capture(f))
        return r
    def dma_c(pc):
        for x in c_groups(pc): g.play(x)
    def creg(jj, part, a, ch): return FB + 4*(((jj*2+part)*2+a)*2+ch)
    def read_c(pc):
        part, kh2 = pc & 1, pc >> 1
        for ks in range(4):
            for ch in range(2): e(f"ds_read_b128 {vr(creg(2*kh2+(ks>>1), part, ks&1, ch),4)}, v{VBA+ks} offset:{(pc&1)*8192+ch*4096}")
    pr, pi = UR, UI
    for t in range(1, 16):
        nr, ni = (ER, EI) if t & 1 else (T, T+1)
        e(f"v_fma_f32 v{nr}, v{LR}, v{pr}, v{UR+t}", f"v_fma_f32 v{ni}, v{LR}, v{pi}, v{UI+t}", f"v_fma_f32 v{nr}, -v{LI}, v{pi}, v{nr}", f"v_fma_f32 v{ni}, v{LI}, v{pr}, v{ni}")
        pr, pi = nr, ni
    e(f"ds_write_b64 v{VSEGR}, {vr(ER,2)} offset:{L_SEG-L_SEGZ}", "s_waitcnt lgkmcnt(0)", "s_barrier")
    if o.get('sprio'): e(f"s_setprio {o['sprio']}")
    for k in range(7): e(f"ds_read_b64 {vr(T+2*k,2)}, v{VSEGR} offset:{L_SEG-L_SEGZ-(7-k)*256}")
    def cmac(dr, di, ar, ai, br, bi, cr, ci):
        e(f"v_fma_f32 v{dr}, v{ar}, v{br}, v{cr}", f"v_fma_f32 v{di}, v{ar}, v{bi}, v{ci}", f"v_fma_f32 v{dr}, -v{ai}, v{bi}, v{dr}", f"v_fma_f32 v{di}, v{ai}, v{br}, v{di}")
    for k in range(1, 7):
        e(f"s_waitcnt lgkmcnt({6-k})")
        d = (PSR, PSI) if k == 6 else (T+2*k, T+2*k+1)
        cmac(d[0], d[1], L16R, L16I, T+2*k-2, T+2*k-1, T+2*k, T+2*k+1)
    cmac(T+16, T+17, L16R, L16I, PSR, PSI, ER, EI)
    e(f"s_cmp_lg_u32 s{S_W}, 3", "s_cbranch_scc1 L_s4", "s_mov_b32 exec_lo, 0",
      f"buffer_store_dwordx4 {vr(T+16,4)}, v{T+20}, {sr(S_WS,4)}, s{S_EST} offen sc1", "s_mov_b64 exec, -1", "L_s4:")
    g.stamp(3)
    for t in range(16):
        e(f"v_mul_f32 v{RP+t}, v{CR}, v{UR+t}", f"v_fma_f32 v{RP+t}, -v{CI}, v{UI+t}, v{RP+t}", f"v_mul_f32 v{UI+t}, -v{CR}, v{UI+t}", f"v_fma_f32 v{UI+t}, -v{CI}, v{UR+t}, v{UI+t}")
    l = g.lab('ep'); d = g.lab('ed')
    e(f"s_mov_b32 s{S_T0}, {o.get('timeout', 200000)}", l+":",
      f"buffer_load_dwordx4 {vr(T,4)}, v{VE0}, {sr(S_WS,4)}, 0 offen sc1", f"buffer_load_dwordx4 {vr(T+4,4)}, v{VE1}, {sr(S_WS,4)}, 0 offen sc1",
      f"s_sub_u32 s{S_T0}, s{S_T0}, 1", f"s_cbranch_scc1 {d}", "s_waitcnt vmcnt(0)",
      f"v_cmp_ne_u64 vcc, {sr(S_NON,2)}, {vr(T+2,2)}", f"v_cmp_ne_u64 {sr(S_M,2)}, {sr(S_NON,2)}, {vr(T+6,2)}",
      f"s_and_b64 vcc, vcc, {sr(M0,2)}", f"s_and_b64 {sr(S_M,2)}, {sr(S_M,2)}, {sr(M1,2)}", f"s_or_b64 vcc, vcc, {sr(S_M,2)}", f"s_cbranch_scc0 {d}", f"s_sleep {o.get('psleep',2)}", f"s_branch {l}", d+":")
    g.waitvm0()
    g.stamp(4)
    e(f"v_mul_f32 v{T+8}, v{W0R}, v{T}", f"v_mul_f32 v{T+9}, v{W0R}, v{T+1}", f"v_fma_f32 v{T+8}, -v{W0I}, v{T+1}, v{T+8}", f"v_fma_f32 v{T+9}, v{W0I}, v{T}, v{T+9}")
    cmac(T+8, T+9, W1R, W1I, T+4, T+5, T+8, T+9)
    e(f"ds_write_b64 v{VSEGR}, {vr(T+8,2)} offset:{L_HP-L_SEGZ}", f"v_add_u32 v{VN8}, {L_HP}, v{VN8}")
    g.arrive(1, T); g.rwait(1, T)
    cg = c_groups(0) + c_groups(1)
    ncw = o.get('c_weave', 12)
    def pass2():
        for k in range(8): e(f"ds_read_b64 {vr(T+2*k,2)}, v{VN8} offset:{k*256}")
        for k in range(1, 8):
            e(f"s_waitcnt lgkmcnt({7-k})", f"v_add_f32 v{T}, v{T}, v{T+2*k}", f"v_add_f32 v{T+1}, v{T+1}, v{T+2*k+1}")
        cmac(PSR, PSI, LSR, LSI, T, T+1, PSR, PSI)
        e(f"v_mul_f32 v{ER}, v{CR}, v{PSR}", f"v_fma_f32 v{ER}, -v{CI}, v{PSI}, v{ER}", f"v_mul_f32 v{EI}, -v{CR}, v{PSI}", f"v_fma_f32 v{EI}, -v{CI}, v{PSR}, v{EI}")
        pr, pj = ER, EI
        for t in range(16):
            e(f"v_fmac_f32 v{RP+t}, v{LR}, v{pr}", f"v_fmac_f32 v{UI+t}, v{LR}, v{pj}", f"v_fmac_f32 v{RP+t}, v{LI}, v{pj}", f"v_fma_f32 v{UI+t}, -v{LI}, v{pr}, v{UI+t}")
            pr, pj = RP+t, UI+t
            if t == 8:
                g.cvt16(T, RP, 8); g.cvt16(T+8, UI, 8)
                g.mfma(48, T, SEL); g.mfma(112, T+8, SEL)
        g.cvt16(T+4, RP+8, 8); g.mfma(48, T+4, SEL+4, 48)
        g.cvt16(T+12, UI+8, 8); g.mfma(112, T+12, SEL+4, 112)
    g.weave(g.capture(pass2), cg[:ncw], 8)
    for f in range(4):
        src = (48, 56, 112, 120)[f]
        g.cvt16(64+4*f, src, 8)
        g.vmem(f"buffer_store_dwordx4 {vr(64+4*f,4)}, v{V_L16}, {sr(S_WS,4)}, s{S_HST} offen offset:{1024*f} sc1", 'hst')
    g.stamp(5)
    for x in cg[ncw:]: g.play(x)
    e(f"s_and_b32 s{S_T0}, s{S_J}, 1", f"s_lshl_b32 s{S_T0}, s{S_T0}, 1", f"s_lshl_b32 s{S_T1}, s{S_W}, 2",
      f"s_lshl_b32 s{S_KX}, s{S_C}, 2", f"s_add_u32 s{S_KX}, s{S_KX}, s{S_T0}", f"s_lshl_b32 s{S_KX}, s{S_KX}, 4", f"s_add_u32 s{S_KX}, s{S_KX}, s{S_T1}",
      f"s_lshl_b32 s{S_KX}, s{S_KX}, 12", f"s_add_u32 s{S_KX}, s{S_KX}, {WS_A2H}")
    for k in range(1, 8): e(f"s_add_u32 s{S_KX+k}, s{S_KX}, {(k>>1)*4096 + (k&1)*65536}")
    e(f"s_lshl_b32 s{S_T2}, s{S_C}, 4", f"s_add_u32 s{S_T2}, s{S_T2}, s{S_T1}", f"s_lshl_b32 s{S_T2}, s{S_T2}, 7", f"s_lshl_b32 s{S_T0}, s{S_T0}, 3",
      f"s_add_u32 s{S_T2}, s{S_T2}, s{S_T0}", f"s_add_u32 s{S_T2}, s{S_T2}, {WS_FLAGS+FL_H}",
      "v_lshrrev_b32 v18, 1, v0", "v_lshlrev_b32 v18, 7, v18", "v_and_b32 v19, 1, v0", "v_lshl_add_u32 v18, v19, 3, v18", f"v_add_u32 v18, s{S_T2}, v18")
    g.waitvm('c0'); read_c(0)
    c2 = c_groups(2); n2 = o.get('c2_pre', 4)
    e("s_waitcnt lgkmcnt(0)")
    for x in c2[:n2]: g.play(x)
    g.waitvm('hst'); g.setflag(FL_H, 16)
    g.stamp(6)
    for x in c2[n2:]: g.play(x)
    g.waitvm('c1'); read_c(1); e("s_waitcnt lgkmcnt(0)"); dma_c(3)
    final_preload(g, 20)
    g.waitvm('c2'); read_c(2)
    g.stamp(7)
    g.poll(18, 8, 16)
    g.stamp(8)
    AB, NB, ACC = 16, 6, 64
    steps = [(jj, f) for jj in range(4) for f in range(4)]
    def lda(i):
        jj, f = steps[i]
        for rh in range(2):
            g.vmem(f"buffer_load_dwordx4 {vr(AB+8*(i%NB)+4*rh,4)}, v{V_L16}, {sr(S_WS,4)}, s{S_KX+2*jj+rh} offen offset:{1024*f} sc1", f'a{i}')
    nb0 = o.get('a2h_depth', NB)
    for i in range(nb0): lda(i)
    e("s_waitcnt lgkmcnt(0)"); read_c(3); e("s_waitcnt lgkmcnt(0)")
    part_addr(g, 6, 64, S_M0B)
    for i in range(16):
        jj, f = steps[i]
        g.waitvm(f'a{i}')
        for rh in range(2):
            for ch in range(2):
                acc = ACC+16*(2*rh+ch)
                g.mfma(acc, creg(jj, f >> 1, f & 1, ch), AB+8*(i%NB)+4*rh, None if i == 0 else acc)
        if i+nb0 < 16: lda(i+nb0)
    g.stamp(9)
    for rh in range(2):
        for ch in range(2):
            for q in range(4): e(f"ds_write_b128 v{6+q}, {vr(ACC+16*(2*rh+ch)+4*q,4)} offset:{rh*8192+ch*128}")

def final(g):
    e = g.e; o = g.o
    e("L_final:")
    g.srd(S_OUT, P_OUT, None, 4194304)
    e("v_lshrrev_b32 v16, 4, v0", "v_and_b32 v17, 15, v0", "v_xor_b32 v17, v17, v16", "v_lshlrev_b32 v17, 4, v17", "v_lshl_add_u32 v17, v16, 8, v17",
      f"s_lshl_b32 s{S_T0}, s{S_WV}, 11", f"v_add_u32 v17, s{S_T0}, v17", "v_xor_b32 v18, 64, v17", f"v_add_u32 v19, {SREG}, v17", f"v_add_u32 v20, {SREG}, v18")
    e(f"s_lshl_b32 s{S_T0}, s{S_WV}, 5", f"s_add_u32 s{S_T0}, s{S_T0}, {L_G}",
      f"v_lshl_add_u32 v16, v16, 2, s{S_T0}", "v_lshlrev_b32 v5, 1, v5")
    e("s_waitcnt vmcnt(0)")
    e(f"v_lshlrev_b32 v24, 16, v{V_FX+4}", f"v_and_b32 v25, 0xffff0000, v{V_FX+4}", f"v_lshlrev_b32 v26, 16, v{V_FX+5}", f"v_and_b32 v27, 0xffff0000, v{V_FX+5}")
    for i in range(2):
        e(f"v_lshlrev_b32 v{28+4*i}, 16, v{V_FX+2*i}", f"v_and_b32 v{29+4*i}, 0xffff0000, v{V_FX+2*i}", f"v_lshlrev_b32 v{30+4*i}, 16, v{V_FX+2*i+1}", f"v_and_b32 v{31+4*i}, 0xffff0000, v{V_FX+2*i+1}")
    e("s_waitcnt lgkmcnt(0)", "s_barrier")
    g.stamp(15)
    e("ds_read_b32 v22, v16", "ds_read_b32 v36, v16 offset:16")
    for i in range(2):
        for k in range(4): e(f"ds_read_b128 {vr(40+24*i+4*k,4)}, v{19+i} offset:{k*16384+i*1024}")
        for k in range(2): e(f"ds_read_b128 {vr(56+24*i+4*k,4)}, v{17+i} offset:{TREG+k*16384+i*1024}")
    e(f"s_mov_b32 s{S_T0}, 0x8000")
    for i in range(2):
        b = 40+24*i; gg = 22 if i == 0 else 36
        e(f"s_waitcnt lgkmcnt({6-6*i})")
        for h in (0, 2):
            e(f"v_pk_fma_f32 {vr(b+h,2)}, {vr(28+4*i+h,2)}, {vr(24+h,2)}, {vr(b+h,2)}",
              f"v_pk_add_f32 {vr(b+4+h,2)}, {vr(b+4+h,2)}, {vr(b+8+h,2)}",
              f"v_pk_add_f32 {vr(b+16+h,2)}, {vr(b+16+h,2)}, {vr(b+20+h,2)}",
              f"v_pk_add_f32 {vr(b+h,2)}, {vr(b+h,2)}, {vr(b+12+h,2)}",
              f"v_pk_add_f32 {vr(b+4+h,2)}, {vr(b+4+h,2)}, {vr(b+16+h,2)} neg_lo:[0,1] neg_hi:[0,1]",
              f"v_pk_add_f32 {vr(b+h,2)}, {vr(b+h,2)}, {vr(b+4+h,2)}",
              f"v_pk_fma_f32 {vr(b+h,2)}, {vr(b+h,2)}, {vr(gg,2)}, {vr(b+16+h,2)} op_sel_hi:[1,0,1]")
        e(f"buffer_store_dwordx4 {vr(b,4)}, v5, {sr(S_OUT,4)}, {'0' if i == 0 else 's%d' % S_T0} offen {o.get('outmod','sc1')}")
    e(f"s_or_b32 s{S_T0}, s{S_C}, s{S_J}", f"s_or_b32 s{S_T0}, s{S_T0}, s{S_WV}", "s_cbranch_scc1 L_f1",
      f"v_mov_b32 v16, s{S_NON}", "s_mov_b64 exec, 1", f"buffer_store_dword v16, off, {sr(S_WS,4)}, 0 offset:{WS_EPOCH} sc1", "s_mov_b64 exec, -1", "L_f1:")
    if o.get('stamps'):
        e("s_waitcnt vmcnt(0)")
        g.stamp(16)
        e(f"s_lshl_b32 s{S_T0}, s{S_C}, 4", f"s_add_u32 s{S_T0}, s{S_T0}, s{S_J}", f"s_lshl_b32 s{S_T0}, s{S_T0}, 3", f"s_add_u32 s{S_T0}, s{S_T0}, s{S_WV}",
          f"s_lshl_b32 s{S_T0}, s{S_T0}, 8", f"s_add_u32 s{S_T0}, s{S_T0}, {WS_STAMP}", "v_lshlrev_b32 v16, 2, v0",
          f"buffer_store_dword v{V_STAMP}, v16, {sr(S_WS,4)}, s{S_T0} offen")
    if o.get('amp') is not None:
        e("s_waitcnt vmcnt(0)")
        g.stamp(16)
        e(f"s_cmp_lg_u32 s2, {o.get('ampwg',0)}", "s_cbranch_scc1 L_end", f"s_cmp_lg_u32 s{S_WV}, {o.get('ampwave',0)}", "s_cbranch_scc1 L_end",
          "s_sub_u32 s66, s66, s100", "s_mul_i32 s66, s66, 10", "s_memrealtime s[100:101]", "s_waitcnt lgkmcnt(0)", "s_add_u32 s66, s66, s100",
          "L_amp:", "s_memrealtime s[100:101]", "s_waitcnt lgkmcnt(0)", "s_sub_u32 s67, s100, s66", "s_cmp_lt_i32 s67, 0", "s_cbranch_scc1 L_amp")
    e("L_end:", "s_endpgm")

def build(opt):
    g = G(opt)
    if opt.get('stamps') or opt.get('amp') is not None:
        g.e("s_memrealtime s[100:101]")
    prologue(g)
    if opt.get('stamps'):
        pass
    roleT(g); roleS(g); final(g)
    lines = g.L
    if opt.get('stamps'):
        out = []
        for x in lines:
            out.append(x)
            if x in ("L_roleT:", "L_roleS:"):
                out += ["s_waitcnt lgkmcnt(0)", f"v_writelane_b32 v{V_STAMP}, s100, 31"]
        lines = out
    ins, added = fix(lines)
    errs = check_waits(ins)
    for x in errs[:5]: print("WAITCHECK", x, file=sys.stderr)
    ref = open('cdna_kernels/' + KNAME + '.s.ref').read().splitlines() if opt.get('refhdr', True) else []
    hdr = [x for x in ref if x.startswith(';') and '@launch' not in x and 'Override' not in x and 'grid=ceil' not in x]
    txt = "\n".join(hdr) + f"""
; @launch grid=(256,1,1) block=(512,1,1) lds={LDS_BYTES}
.amdgcn_target "amdgcn-amd-amdhsa--gfx950"
.text
.globl {KNAME}_kernel
.p2align 8
.type {KNAME}_kernel,@function
{KNAME}_kernel:
""" + "\n".join((i.text if i.label else "    " + i.text) for i in ins) + f"""
.section .rodata,"a"
.p2align 6
.amdhsa_kernel {KNAME}_kernel
  .amdhsa_next_free_vgpr 256
  .amdhsa_next_free_sgpr 102
  .amdhsa_accum_offset 256
  .amdhsa_group_segment_fixed_size 0
  .amdhsa_kernarg_size 136
  .amdhsa_user_sgpr_count 2
  .amdhsa_user_sgpr_kernarg_segment_ptr 1
  .amdhsa_system_sgpr_workgroup_id_x 1
.end_amdhsa_kernel
"""
    return txt, len([i for i in ins if i.real]), added, errs

if __name__ == '__main__':
    out = sys.argv[1] if len(sys.argv) > 1 else 'k.s'
    opt = eval(sys.argv[2]) if len(sys.argv) > 2 else {}
    txt, n, added, errs = build(opt)
    open(out, 'w').write(txt)
    print(f"{out}: {n} instructions, {added} nops added, {len(errs)} wait errors")
```

```python
import sys
from asmfix import fix, check_waits
KNAME = 'gated_mix__ssm_conv_s5__linear_kernel_hedgehog__prompt'

WS_EPOCH = 0
WS_FLAGS = 0x1000
FL_E, FL_K, FL_H, FL_O = 0, 0x2000, 0x4000, 0x8000
WS_E     = 0x10000
WS_Z     = 0x40000
WS_KV    = 0x80000
REC = 2048
WS_A2H   = 0x200000
WS_A2O   = 0x700000
WS_STAMP = 0xA00000
WS_SIZE  = 0x1000000
TREG = 0x0
SREG = 0x10000
SCR  = 0x20000
L_TFL  = SCR + 0x0
L_SFL  = SCR + 0x10
L_G    = SCR + 0x200
L_GATE = SCR + 0x400
L_WPHI = SCR + 0x800
L_SEGZ = SCR + 0xC00
L_SEG  = SCR + 0x1400
L_ZD   = SCR + 0x1C00
L_BSL  = SCR + 0x2000
L_KVR  = SCR + 0x2000
L_ZR   = SCR + 0x6000
L_KVD  = SCR + 0x6400
L_HP   = SCR + 0x6C00
LDS_BYTES = 0x28000
LOG2E = 0x3fb8aa3b

def vr(a, n=1): return f"v{a}" if n == 1 else f"v[{a}:{a+n-1}]"
def sr(a, n=1): return f"s{a}" if n == 1 else f"s[{a}:{a+n-1}]"

class G:
    def __init__(self, opt):
        self.o = opt; self.L = []; self.vm = []; self.nlab = 0; self.cap = None
    def e(self, *xs):
        for x in xs: (self.L if self.cap is None else self.cap).append(x)
    def capture(self, fn):
        old = self.cap; self.cap = []; fn(); r = self.cap; self.cap = old; return r
    def play(self, items):
        for it in items:
            if isinstance(it, str): self.e(it)
            elif it[0] == 'vm': self.vmem(it[1], it[2])
            elif it[0] == 'wait': self.waitvm(*it[1])
            elif it[0] == 'grp': self.play(it[1])
    def weave(self, main, groups, start=0, end=None):
        end = len(main) if end is None else end
        n = len(groups); out = []; k = 0
        for i, it in enumerate(main):
            while k < n and i >= start + (end-start)*k//n and i >= start:
                out += groups[k]; k += 1
            out.append(it)
        while k < n: out += groups[k]; k += 1
        self.play(out)
    def lab(self, p):
        self.nlab += 1; return f"L_{p}{self.nlab}"
    def vmem(self, text, tag=None):
        if self.cap is not None: self.cap.append(('vm', text, tag)); return
        if tag and any(tag.startswith(x) for x in self.o.get('skip', ())): return
        self.e(text); self.vm.append(tag)
    def waitvm(self, *tags):
        if self.cap is not None: self.cap.append(('wait', tags)); return
        last = max((i for i, t in enumerate(self.vm) if t in tags), default=-1)
        if last < 0: return
        n = len(self.vm) - 1 - last
        assert n <= 63
        self.e(f"s_waitcnt vmcnt({n})")
        self.vm = self.vm[last+1:]
    def waitvm0(self):
        self.e("s_waitcnt vmcnt(0)"); self.vm = []
    def srd(self, d, base, off=None, size=0):
        if off is None:
            self.e(f"s_mov_b32 s{d}, s{base}", f"s_mov_b32 s{d+1}, s{base+1}", f"s_mov_b32 s{d+2}, {size}")
        else:
            self.e(f"s_add_u32 s{d}, s{base}, s{off}", f"s_addc_u32 s{d+1}, s{base+1}, 0", f"s_sub_u32 s{d+2}, {size}, s{off}")
        self.e(f"s_mov_b32 s{d+3}, 0x20000")
    def count(self, w):
        if self.o.get('stamps'): self.e(f"s_add_u32 s{S_FLOFF}, s{S_FLOFF}, {w}")
    def prio(self, key):
        p = self.o.get('prio', {}).get(key)
        if p is not None: self.e(f"s_setprio {p}")
    def stamp(self, i):
        if self.o.get('amp') == i: self.e("s_waitcnt lgkmcnt(0)", "s_memrealtime s[66:67]", "s_waitcnt lgkmcnt(0)")
        if not self.o.get('stamps'): return
        self.e("s_waitcnt lgkmcnt(0)", "s_memrealtime s[100:101]", "s_memtime s[66:67]", "s_waitcnt lgkmcnt(0)", f"v_writelane_b32 v{V_STAMP}, s100, {i}", f"v_writelane_b32 v{V_STAMP}, s66, {i+32}")
    def mfma(self, d, a, b, c=None):
        cc = "0" if c is None else vr(c, 16)
        self.e(f"v_mfma_f32_32x32x16_bf16 {vr(d,16)}, {vr(a,4)}, {vr(b,4)}, {cc}")
    def cvt16(self, dst, src, n=16):
        for q in range(n//2): self.e(f"v_cvt_pk_bf16_f32 v{dst+q}, v{src+2*q}, v{src+2*q+1}")
    def arrive(self, stage, tmp):
        self.e(f"v_mov_b32 v{tmp}, {stage}", "s_mov_b64 exec, 1", f"ds_write_b32 v{V_MYFL}, v{tmp}", "s_mov_b64 exec, -1")
    def rwait(self, stage, tmp):
        l = self.lab('rs')
        self.e(l+":", f"ds_read_b128 {vr(tmp,4)}, v{V_FLB}", "s_waitcnt lgkmcnt(0)",
               f"v_min3_u32 v{tmp}, v{tmp}, v{tmp+1}, v{tmp+2}", f"v_min_u32 v{tmp}, v{tmp}, v{tmp+3}",
               f"v_cmp_gt_u32 vcc, {stage}, v{tmp}", f"s_cbranch_vccnz {l}")
    def setflag(self, soff, tmp, wide=True):
        self.e(f"v_mov_b32 v{tmp}, s{S_NON}")
        if wide: self.e(f"v_mov_b32 v{tmp+1}, s{S_NON+1}")
        self.e("s_mov_b64 exec, 1")
        self.vmem(f"buffer_store_dword{'x2' if wide else ''} {vr(tmp, 2 if wide else 1)}, off, {sr(S_WS,4)}, s{soff} sc1", 'flag')
        self.e("s_mov_b64 exec, -1")
    def poll_issue(self, vaddr, soff, mask, tmp, wide=True, track=True):
        self.e(f"v_mov_b32 v{tmp}, 0")
        if wide: self.e(f"v_mov_b32 v{tmp+1}, 0")
        self.e(f"s_mov_b64 exec, {mask}")
        x = f"buffer_atomic_add{'_x2' if wide else ''} {vr(tmp, 2 if wide else 1)}, v{vaddr}, {sr(S_WS,4)}, s{soff} offen sc0 sc1"
        if track: self.vmem(x, 'poll')
        else: self.e(x)
        self.e("s_mov_b64 exec, -1")
    def poll_wait(self, vaddr, soff, mask, tmp, wide=True, cnt=1):
        l = self.lab('pl'); d = self.lab('pd')
        chk = [f"v_cmp_ne_u64 vcc, {sr(S_NON,2)}, {vr(tmp,2)}" if wide else f"v_cmp_ne_u32 vcc, s{S_NON}, v{tmp}", f"s_and_b64 vcc, vcc, {mask}"]
        self.waitvm('poll')
        self.e(*chk); self.e(f"s_cbranch_scc0 {d}", f"s_mov_b32 s{S_T0}, {self.o.get('timeout', 200000)}", l+":")
        self.count(cnt)
        if self.o.get('psleep', 2): self.e(f"s_sleep {self.o.get('psleep', 2)}")
        self.poll_issue(vaddr, soff, mask, tmp, wide, False)
        self.e(f"s_sub_u32 s{S_T0}, s{S_T0}, 1", "s_waitcnt vmcnt(0)", f"s_cbranch_scc1 {d}")
        self.e(*chk); self.e(f"s_cbranch_scc1 {l}", d+":")

S_WV = 3
S_X, S_A, S_B, S_WK, S_WVv, S_WQ, S_WS, S_OUT = 4, 8, 12, 16, 20, 24, 28, 32
P_X, P_LRE, P_LIM, P_BRE, P_BIM, P_CRE, P_CIM, P_LDT = 36, 38, 40, 42, 44, 46, 48, 50
P_DSK, P_BX, P_WQKV, P_WPHI, P_WO, P_GATE, P_OUT, P_DBG, P_WS = 52, 54, 56, 58, 60, 62, 64, 66, 68
S_KX = 70
S_KW = 78
S_NON = 86
S_C, S_J, S_W, S_R0 = 88, 89, 90, 91
S_FLOFF = 92
S_NN = 84
S_M0B = 93
S_T0, S_T1, S_T2, S_T3 = 94, 95, 96, 97
S_M = 98
S_EP = 54
S_DS = 55
V_LANE = 0
V_MYFL, V_FLB, V_L16, V_STAMP = 1, 2, 3, 4
V_FX = 10

def prologue(g):
    e = g.e; o = g.o
    e("s_cmp_ge_u32 s2, 256", "s_cbranch_scc1 L_end")
    e(f"s_load_dwordx16 s[36:51], s[0:1], 0", f"s_load_dwordx16 s[52:67], s[0:1], 64", f"s_load_dwordx2 s[68:69], s[0:1], 128")
    e("v_lshrrev_b32 v1, 6, v0", "v_and_b32 v0, 63, v0", f"v_readfirstlane_b32 s{S_WV}, v1")
    e(f"s_and_b32 s{S_T0}, s2, 3", f"s_lshl_b32 s{S_T0}, s{S_T0}, 2", f"s_bfe_u32 s{S_C}, s2, 0x20003", f"s_add_u32 s{S_C}, s{S_C}, s{S_T0}")
    e(f"s_and_b32 s{S_T0}, s2, 4", f"s_lshl_b32 s{S_T0}, s{S_T0}, 1", f"s_lshr_b32 s{S_J}, s2, 5", f"s_add_u32 s{S_J}, s{S_J}, s{S_T0}")
    e(f"s_and_b32 s{S_W}, s{S_WV}, 3")
    ra, rb_, rx, ry = o.get('rot', (2, 1, 0, 0))
    e(f"s_mul_i32 s{S_R0}, s{S_J}, {rb_}")
    if ra: e(f"s_mul_i32 s{S_T0}, s{S_C}, {ra}", f"s_add_u32 s{S_R0}, s{S_R0}, s{S_T0}")
    if rx: e(f"s_lshr_b32 s{S_T0}, s{S_C}, 2", f"s_mul_i32 s{S_T0}, s{S_T0}, {rx}", f"s_add_u32 s{S_R0}, s{S_R0}, s{S_T0}")
    if ry: e(f"s_lshr_b32 s{S_T0}, s{S_J}, 3", f"s_mul_i32 s{S_T0}, s{S_T0}, {ry}", f"s_add_u32 s{S_R0}, s{S_R0}, s{S_T0}")
    e(f"s_and_b32 s{S_R0}, s{S_R0}, 7")
    e(f"v_lshlrev_b32 v{V_L16}, 4, v0")
    if o.get('stamps'): e(f"v_mov_b32 v{V_STAMP}, 0", f"s_mov_b32 s{S_FLOFF}, 0")
    e(f"s_lshl_b32 s{S_M}, s{S_W}, 12", f"s_add_u32 s{S_M}, s{S_M}, {SREG}")
    e(f"s_cmp_lt_u32 s{S_WV}, 4", "s_cbranch_scc1 L_roleT")

def common_late(g):
    e = g.e
    e(f"s_lshl_b32 s{S_T0}, s{S_WV}, 2", f"s_add_u32 s{S_T0}, s{S_T0}, {L_TFL}", f"v_mov_b32 v{V_MYFL}, s{S_T0}",
      f"s_and_b32 s{S_T0}, s{S_T0}, 0xfffffff0", f"v_mov_b32 v{V_FLB}, s{S_T0}")

def scalar_prefetch(g, items):
    e = g.e
    e(f"s_lshl_b32 s{S_T0}, s2, 2", f"s_add_u32 s{S_T0}, s{S_T0}, s{S_W}")
    k = 0
    for pp, stride, first, n, ls in items:
        e(f"s_mul_i32 s{S_T1}, s{S_T0}, {stride}", f"s_add_u32 s{S_OUT}, s{pp}, s{S_T1}", f"s_addc_u32 s{S_OUT+1}, s{pp+1}, 0")
        for i in range(n):
            e(f"s_load_dword s{S_DS}, {sr(S_OUT,2)}, {first+ls*i} ; touch")

def nonce(g):
    g.e(f"s_mul_i32 s{S_NON}, s{S_EP}, 1664525", f"s_add_u32 s{S_NON}, s{S_NON}, 1013904223",
        f"s_mul_i32 s{S_NON+1}, s{S_EP}, 22695477", f"s_add_u32 s{S_NON+1}, s{S_NON+1}, 0x9e3779b9")

def frag_addr(g, dst, tmp, base_s=None, base_c=0):
    e = g.e
    e(f"v_and_b32 v{tmp}, 31, v0", f"v_lshlrev_b32 v{dst}, 7, v{tmp}", f"v_bfe_u32 v{tmp}, v0, 1, 3", f"v_lshrrev_b32 v{tmp+1}, 5, v0",
      f"v_xor_b32 v{tmp}, v{tmp}, v{tmp+1}", f"v_lshl_add_u32 v{dst}, v{tmp}, 4, v{dst}")
    if base_s is not None: e(f"v_add_u32 v{dst}, s{base_s}, v{dst}")
    if base_c: e(f"v_add_u32 v{dst}, {base_c}, v{dst}")
    for k in range(1, 4): e(f"v_xor_b32 v{dst+k}, {32*k}, v{dst}")

def make_sel(g, dst, tmp):
    e = g.e
    e(f"v_bfe_u32 v{tmp}, v0, 3, 2", f"v_and_b32 v{tmp+1}, 3, v0", f"v_lshl_add_u32 v{tmp}, v{tmp}, 2, v{tmp+1}",
      f"v_bfe_u32 v{tmp+1}, v0, 2, 1", f"v_lshrrev_b32 v{tmp+2}, 5, v0", f"v_xor_b32 v{tmp+1}, v{tmp+1}, v{tmp+2}",
      f"v_lshl_add_u32 v{tmp}, v{tmp+1}, 4, v{tmp}",
      f"v_and_b32 v{tmp+1}, 1, v0", f"v_lshlrev_b32 v{tmp+1}, 4, v{tmp+1}", f"v_mov_b32 v{tmp+2}, 0x3f80",
      f"v_lshlrev_b32 v{tmp+1}, v{tmp+1}, v{tmp+2}", f"v_lshrrev_b32 v{tmp}, 1, v{tmp}")
    for q in range(8):
        e(f"v_cmp_eq_u32 vcc, {q}, v{tmp}", f"v_cndmask_b32 v{dst+q}, 0, v{tmp+1}, vcc")

def rowhalf(g, d):
    if g.o.get('sig8'): g.e(f"s_lshr_b32 s{d}, s{S_J}, 3")
    else: g.e(f"s_and_b32 s{d}, s{S_J}, 1")
def colblk(g, d):
    if g.o.get('sig8'): g.e(f"s_and_b32 s{d}, s{S_J}, 7")
    else: g.e(f"s_lshr_b32 s{d}, s{S_J}, 1")

def final_preload(g, tmp):
    e = g.e
    rowhalf(g, S_T1)
    e(f"s_lshl_b32 s{S_T0}, s{S_C}, 7", f"s_lshl_b32 s{S_T1}, s{S_T1}, 6", f"s_add_u32 s{S_T0}, s{S_T0}, s{S_T1}",
      f"s_lshr_b32 s{S_T1}, s{S_WV}, 2", f"s_lshl_b32 s{S_T1}, s{S_T1}, 5", f"s_add_u32 s{S_T0}, s{S_T0}, s{S_T1}",
      f"s_lshl_b32 s{S_T1}, s{S_W}, 2", f"s_add_u32 s{S_T0}, s{S_T0}, s{S_T1}", f"s_lshl_b32 s{S_T0}, s{S_T0}, 10")
    colblk(g, S_T1); e(f"s_lshl_b32 s{S_T1}, s{S_T1}, 7")
    e(f"v_and_b32 v{tmp}, 15, v0", f"v_lshlrev_b32 v{tmp}, 3, v{tmp}", f"v_add_u32 v{tmp}, s{S_T1}, v{tmp}",
      f"v_lshrrev_b32 v5, 4, v0", f"v_lshl_add_u32 v5, v5, 10, v{tmp}", f"v_add_u32 v5, s{S_T0}, v5", f"v_add_u32 v{tmp+1}, 0x4000, v5")
    g.vmem(f"global_load_dwordx2 {vr(V_FX,2)}, v5, {sr(P_X,2)}", 'fin')
    g.vmem(f"global_load_dwordx2 {vr(V_FX+2,2)}, v{tmp+1}, {sr(P_X,2)}", 'fin')
    g.vmem(f"global_load_dwordx2 {vr(V_FX+4,2)}, v{tmp}, {sr(P_DSK,2)}", 'fin')

def part_addr(g, dst, tmp, base_s):
    e = g.e
    e(f"v_and_b32 v{tmp}, 31, v0", f"v_lshlrev_b32 v{dst}, 8, v{tmp}", f"v_and_b32 v{tmp}, 7, v0", f"v_lshrrev_b32 v{tmp+1}, 5, v0",
      f"v_xor_b32 v{tmp}, v{tmp}, v{tmp+1}", f"v_lshl_add_u32 v{dst}, v{tmp}, 4, v{dst}", f"v_add_u32 v{dst}, s{base_s}, v{dst}")
    for k in range(1, 4): e(f"v_xor_b32 v{dst+k}, {32*k}, v{dst}")

def softmax(g, p, out, tmp):
    e = g.e
    e(f"v_max3_f32 v{tmp}, v{p}, v{p+1}, v{p+2}")
    for i in range(3, 15, 2): e(f"v_max3_f32 v{tmp}, v{tmp}, v{p+i}, v{p+i+1}")
    e(f"v_max_f32 v{tmp}, v{tmp}, v{p+15}", f"v_mul_f32 v{tmp}, s{S_T3}, v{tmp}")
    for i in range(0, 16, 2):
        e(f"v_pk_fma_f32 {vr(p+i,2)}, {vr(p+i,2)}, {sr(S_T2,2)}, {vr(tmp,2)} op_sel_hi:[1,0,0]")
    for i in range(16): e(f"v_exp_f32 v{p+i}, v{p+i}")
    e(f"v_pk_add_f32 {vr(tmp,2)}, {vr(p,2)}, {vr(p+2,2)}", f"v_pk_add_f32 {vr(tmp+2,2)}, {vr(p+4,2)}, {vr(p+6,2)}")
    e(f"v_pk_add_f32 {vr(tmp,2)}, {vr(tmp,2)}, {vr(p+8,2)}", f"v_pk_add_f32 {vr(tmp+2,2)}, {vr(tmp+2,2)}, {vr(p+10,2)}")
    e(f"v_pk_add_f32 {vr(tmp,2)}, {vr(tmp,2)}, {vr(p+12,2)}", f"v_pk_add_f32 {vr(tmp+2,2)}, {vr(tmp+2,2)}, {vr(p+14,2)}")
    e(f"v_pk_add_f32 {vr(tmp,2)}, {vr(tmp,2)}, {vr(tmp+2,2)}", f"v_add_f32 v{tmp}, v{tmp}, v{tmp+1}", f"v_rcp_f32 v{tmp}, v{tmp}")
    for i in range(0, 16, 2):
        e(f"v_pk_mul_f32 {vr(p+i,2)}, {vr(p+i,2)}, {vr(tmp,2)} op_sel_hi:[1,0]")
    g.cvt16(out, p)

def softmax_np(g, p, out, tmp):
    e = g.e
    e(f"v_max3_f32 v{tmp}, v{p}, v{p+1}, v{p+2}")
    for i in range(3, 15, 2): e(f"v_max3_f32 v{tmp}, v{tmp}, v{p+i}, v{p+i+1}")
    e(f"v_max_f32 v{tmp}, v{tmp}, v{p+15}", f"v_mul_f32 v{tmp}, s{S_T3}, v{tmp}")
    e(f"v_fma_f32 v{p}, v{p}, s{S_T2}, v{tmp}", f"v_fma_f32 v{p+1}, v{p+1}, s{S_T2}, v{tmp}")
    for i in range(16):
        e(f"v_exp_f32 v{p+i}, v{p+i}")
        if i+2 < 16: e(f"v_fma_f32 v{p+i+2}, v{p+i+2}, s{S_T2}, v{tmp}")
        if i == 2: e(f"v_add_f32 v{tmp+1}, v{p}, v{p+1}")
        elif i > 2: e(f"v_add_f32 v{tmp+1}, v{tmp+1}, v{p+i-1}")
    e(f"v_add_f32 v{tmp+1}, v{tmp+1}, v{p+15}", f"v_rcp_f32 v{tmp+1}, v{tmp+1}")
    for i in range(0, 16, 2):
        e(f"v_mul_f32 v{p+i}, v{p+i}, v{tmp+1}", f"v_mul_f32 v{p+i+1}, v{p+i+1}, v{tmp+1}", f"v_cvt_pk_bf16_f32 v{out+i//2}, v{p+i}, v{p+i+1}")

def sum16(g, p, tmp):
    e = g.e
    e(f"v_pk_add_f32 {vr(tmp,2)}, {vr(p,2)}, {vr(p+2,2)}", f"v_pk_add_f32 {vr(tmp+2,2)}, {vr(p+4,2)}, {vr(p+6,2)}")
    e(f"v_pk_add_f32 {vr(tmp,2)}, {vr(tmp,2)}, {vr(p+8,2)}", f"v_pk_add_f32 {vr(tmp+2,2)}, {vr(tmp+2,2)}, {vr(p+10,2)}")
    e(f"v_pk_add_f32 {vr(tmp,2)}, {vr(tmp,2)}, {vr(p+12,2)}", f"v_pk_add_f32 {vr(tmp+2,2)}, {vr(tmp+2,2)}, {vr(p+14,2)}")
    e(f"v_pk_add_f32 {vr(tmp,2)}, {vr(tmp,2)}, {vr(tmp+2,2)}", f"v_add_f32 v{tmp}, v{tmp}, v{tmp+1}")

def epoch_load(g, v):
    g.e(f"v_mov_b32 v{v}, {WS_EPOCH}")
    g.vmem(f"global_load_dword v{v}, v{v}, {sr(P_WS,2)} sc1", 'ep')
def epoch_use(g, v):
    g.e(f"v_readfirstlane_b32 s{S_EP}, v{v}"); nonce(g)

def roleT(g):
    e = g.e; o = g.o
    g.vm = []
    X = 128
    VXO = 6
    VBO = 5
    VWO = 10
    VXA = 12
    VTR = 11
    WPA, WPB, SEL = 16, 20, 24
    ACC, RING, KP, DA, DB, PA, PB = 32, 48, 72, 80, 96, 112, 120
    e("L_roleT:")
    def slice_offs(s):
        e(f"s_add_u32 s{S_T0}, s{S_R0}, {s}", f"s_and_b32 s{S_T0}, s{S_T0}, 7", f"s_lshl_b32 s{S_KX+s}, s{S_T0}, 7", f"s_mul_i32 s{S_KW+s}, s{S_T0}, {64*3072}")
    for s in range(2): slice_offs(s)
    e("v_lshrrev_b32 v32, 5, v0", "v_bfe_u32 v33, v0, 3, 2", "v_and_b32 v34, 7, v0", "v_lshrrev_b32 v35, 4, v0", "v_xor_b32 v34, v34, v35", "v_lshlrev_b32 v34, 4, v34")
    e("v_lshl_add_u32 v36, v32, 4, v33", f"v_lshl_add_u32 v{VXO}, v36, 10, v34")
    e(f"v_xor_b32 v{VXO+1}, 64, v{VXO}", f"v_add_u32 v{VXO+2}, {2*3072}, v{VXO}", f"v_add_u32 v{VXO+3}, {3*3072}, v{VXO+1}", f"v_add_u32 v{VXO+1}, 3072, v{VXO+1}")
    e("v_lshl_add_u32 v36, v32, 3, v33", f"v_lshl_add_u32 v{VBO}, v36, 10, v34")
    e(f"s_and_b32 s{S_T0}, s{S_W}, 1", f"s_lshl_b32 s{S_T1}, s{S_T0}, 6", f"v_xor_b32 v{VBO}, s{S_T1}, v{VBO}",
      f"s_lshl_b32 s{S_T0}, s{S_T0}, 12", f"s_lshr_b32 s{S_T1}, s{S_W}, 1", f"s_lshl_b32 s{S_T1}, s{S_T1}, 14", f"s_add_u32 s{S_T0}, s{S_T0}, s{S_T1}",
      f"s_lshl_b32 s{S_T1}, s{S_J}, 15", f"s_add_u32 s{S_T2}, s{S_T0}, s{S_T1}")
    e(f"s_lshl_b32 s{S_T0}, s{S_C}, 17", f"s_lshl_b32 s{S_T1}, s{S_W}, 15", f"s_add_u32 s{S_T3}, s{S_T0}, s{S_T1}")
    e(f"s_lshl_b32 s{S_M0B}, s{S_W}, 10")
    e(f"v_lshrrev_b32 v36, 2, v0", f"v_mul_u32_u24 v36, 3072, v36", f"v_and_b32 v37, 3, v0", f"v_lshl_add_u32 v{VWO}, v37, 4, v36")
    e(f"s_mul_i32 s{S_T0}, s{S_W}, {16*3072}", f"s_lshl_b32 s{S_T1}, s{S_J}, 6", f"s_add_u32 s{S_T0}, s{S_T0}, s{S_T1}", f"s_add_u32 s{S_M+1}, s{S_T0}, 1024")
    for d, sz in ((S_X, 2097152), (S_A, 524288), (S_B, 524288), (S_WK, 1572864)):
        off = {S_X: S_T3, S_A: S_T2, S_B: S_T2, S_WK: S_M+1}[d]
        e(f"s_sub_u32 s{d+2}, {sz}, s{off}", f"s_mov_b32 s{d+3}, 0x20000")
    e(f"s_mov_b32 m0, s{S_M}")
    e("s_waitcnt lgkmcnt(0)")
    def base(d, p, off): e(f"s_add_u32 s{d}, s{p}, s{off}", f"s_addc_u32 s{d+1}, s{p+1}, 0")
    def dma_x(s, rng=range(4), setm0=True):
        if setm0: e(f"s_add_u32 m0, s{S_M}, {(s&3)*16384}")
        for gg in rng:
            g.vmem(f"buffer_load_dwordx4 v{VXO+gg}, {sr(S_X,4)}, s{S_KX+s} offen offset:{1024*gg} lds", f'x{s}')
    def dma_b(s):
        for part in range(2):
            e(f"s_add_u32 m0, s{S_M0B}, {L_BSL + (s%3)*8192 + part*4096}")
            g.vmem(f"buffer_load_dwordx4 v{VBO}, {sr(S_A if part==0 else S_B,4)}, s{S_KX+s} offen lds", f'x{s}')
    def dma_w(srd, slot, s, tag):
        e(f"s_add_u32 m0, s{S_M0B}, {TREG + slot*32768 + s*4096}")
        g.vmem(f"buffer_load_dwordx4 v{VWO}, {sr(srd,4)}, s{S_KW+s} offen lds", tag)
    def wgroups(srd, slot, tag, rng): return [g.capture(lambda s=s: dma_w(srd, slot, s, tag)) for s in rng]
    base(S_X, P_X, S_T3); dma_x(0, setm0=False)
    base(S_A, P_BRE, S_T2); base(S_B, P_BIM, S_T2); dma_b(0)
    base(S_WK, P_WQKV, S_M+1); dma_w(S_WK, 0, 0, 'x0')
    n1 = o.get('x1_pre', 2)
    dma_x(1, range(n1))
    if o.get('spre'): scalar_prefetch(g, [(P_CRE, 512, 0, 4, 128), (P_CIM, 512, 0, 4, 128)])
    for s in range(2, 8): slice_offs(s)
    e(f"v_add_u32 v113, {L_GATE}, v34")
    frag_addr(g, VXA, 32, base_s=S_M)
    e("v_lshrrev_b32 v32, 5, v0", "v_bfe_u32 v33, v0, 2, 2", "v_lshl_add_u32 v32, v32, 3, v33", "v_bfe_u32 v34, v0, 4, 1",
      f"v_lshlrev_b32 v{VTR}, 6, v32", f"v_lshl_add_u32 v{VTR}, v34, 5, v{VTR}", "v_and_b32 v35, 1, v0", f"v_lshl_add_u32 v{VTR}, v35, 4, v{VTR}",
      "v_bfe_u32 v35, v0, 1, 1", f"v_lshl_add_u32 v{VTR}, v35, 3, v{VTR}")
    e("v_lshlrev_b32 v112, 5, v32", "v_lshl_add_u32 v112, v34, 4, v112", "v_lshl_add_u32 v112, v35, 3, v112", f"v_add_u32 v112, {L_WPHI}, v112")
    rowhalf(g, S_T0)
    e(f"s_lshl_b32 s{S_T0}, s{S_T0}, 13", f"s_lshl_b32 s{S_T1}, s{S_W}, 11", f"s_add_u32 s{S_T0}, s{S_T0}, s{S_T1}", f"s_add_u32 s{S_T0}, s{S_T0}, {SREG}",
      f"v_add_u32 v115, s{S_T0}, v{V_L16}", "v_xor_b32 v116, 64, v115", "v_mov_b32 v118, 0", "v_mov_b32 v119, 0")
    e(f"s_sub_u32 s{S_T0}, s{S_M+1}, 1024"); g.srd(S_WQ, P_WQKV, S_T0, 1572864)
    e(f"s_add_u32 s{S_T0}, s{S_M+1}, 1024"); g.srd(S_WVv, P_WQKV, S_T0, 1572864)
    g.srd(S_WS, P_WS, None, WS_SIZE)
    common_late(g)
    make_sel(g, SEL, 32)
    g.arrive(0, 32)
    e(f"s_mov_b32 s{S_T2}, {LOG2E}", f"s_mov_b32 s{S_T3}, {LOG2E | 0x80000000}")
    g.stamp(0)
    dma_x(1, range(n1, 4), setm0=False); dma_b(1); dma_w(S_WK, 0, 1, 'x1')
    GB = 48
    WB = 80
    def gate_rd(s):
        b = GB+12*(s & 1)
        e(f"ds_read_b128 {vr(b,4)}, v115 offset:{(s&3)*16384}", f"ds_read_b128 {vr(b+4,4)}, v116 offset:{(s&3)*16384+1024}", f"ds_read_b128 {vr(b+8,4)}, v113 offset:{s*128}")
    def gate_dot(s):
        b = GB+12*(s & 1)
        for q in range(4): e(f"v_dot2c_f32_bf16 v118, v{b+q}, v{b+8+q}", f"v_dot2c_f32_bf16 v119, v{b+4+q}, v{b+8+q}")
    def kmm(s, k): g.mfma(ACC, WB+16*(s & 1)+4*k, X+16*s+4*k, None if (s == 0 and k == 0) else ACC)
    wv = wgroups(S_WVv, 1, 'wv', range(8))
    for s in range(8):
        g.waitvm(f'x{s}')
        e("s_waitcnt lgkmcnt(0)", "s_barrier")
        if s == 0: g.stamp(1)
        def issue():
            if s+2 < 8: dma_x(s+2); dma_b(s+2); dma_w(S_WK, 0, s+2, f'x{s+2}')
            if s == 0: epoch_load(g, 114)
            for _ in range(o.get('wv_sched', {6: 4, 7: 4}).get(s, 0)): g.play(wv.pop(0))
        if not o.get('dma_late'): issue()
        for k in range(4):
            if s > 0: kmm(s-1, k)
            e(f"ds_read_b128 {vr(X+16*s+4*k,4)}, v{VXA+k} offset:{(s&3)*16384}")
            for i in range(2): e(f"ds_read_b64_tr_b16 {vr(WB+16*(s&1)+4*k+2*i,2)}, v{VTR} offset:{TREG+(4*s+k)*1024+i*256}")
        if s >= 1: gate_rd(s-1)
        if o.get('dma_late'): issue()
        if s >= 2: gate_dot(s-2)
        if s == 2:
            for hd, dst in ((0, WPA), (1, WPB)):
                for i in range(2): e(f"ds_read_b64_tr_b16 {vr(dst+2*i,2)}, v112 offset:{hd*512+i*128}")
        if s == 3:
            epoch_use(g, 114)
            e("v_bfe_u32 v112, v0, 2, 1", "v_mul_u32_u24 v112, 0x8000, v112", "v_lshl_or_b32 v112, v112, 16, v112")
            for q in range(8): e(f"v_xor_b32 v{WPA+q}, v{WPA+q}, v112")
    e("s_waitcnt lgkmcnt(0)")
    for k in range(4): kmm(7, k)
    gate_rd(7); gate_dot(6)
    while wv: g.play(wv.pop(0))
    g.stamp(2)
    g.cvt16(KP, ACC, 8); g.mfma(DA, WPA, KP); g.cvt16(KP+4, ACC+8, 8); g.mfma(DB, WPB, KP+4)
    e("s_waitcnt lgkmcnt(0)"); gate_dot(7)
    e("v_lshrrev_b32 v113, 3, v0", f"s_lshl_b32 s{S_T0}, s{S_W}, 6", f"s_add_u32 s{S_T0}, s{S_T0}, {L_G}", f"v_lshl_add_u32 v113, v113, 2, s{S_T0}")
    for md in ("quad_perm:[1,0,3,2]", "quad_perm:[2,3,0,1]", "row_half_mirror"):
        e(f"v_add_f32_dpp v118, v118, v118 {md} row_mask:0xf bank_mask:0xf", f"v_add_f32_dpp v119, v119, v119 {md} row_mask:0xf bank_mask:0xf")
    e(f"v_mul_f32 v118, s{S_T3}, v118", f"v_mul_f32 v119, s{S_T3}, v119", "v_exp_f32 v118, v118", "v_exp_f32 v119, v119", "v_add_f32 v118, 1.0, v118", "v_add_f32 v119, 1.0, v119",
      "v_rcp_f32 v118, v118", "v_rcp_f32 v119, v119", "ds_write_b32 v113, v118", "ds_write_b32 v113, v119 offset:32")
    def wgemm(slot, transposed, groups=(), k0=0, k1=32, fill=()):
        D = 6
        groups = list(groups); n = len(groups); k = 0; fill = list(fill); nf = len(fill); kf = 0
        def rd(ks):
            for i in range(2): e(f"ds_read_b64_tr_b16 {vr(RING+4*(ks%D)+2*i,2)}, v{VTR} offset:{TREG+slot*32768+ks*1024+i*256}")
        for ks in range(D-1): rd(ks)
        for ks in range(32):
            if ks+D-1 < 32: rd(ks+D-1)
            upto = nf*(ks+1)//32
            if ks == 0:
                g.play(fill[:upto]); kf = upto
            e(f"s_waitcnt lgkmcnt({2*min(D-1, 31-ks)})")
            w = RING+4*(ks%D); x = X+4*ks
            if transposed: g.mfma(ACC, w, x, None if ks == 0 else ACC)
            else: g.mfma(ACC, x, w, None if ks == 0 else ACC)
            while k < n and ks >= k0 + (k1-k0)*k//n: g.play(groups[k]); k += 1
            upto = min(nf, nf*(ks+2)//32)
            g.play(fill[kf:upto]); kf = max(kf, upto)
    S_KVG, S_ZG, S_KVP, S_ZP, S_WOM, S_OST, S_NM = S_KX, S_KX+1, S_KX+2, S_KX+3, S_KX+4, S_KX+5, S_KX+6
    VKW, VKR, VZR, VZ8 = 12, 13, 14, 15
    VA, VB, ZT = 80, 88, 76
    def su1():
        e(f"s_mov_b32 s{S_M}, 0xffff", f"s_mov_b32 s{S_M+1}, 0xffff", f"s_mov_b32 s{S_NM}, 0xffff0000", f"s_mov_b32 s{S_NM+1}, 0xffff0000")
        e(f"s_add_u32 s{S_T0}, s{S_M0B}, {L_KVR}", f"v_add_u32 v{VKW}, s{S_T0}, v{V_L16}")
    def su2():
        e(f"s_lshl_b32 s{S_T0}, s{S_W}, 12", f"s_add_u32 s{S_T0}, s{S_T0}, {L_KVR}", f"v_add_u32 v{VKR}, s{S_T0}, v{V_L16}")
    def su3():
        e(f"s_lshl_b32 s{S_T0}, s{S_W}, 6", f"s_add_u32 s{S_T0}, s{S_T0}, {L_ZR}", f"v_and_b32 v{VZ8}, 15, v0", f"v_lshl_add_u32 v{VZR}, v{VZ8}, 2, s{S_T0}", f"v_lshlrev_b32 v{VZ8}, 3, v0")
    def su4():
        e(f"s_lshl_b32 s{S_T0}, s{S_J}, 2", f"s_add_u32 s{S_T0}, s{S_T0}, s{S_W}", f"s_lshl_b32 s{S_KVG}, s{S_T0}, 14", f"s_add_u32 s{S_KVG}, s{S_KVG}, {WS_KV}",
          f"s_lshl_b32 s{S_ZG}, s{S_T0}, 11", f"s_add_u32 s{S_ZG}, s{S_ZG}, {WS_Z}")
    def su5():
        e(f"s_lshl_b32 s{S_T0}, s{S_C}, 10", f"s_add_u32 s{S_KVP}, s{S_KVG}, s{S_T0}", f"s_lshl_b32 s{S_T0}, s{S_C}, 7", f"s_add_u32 s{S_ZP}, s{S_ZG}, s{S_T0}")
    def su5b():
        e(f"s_lshl_b32 s{S_T0}, s{S_J}, 2", f"s_add_u32 s{S_T0}, s{S_T0}, s{S_W}", f"s_lshl_b32 s{S_T0}, s{S_T0}, 7", f"s_add_u32 s{S_B}, s{S_T0}, {WS_FLAGS+FL_K}",
          f"s_lshl_b32 s{S_T0}, s{S_C}, 2", f"s_add_u32 s{S_B+1}, s{S_B}, s{S_T0}")
    def su6():
        colblk(g, S_T1)
        e(f"s_lshl_b32 s{S_T0}, s{S_W}, 16", f"s_lshl_b32 s{S_T1}, s{S_T1}, 7", f"s_add_u32 s{S_T0}, s{S_T0}, s{S_T1}")
        g.srd(S_A, P_WO, S_T0, 524288)
    def su7():
        e(f"v_lshrrev_b32 v{VXO}, 3, v0", f"v_lshlrev_b32 v{VXO}, 10, v{VXO}", f"v_and_b32 v{VXO+1}, 7, v0", f"v_bfe_u32 v{VXO+2}, v0, 4, 1")
        e(f"v_lshlrev_b32 v{VXO+2}, 2, v{VXO+2}", f"v_xor_b32 v{VXO+1}, v{VXO+1}, v{VXO+2}", f"v_lshl_add_u32 v{VXO}, v{VXO+1}, 4, v{VXO}")
        for k in range(1, 4): e(f"v_add_u32 v{VXO+k}, {7168*k}, v{VXO}")
        e(f"s_lshl_b32 s{S_WOM}, s{S_W}, 13")
    def su10():
        e(f"s_lshl_b32 s{S_T0}, s{S_C}, 2", f"s_add_u32 s{S_T0}, s{S_T0}, s{S_W}", f"s_lshl_b32 s{S_T0}, s{S_T0}, 4", f"s_add_u32 s{S_T0}, s{S_T0}, s{S_J}",
          f"s_mul_i32 s{S_T0}, s{S_T0}, {REC}", f"s_add_u32 s{S_OST}, s{S_T0}, {WS_A2O}")
    for f in (su1, su2, su3, su4, su5, su5b): f()
    e(f"s_mov_b32 s{S_DS}, 0x3f803f80", f"s_lshl_b32 s{S_T0}, s{S_W}, 8", f"s_add_u32 s{S_T0}, s{S_T0}, {L_ZR}", f"v_lshl_add_u32 v{VBO}, v0, 2, s{S_T0}")
    def phik():
        softmax_np(g, DA, PA, KP)
        g.mfma(DA, PA, SEL); g.mfma(DA, PA+4, SEL+4, DA)
        softmax_np(g, DB, PB, KP)
        g.mfma(DB, PB, SEL); g.mfma(DB, PB+4, SEL+4, DB)
        e(f"v_mov_b32 v{ZT}, 0", f"v_mov_b32 v{ZT+1}, 0")
        g.cvt16(PA, DA)
        for q in range(16): e(f"v_mov_b32 v{VA+q}, 0")
        g.cvt16(PB, DB)
        for q in range(8): e(f"v_dot2c_f32_bf16 v{ZT}, s{S_DS}, v{PA+q}", f"v_dot2c_f32_bf16 v{ZT+1}, s{S_DS}, v{PB+q}")
    fill = g.capture(phik)
    npre = o.get('sm_pre', 30)
    g.play(fill[:npre]); fill = fill[npre:]
    g.waitvm('wv'); e("s_barrier"); g.prio('t_b8')
    g.stamp(3)
    if o.get('onlyS'):
        final_preload(g, 34); final_setup(g); e("s_branch L_final")
    wgemm(1, False, wgroups(S_WQ, 0, 'wq', range(8)), o.get('wq_start', 8), o.get('wq_end', 26), fill)
    g.stamp(5)
    e(f"v_permlane32_swap_b32 v{ZT}, v{ZT+1}", f"v_add_f32 v{ZT}, v{ZT}, v{ZT+1}", f"ds_write_b32 v{VBO}, v{ZT}")
    for a in range(2):
        e(f"s_mov_b64 exec, {sr(S_M,2)}"); g.cvt16(VA+4*a, ACC+8*a, 8)
        e(f"s_mov_b64 exec, {sr(S_NM,2)}"); g.cvt16(VB+4*a, ACC+8*a, 8)
        e("s_mov_b64 exec, -1")
        g.mfma(DB, PA+4*a, VA+4*a, None if a == 0 else DB); g.mfma(DB, PB+4*a, VB+4*a, DB)
    su6(); su10()
    g.waitvm('wq')
    for q in range(4): e(f"ds_write_b128 v{VKW}, {vr(DB+4*q,4)} offset:{q*4096}")
    g.arrive(3, RING); su7(); g.rwait(3, RING)
    for q in range(4): e(f"ds_read_b128 {vr(DB+4*q,4)}, v{VKR} offset:{q*1024}")
    for q in range(4): e(f"ds_read_b32 v{KP+q}, v{VZR} offset:{q*256}")
    e("s_waitcnt lgkmcnt(6)")
    e(f"v_pk_add_f32 {vr(DB,2)}, {vr(DB,2)}, {vr(DB+4,2)}", f"v_pk_add_f32 {vr(DB+2,2)}, {vr(DB+2,2)}, {vr(DB+6,2)}", "s_waitcnt lgkmcnt(4)",
      f"v_pk_add_f32 {vr(DB+8,2)}, {vr(DB+8,2)}, {vr(DB+12,2)}", f"v_pk_add_f32 {vr(DB+10,2)}, {vr(DB+10,2)}, {vr(DB+14,2)}",
      f"v_pk_add_f32 {vr(DB+2,2)}, {vr(DB+2,2)}, {vr(DB+10,2)}", f"v_pk_add_f32 {vr(DB,2)}, {vr(DB,2)}, {vr(DB+8,2)}",
      f"v_cvt_pk_bf16_f32 v{DB+2}, v{DB+2}, v{DB+3}", f"v_mov_b32 v{DB+3}, s{S_NON}")
    g.vmem(f"buffer_store_dwordx4 {vr(DB,4)}, v{V_L16}, {sr(S_WS,4)}, s{S_KVP} offen sc1", 'kvst')
    e("s_waitcnt lgkmcnt(0)", f"v_pk_add_f32 {vr(KP,2)}, {vr(KP,2)}, {vr(KP+2,2)}", f"v_add_f32 v{KP}, v{KP}, v{KP+1}", f"v_mov_b32 v{KP+1}, s{S_NON}", "s_mov_b64 exec, 0xffff")
    g.vmem(f"buffer_store_dwordx2 {vr(KP,2)}, v{VZ8}, {sr(S_WS,4)}, s{S_ZP} offen sc1", 'kvst')
    e("s_mov_b64 exec, 1")
    g.vmem(f"buffer_store_dword v{KP+1}, off, {sr(S_WS,4)}, s{S_B+1} sc1", 'kvst')
    e("s_mov_b64 exec, -1", f"v_lshlrev_b32 v{VBO}, 2, v0")
    g.stamp(6)
    def wo_groups(kh):
        r = []
        for q in range(8):
            def f(q=q):
                if q % 4 == 0: e(f"s_add_u32 m0, s{S_WOM}, {TREG + kh*32768 + q*1024}", f"s_mov_b32 s{S_DS}, {kh*262144 + q*8192}")
                g.vmem(f"buffer_load_dwordx4 v{VXO+q%4}, {sr(S_A,4)}, s{S_DS} offen offset:{1024*(q%4)} lds", f'wo')
            r.append(g.capture(f))
        return r
    g.prio('t_q')
    wo1 = wo_groups(1)
    kpoll = g.capture(lambda: g.poll_issue(VBO, S_B, '0xffff', VKW, False))
    if o.get('wo1_at', 1) == 0:
        wgemm(0, True, wo1+[kpoll], o.get('wo1_start', 0), o.get('wo1_end', 24)); wo1 = []
    else: wgemm(0, True, [kpoll], o.get('kpoll_at', 16))
    g.arrive(4, RING); g.prio('t_g')
    g.stamp(7)
    KG, ZG = X, X+64
    def gload(i, track):
        st = [f"s_add_u32 s{S_T1}, s{S_KVG}, {4096*i}"]
        ld = [f"buffer_load_dwordx2 {vr(ZG+2*i,2)}, v{VZ8}, {sr(S_WS,4)}, s{S_ZG} offen offset:{512*i} sc1"]
        ld += [f"buffer_load_dwordx4 {vr(KG+16*i+4*k,4)}, v{V_L16}, {sr(S_WS,4)}, s{S_T1} offen offset:{1024*k} sc1" for k in range(4)]
        e(*st)
        for x in ld:
            if track: g.vmem(x, f'kg{i}')
            else: e(x)
    def gcheck(i):
        t = X+72
        e(f"v_xor_b32 v{t}, s{S_NON}, v{ZG+2*i+1}")
        for k in range(4): e(f"v_bitop3_b32 v{t}, v{t}, s{S_NON}, v{KG+16*i+4*k+3} bitop3:0xf6")
        e(f"v_cmp_ne_u32 vcc, 0, v{t}")
    g.cvt16(KP, ACC)
    g.mfma(DA, WPA, KP); g.mfma(DB, WPB, KP+4)
    gat = o.get('gather_at', 0)
    pw = lambda: g.poll_wait(VBO, S_B, '0xffff', VKW, False, 0x100)
    ggr = [g.capture(lambda i=i: gload(i, True)) for i in range(4)]
    smA = g.capture(lambda: softmax(g, DA, PA, RING)); smB = g.capture(lambda: softmax(g, DB, PB, RING))
    if gat == 0: pw(); g.weave(smA, ggr); g.play(smB)
    elif gat == 1: g.play(smA); pw(); g.weave(smB, ggr)
    else:
        g.play(smA); g.play(smB); pw()
        for x in ggr: g.play(x)
    g.rwait(4, RING)
    wo0 = wo_groups(0)
    if o.get('wo0_early', 0):
        for x in wo0: g.play(x)
        wo0 = []
    e(f"s_lshl_b32 s{S_T0}, s{S_W}, 3", f"s_add_u32 s{S_T0}, s{S_T0}, {L_KVD}", f"v_lshlrev_b32 v106, 5, v0", f"v_add_u32 v102, s{S_T0}, v106", f"v_add_u32 v106, {L_KVD}, v106")
    e("v_bfe_u32 v103, v0, 2, 1", "v_lshlrev_b32 v103, 5, v103", "v_bfe_u32 v107, v0, 3, 1", "v_lshl_add_u32 v103, v107, 3, v103", "v_and_b32 v107, 3, v0", "v_lshl_add_u32 v103, v107, 1, v103",
      f"s_lshr_b32 s{S_T0}, s{S_W}, 1", f"s_lshl_b32 s{S_T0}, s{S_T0}, 6", f"s_and_b32 s{S_T1}, s{S_W}, 1", f"s_lshl_b32 s{S_T1}, s{S_T1}, 4", f"s_add_u32 s{S_T0}, s{S_T0}, s{S_T1}",
      f"s_add_u32 s{S_T0}, s{S_T0}, {L_ZD}", f"v_add_u32 v103, s{S_T0}, v103")
    e("v_and_b32 v107, 32, v0", f"v_add_u32 v107, {L_ZD}, v107", f"v_cndmask_b32 v104, v107, v106, {sr(S_M,2)}", "v_add_u32 v107, 64, v107", f"v_cndmask_b32 v105, v106, v107, {sr(S_M,2)}")
    e(f"s_mov_b32 s{S_T2}, 0x3f80", f"s_mov_b32 s{S_T3}, 0x3f800000", "v_mov_b32 v32, 0", "v_mov_b32 v33, 0", "v_mov_b32 v34, 0", "v_mov_b32 v35, 0", "v_mov_b32 v96, 0")
    g.stamp(8)
    retry = []
    for i in range(4):
        lr = g.lab('gr'); lo = g.lab('go')
        e(f"s_mov_b32 s{S_T0}, {o.get('timeout', 200000)}")
        g.waitvm(f'kg{i}')
        gcheck(i)
        e(f"s_cbranch_vccnz {lr}" if not o.get('noval') else "s_nop 0", lo+":")
        def rt(i=i, lr=lr, lo=lo):
            e(lr+":", f"s_sleep {o.get('psleep', 2)}"); g.count(1); gload(i, False)
            e(f"s_sub_u32 s{S_T0}, s{S_T0}, 1", "s_waitcnt vmcnt(0)", f"s_cbranch_scc1 {lo}"); gcheck(i)
            e(f"s_cbranch_vccnz {lr}", f"s_branch {lo}")
        retry.append(g.capture(rt))
        e(f"v_add_f32 v96, v96, v{ZG+2*i}")
        for k in range(4):
            r = KG+16*i+4*k
            e(f"v_pk_add_f32 v[32:33], v[32:33], {vr(r,2)}", f"v_dot2c_f32_bf16 v34, s{S_T2}, v{r+2}", f"v_dot2c_f32_bf16 v35, s{S_T3}, v{r+2}")
    g.stamp(9)
    if o.get('wo1_at', 1) == 1:
        for x in wo1: g.play(x)
        wo1 = []
    e("v_mov_b32 v97, v96", "v_cvt_pk_bf16_f32 v32, v32, v33", "v_permlane16_swap_b32 v96, v97", "v_cvt_pk_bf16_f32 v33, v34, v35", "v_add_f32 v96, v96, v97", "ds_write_b64 v102, v[32:33]",
      "v_mov_b32 v97, v96", "v_permlane32_swap_b32 v96, v97", "v_add_f32 v96, v96, v97", "v_cvt_pk_bf16_f32 v96, v96, v96", "s_mov_b64 exec, 0xffff", "ds_write_b16 v103, v96", "s_mov_b64 exec, -1")
    g.arrive(5, 36); g.rwait(5, 36)
    g.stamp(10)
    for a in range(2): e(f"ds_read_b128 {vr(32+4*a,4)}, v104 offset:{16*a}", f"ds_read_b128 {vr(40+4*a,4)}, v105 offset:{16*a}")
    e(f"s_mov_b32 s{S_T1}, 0x358637bd")
    e("s_waitcnt lgkmcnt(3)"); g.mfma(48, 32, PA)
    e("s_waitcnt lgkmcnt(1)"); g.mfma(48, 36, PA+4, 48); g.mfma(64, 40, PB)
    e("s_waitcnt lgkmcnt(0)"); g.mfma(64, 44, PB+4, 64)
    for hd, num, den in ((0, 48, 56), (1, 72, 64)):
        e(f"v_add_f32 v{den}, s{S_T1}, v{den}", f"v_rcp_f32 v{den}, v{den}")
        for i in range(0, 8, 2): e(f"v_pk_mul_f32 {vr(num+i,2)}, {vr(num+i,2)}, {vr(den,2)} op_sel_hi:[1,0]")
        g.cvt16(80+4*hd, num, 8)
        g.vmem(f"buffer_store_dwordx4 {vr(80+4*hd,4)}, v{V_L16}, {sr(S_WS,4)}, s{S_OST} offen offset:{1024*hd} sc1", 'ost')
    g.stamp(11)
    g.prio('t_o')
    wol = wo1+wo0
    npre = min(len(wol), o.get('wo_pre', 8))
    for x in wol[:npre]: g.play(x)
    e(f"s_lshl_b32 s{S_T0}, s{S_C}, 2", f"s_add_u32 s{S_T0}, s{S_T0}, s{S_W}", f"s_lshl_b32 s{S_T0}, s{S_T0}, 8", f"s_lshr_b32 s{S_T1}, s{S_J}, 3", f"s_lshl_b32 s{S_T1}, s{S_T1}, 7",
      f"s_add_u32 s{S_T0}, s{S_T0}, s{S_T1}", f"s_and_b32 s{S_T1}, s{S_J}, 7", f"s_lshl_b32 s{S_T1}, s{S_T1}, 3", f"s_add_u32 s{S_T0}, s{S_T0}, s{S_T1}", f"s_add_u32 s{S_B+1}, s{S_T0}, {WS_FLAGS+FL_O}")
    e("v_lshrrev_b32 v96, 5, v0", "v_bfe_u32 v97, v0, 2, 2", "v_lshl_add_u32 v96, v96, 3, v97", "v_lshlrev_b32 v96, 7, v96", "v_bfe_u32 v97, v0, 3, 1", "v_lshl_add_u32 v96, v97, 6, v96",
      "v_bfe_u32 v97, v0, 4, 1", "v_lshl_add_u32 v96, v97, 5, v96", "v_and_b32 v97, 3, v0", "v_lshl_add_u32 v96, v97, 3, v96",
      f"s_lshr_b32 s{S_T0}, s{S_W}, 1", f"s_lshl_b32 s{S_T0}, s{S_T0}, 15", f"v_add_u32 v96, s{S_T0}, v96", "v_xor_b32 v97, 64, v96")
    rowhalf(g, S_T0)
    e(f"s_lshl_b32 s{S_T0}, s{S_T0}, 1", f"s_and_b32 s{S_T1}, s{S_W}, 1", f"s_add_u32 s{S_T0}, s{S_T0}, s{S_T1}",
      f"s_lshr_b32 s{S_T1}, s{S_W}, 1", f"s_lshl_b32 s{S_T1}, s{S_T1}, 3",
      f"s_lshl_b32 s{S_KX}, s{S_C}, 2", f"s_add_u32 s{S_KX}, s{S_KX}, s{S_T0}", f"s_lshl_b32 s{S_KX}, s{S_KX}, 4", f"s_add_u32 s{S_KX}, s{S_KX}, s{S_T1}",
      f"s_lshl_b32 s{S_B}, s{S_KX}, 4", f"s_add_u32 s{S_B}, s{S_B}, {WS_FLAGS+FL_O}",
      f"s_mul_i32 s{S_KX}, s{S_KX}, {REC}", f"s_add_u32 s{S_KX}, s{S_KX}, {WS_A2O}", "v_lshlrev_b32 v21, 3, v0")
    def trreads():
        g.waitvm('wo'); g.arrive(6, 100); g.rwait(6, 100)
        for ks in range(16):
            for ch in range(2):
                for i in range(2): e(f"ds_read_b64_tr_b16 {vr(X+8*ks+4*ch+2*i,2)}, v{96+ch} offset:{TREG+ks*2048+i*512}")
        g.arrive(7, 100)
    if not wol: trreads()
    g.waitvm('ost'); g.setflag(S_B+1, 34)
    for x in wol[npre:]: g.play(x)
    final_preload(g, 34)
    if wol: trreads()
    e(f"s_lshl_b32 s{S_T0}, s{S_W}, 13"); part_addr(g, 6, 36, S_T0)
    if o.get('o_delay'): e(f"s_sleep {o['o_delay']}")
    g.poll_issue(21, S_B, '0xff', 104)
    final_setup(g)
    g.stamp(12); g.prio('t_a')
    g.poll_wait(21, S_B, '0xff', 104, True, 0x10000)
    g.stamp(13)
    for k4 in range(4):
        if k4: e(f"s_add_u32 s{S_KX}, s{S_KX}, 4096")
        for k in range(4): g.vmem(f"buffer_load_dwordx4 {vr(32+16*k4+4*k,4)}, v{V_L16}, {sr(S_WS,4)}, s{S_KX} offen offset:{1024*k} sc1", f'a{4*k4+k}')
    g.rwait(7, 100)
    for ks in range(16):
        g.waitvm(f'a{ks}')
        for ch in range(2): g.mfma(96+16*ch, X+8*ks+4*ch, 32+4*ks, None if ks == 0 else 96+16*ch)
    g.stamp(14)
    for ch in range(2):
        for q in range(4): e(f"ds_write_b128 v{6+q}, {vr(96+16*ch+4*q,4)} offset:{TREG+ch*128}")
    e("s_branch L_final")
    e("L_role_cold:")
    for r in retry: g.play(r)

def roleS_start(g):
    e = g.e; o = g.o
    g.vm = []
    VXA, VBA = 12, 6
    e("L_roleS:", "s_setprio 2")
    if o.get('codepre', 1):
        e(f"s_getpc_b64 {sr(S_KX,2)}", "L_pc:",
          f"s_sub_u32 s{S_KX}, s{S_KX}, L_pc-{KNAME}_kernel", f"s_subb_u32 s{S_KX+1}, s{S_KX+1}, 0",
          f"s_lshr_b32 s{S_T0}, s2, 3", f"s_lshl_b32 s{S_T0}, s{S_T0}, 2", f"s_add_u32 s{S_T0}, s{S_T0}, s{S_W}", f"s_lshl_b32 s{S_T0}, s{S_T0}, 8",
          f"v_lshl_add_u32 v98, v0, 7, s{S_T0}", f"v_min_u32 v98, L_codeend-4-{KNAME}_kernel, v98", "s_mov_b64 exec, 3", f"global_load_dword v99, v98, {sr(S_KX,2)}", "s_mov_b64 exec, -1")
    e("v_and_b32 v96, 19, v0", "v_bfe_u32 v97, v0, 2, 1", "v_lshl_add_u32 v96, v97, 3, v96", "v_bfe_u32 v97, v0, 3, 1", "v_lshl_add_u32 v96, v97, 2, v96",
      f"s_lshl_b32 s{S_T0}, s{S_J}, 5", f"v_add_u32 v96, s{S_T0}, v96", "v_lshlrev_b32 v96, 1, v96")
    e(f"s_lshl_b32 s{S_T0}, s{S_R0}, 3", f"s_bitcmp1_b32 s{S_W}, 0", f"s_cselect_b32 s{S_T0}, 0, s{S_T0}", f"s_cselect_b32 s{S_T1}, {L_WPHI-L_GATE}, 0", f"s_add_u32 m0, s{S_T1}, {L_GATE}",
      f"v_add_u32 v97, s{S_T0}, v0", "v_and_b32 v97, 63, v97", "v_lshlrev_b32 v97, 4, v97", f"s_mov_b32 s{S_X+2}, 1024", f"s_mov_b32 s{S_X+3}, 0x20000", f"s_lshl_b32 s{S_T1}, s{S_J}, 10")
    frag_addr(g, VBA, 104, base_c=L_BSL)
    e(f"s_sub_u32 s{S_T0}, s{S_M}, {L_BSL}")
    for k in range(4): e(f"v_add_u32 v{VXA+k}, s{S_T0}, v{VBA+k}")
    e(f"v_mov_b32 v114, {WS_EPOCH}")
    e("s_waitcnt lgkmcnt(0)")
    e(f"s_add_u32 s{S_X}, s{P_WPHI}, s{S_T1}", f"s_addc_u32 s{S_X+1}, s{P_WPHI+1}, 0", f"s_bitcmp1_b32 s{S_W}, 0", f"s_cselect_b64 {sr(S_X,2)}, {sr(S_X,2)}, {sr(P_GATE,2)}")
    e(f"global_load_ushort v100, v96, {sr(P_LDT,2)}", f"global_load_ushort v101, v96, {sr(P_LRE,2)}", f"global_load_ushort v102, v96, {sr(P_LIM,2)}",
      f"global_load_dword v114, v114, {sr(P_WS,2)} sc1")
    e(f"s_cmp_ge_u32 s{S_W}, 2", "s_cbranch_scc1 L_s1", f"buffer_load_dwordx4 v97, {sr(S_X,4)}, 0 offen lds", "L_s1:")
    if o.get('vpre', 5):
        e(f"s_lshl_b32 s{S_T0}, s2, 11", f"v_lshl_add_u32 v98, v0, 7, s{S_T0}", f"s_cmp_eq_u32 s{S_W}, 1", f"s_cselect_b64 {sr(S_KX,2)}, {sr(P_CIM,2)}, {sr(P_CRE,2)}",
          f"s_cmp_eq_u32 s{S_W}, 2", f"s_cselect_b64 {sr(S_KX,2)}, {sr(P_WO,2)}, {sr(S_KX,2)}", f"s_cmp_eq_u32 s{S_W}, 3", "s_cbranch_scc1 L_s5")
        if o.get('vpre', 5) == 1: e("s_mov_b64 exec, 0xffff", f"global_load_dword v99, v98, {sr(S_KX,2)}", "s_mov_b64 exec, -1")
        e("L_s5:")
    if o.get('spre'): scalar_prefetch(g, [(P_WO, 512, 0, 4, 128), (P_WQKV, 1536, 0, 4, 128)] if o['spre'] == 1 else [(P_WO, 512, 0, 4, 128)])
    e("s_branch L_role_Smain")

def roleS(g):
    e = g.e; o = g.o
    g.vm = []
    VXA, VBA = 12, 6
    LR, LI, L16R, L16I, LSR, LSI, W0R, W0I, W1R, W1I, CR, CI = range(16, 28)
    PSR, PSI, ER, EI = 28, 29, 30, 31
    VE0, VE1, VSEGR, VN8 = 32, 33, 34, 35
    VCO = 36
    SEL = 40
    UR, UI, RP = 48, 64, 80
    T = 96
    FB = 128
    e("L_role_Smain:", f"s_setprio {o.get('sprioA', 0)}")
    g.srd(S_WS, P_WS, None, WS_SIZE)
    common_late(g)
    make_sel(g, SEL, 104)
    e(f"s_lshl_b32 s{S_T0}, s{S_W}, 9", f"s_add_u32 s{S_T0}, s{S_T0}, {L_SEGZ}", f"v_lshl_add_u32 v{VSEGR}, v0, 3, s{S_T0}", "v_mov_b32 v104, 0", "v_mov_b32 v105, 0")
    e(f"ds_write_b64 v{VSEGR}, v[104:105]")
    g.arrive(0, 104)
    e(f"v_and_b32 v{VN8}, 31, v0", f"v_lshlrev_b32 v{VN8}, 3, v{VN8}")
    e("v_lshrrev_b32 v106, 5, v0", f"s_lshl_b32 s{S_T0}, s{S_W}, 2", f"v_add_u32 v107, s{S_T0}, v106", "v_add_u32 v108, 2, v107")
    e(f"s_lshl_b32 s{S_T0}, s{S_J}, 13", f"s_add_u32 s{S_T0}, s{S_T0}, {WS_E}", f"v_lshl_add_u32 v109, v{VN8}, 1, s{S_T0}", "v_mov_b32 v110, 0x7ffffff0")
    M0, M1 = S_KW, S_KW+2
    S_EST, S_HST = S_KW+4, S_KW+5
    for i, (cp, m, d) in enumerate(((107, M0, VE0), (108, M1, VE1))):
        e(f"v_cmp_gt_u32 {sr(m,2)}, s{S_C}, v{cp}", f"v_lshl_add_u32 v{d}, v{cp}, 9, v109", f"v_cndmask_b32 v{d}, v110, v{d}, {sr(m,2)}")
        e(f"v_sub_u32 v{cp}, s{S_C}, v{cp}", f"v_add_u32 v{cp}, -1, v{cp}", f"v_max_i32 v{cp}, 0, v{cp}", f"v_lshlrev_b32 v{cp}, 7, v{cp}", f"v_cvt_f32_u32 v{cp}, v{cp}")
    e(f"s_lshl_b32 s{S_T0}, s{S_W}, 1", f"v_add_u32 v106, s{S_T0}, v106", "v_lshlrev_b32 v106, 4, v106", "v_cvt_f32_u32 v106, v106")
    e(f"s_mov_b32 s{S_T2}, {LOG2E}")
    colblk(g, S_T0)
    e(f"s_lshl_b32 s{S_T0}, s{S_T0}, 16", f"s_lshl_b32 s{S_T1}, s{S_W}, 8", f"s_add_u32 s{S_T0}, s{S_T0}, s{S_T1}")
    g.srd(S_A, P_CRE, S_T0, 524288); g.srd(S_B, P_CIM, S_T0, 524288)
    e(f"s_lshl_b32 s{S_M0B}, s{S_W}, 14", f"s_add_u32 s{S_M0B}, s{S_M0B}, {SREG}")
    e(f"v_lshrrev_b32 v{VCO}, 3, v0", f"v_lshlrev_b32 v{VCO}, 10, v{VCO}", f"v_and_b32 v109, 7, v0", f"v_lshrrev_b32 v110, 4, v0", f"v_xor_b32 v109, v109, v110",
      f"v_lshl_add_u32 v{VCO}, v109, 4, v{VCO}", f"v_xor_b32 v{VCO+1}, 64, v{VCO}", f"v_add_u32 v{VCO+2}, {2*7168}, v{VCO}", f"v_add_u32 v{VCO+3}, {3*7168}, v{VCO+1}", f"v_add_u32 v{VCO+1}, 7168, v{VCO+1}")
    e(f"s_lshl_b32 s{S_T0}, s{S_J}, 4", f"s_add_u32 s{S_T0}, s{S_T0}, s{S_C}", f"s_lshl_b32 s{S_T0}, s{S_T0}, 9", f"s_add_u32 s{S_EST}, s{S_T0}, {WS_E}")
    e(f"s_lshl_b32 s{S_T0}, s{S_C}, 2", f"s_add_u32 s{S_T0}, s{S_T0}, s{S_W}", f"s_lshl_b32 s{S_T0}, s{S_T0}, 4", f"s_add_u32 s{S_T0}, s{S_T0}, s{S_J}",
      f"s_mul_i32 s{S_T0}, s{S_T0}, {2*REC}", f"s_add_u32 s{S_HST}, s{S_T0}, {WS_A2H}", "v_lshlrev_b32 v5, 2, v0")
    S_EF, S_EPL, M2 = S_WK, S_WK+1, S_WK+2
    e(f"s_lshl_b32 s{S_T0}, s{S_J}, 9", f"s_add_u32 s{S_T0}, s{S_T0}, {WS_FLAGS+FL_E}", f"s_lshl_b32 s{S_T1}, s{S_W}, 7", f"s_add_u32 s{S_EPL}, s{S_T0}, s{S_T1}",
      f"s_lshr_b32 s{S_T1}, s{S_C}, 2", f"s_lshl_b32 s{S_T1}, s{S_T1}, 7", f"s_add_u32 s{S_T0}, s{S_T0}, s{S_T1}", f"s_and_b32 s{S_T1}, s{S_C}, 3", f"s_lshl_b32 s{S_T1}, s{S_T1}, 2",
      f"s_add_u32 s{S_EF}, s{S_T0}, s{S_T1}", f"s_lshl_b32 s{S_T0}, s{S_W}, 2", f"s_sub_i32 s{S_T0}, s{S_C}, s{S_T0}", f"s_max_i32 s{S_T0}, s{S_T0}, 0", f"s_min_i32 s{S_T0}, s{S_T0}, 4",
      f"s_bfm_b64 {sr(M2,2)}, s{S_T0}, 0")
    if o.get('flagwarm', 1):
        e(f"s_cmp_lg_u32 s{S_W}, 3", "s_cbranch_scc1 L_s7", "s_cmp_ge_u32 s2, 192", "s_cbranch_scc1 L_s7", f"s_lshl_b32 s{S_T0}, s2, 8", f"s_add_u32 s{S_T0}, s{S_T0}, {WS_FLAGS}",
          "v_lshlrev_b32 v109, 7, v0", "v_mov_b32 v110, 0", "s_mov_b64 exec, 3", f"buffer_atomic_add v110, v109, {sr(S_WS,4)}, s{S_T0} offen sc1", "s_mov_b64 exec, -1", "L_s7:")
    def cpow(dr, di, n):
        if n is None: e("v_exp_f32 v111, v103", "v_rndne_f32 v113, v104", "v_sub_f32 v112, v104, v113")
        else: e(f"v_mul_f32 v111, {n}, v103", f"v_mul_f32 v112, {n}, v104", "v_exp_f32 v111, v111", "v_rndne_f32 v113, v112", "v_sub_f32 v112, v112, v113")
        e(f"v_cos_f32 v{dr}, v112", f"v_sin_f32 v{di}, v112", f"v_mul_f32 v{dr}, v111, v{dr}", f"v_mul_f32 v{di}, v111, v{di}")
    def params():
        e("v_lshlrev_b32 v100, 16, v100", "v_lshlrev_b32 v101, 16, v101", "v_lshlrev_b32 v102, 16, v102")
        e(f"v_mul_f32 v100, s{S_T2}, v100", "v_exp_f32 v100, v100", "v_cvt_pk_bf16_f32 v100, v100, v100", "v_lshlrev_b32 v100, 16, v100")
        e("v_mul_f32 v103, v100, v101", f"v_mul_f32 v103, s{S_T2}, v103", "v_mul_f32 v104, v100, v102", "v_mul_f32 v104, 0.15915494, v104")
        cpow(LR, LI, None); cpow(L16R, L16I, "0x41800000"); cpow(LSR, LSI, "v106"); cpow(W0R, W0I, "v107"); cpow(W1R, W1I, "v108")
        e(f"v_add_f32 v111, -1.0, v{LR}", "v_mul_f32 v112, v101, v101", "v_fmac_f32 v112, v102, v102", "v_rcp_f32 v112, v112",
          f"v_mul_f32 v{CR}, v111, v101", f"v_fmac_f32 v{CR}, v{LI}, v102", f"v_mul_f32 v{CI}, v{LI}, v101", f"v_fma_f32 v{CI}, -v111, v102, v{CI}",
          "v_add_f32 v112, v112, v112", f"v_mul_f32 v{CR}, v{CR}, v112", f"v_mul_f32 v{CI}, v{CI}, v112")
        e(f"v_mov_b32 v{T+18}, s{S_NON}", f"v_mov_b32 v{T+19}, s{S_NON+1}", f"v_lshlrev_b32 v{T+20}, 1, v{VN8}")
    par = g.capture(params)
    g.stamp(0)
    def mm(s):
        b = FB+48*(s&1); r = []
        for k in range(4):
            first = (s == 0 and k == 0)
            r.append(g.capture(lambda: g.mfma(UR, b+12*k, b+12*k+4, None if first else UR)))
            r.append(g.capture(lambda: g.mfma(UI, b+12*k, b+12*k+8, None if first else UI)))
        return r
    for s in range(8):
        e("s_waitcnt lgkmcnt(0)", "s_barrier")
        if s == 0: g.stamp(1)
        b = FB+48*(s&1)
        rd = []
        for k in range(4):
            rd += [f"ds_read_b128 {vr(b+12*k,4)}, v{VXA+k} offset:{(s&3)*16384}",
                   f"ds_read_b128 {vr(b+12*k+4,4)}, v{VBA+k} offset:{(s%3)*8192}",
                   f"ds_read_b128 {vr(b+12*k+8,4)}, v{VBA+k} offset:{(s%3)*8192+4096}"]
        if s == 0:
            e(*rd); g.waitvm0(); epoch_use(g, 114)
        else:
            m = mm(s-1)
            for k in range(8):
                g.play(m[k])
                if k < 4: e(*rd[3*k:3*k+3])
                else:
                    g.play(par[:4]); par = par[4:]
        if o.get('vpre', 5) >= 2 and s == o.get('vpre', 5)-2:
            e(f"s_cmp_eq_u32 s{S_W}, 3", "s_cbranch_scc1 L_s6", "s_mov_b64 exec, 0xffff", f"global_load_dword v99, v98, {sr(S_KX,2)}", "s_mov_b64 exec, -1", "L_s6:")
    assert not par
    if o.get('vpre', 5) >= 2: e("s_waitcnt vmcnt(0)")
    g.prio('s_b7')
    m = mm(7)
    for k in range(8):
        if k % 2 == 0: e(f"s_waitcnt lgkmcnt({9-3*(k//2)})")
        g.play(m[k])
    e(f"s_sub_u32 s{S_T0}, s{S_M0B}, {L_BSL}")
    for k in range(4): e(f"v_add_u32 v{VBA+k}, s{S_T0}, v{VBA+k}")
    g.stamp(2)
    def c_groups(pc):
        part, kh2 = pc & 1, pc >> 1; r = []
        for q in range(8):
            def f(q=q):
                if q % 4 == 0: e(f"s_add_u32 m0, s{S_M0B}, {(pc&1)*8192 + q*1024}", f"s_mov_b32 s{S_DS}, {kh2*128 + q*8192}")
                g.vmem(f"buffer_load_dwordx4 v{VCO+q%4}, {sr(S_A if part == 0 else S_B,4)}, s{S_DS} offen offset:{1024*(q%4)} lds", f'c{pc}')
            r.append(g.capture(f))
        return r
    def dma_c(pc):
        for x in c_groups(pc): g.play(x)
    def creg(jj, part, a, ch): return FB + 4*(((jj*2+part)*2+a)*2+ch)
    def read_c(pc):
        part, kh2 = pc & 1, pc >> 1
        for ks in range(4):
            for ch in range(2): e(f"ds_read_b128 {vr(creg(2*kh2+(ks>>1), part, ks&1, ch),4)}, v{VBA+ks} offset:{(pc&1)*8192+ch*4096}")
    pr, pi = UR, UI
    for t in range(1, 16):
        nr, ni = (ER, EI) if t & 1 else (T, T+1)
        e(f"v_fma_f32 v{nr}, v{LR}, v{pr}, v{UR+t}", f"v_fma_f32 v{ni}, v{LR}, v{pi}, v{UI+t}", f"v_fma_f32 v{nr}, -v{LI}, v{pi}, v{nr}", f"v_fma_f32 v{ni}, v{LI}, v{pr}, v{ni}")
        pr, pi = nr, ni
    e(f"ds_write_b64 v{VSEGR}, {vr(ER,2)} offset:{L_SEG-L_SEGZ}", "s_waitcnt lgkmcnt(0)", "s_barrier")
    if o.get('onlyT'):
        final_preload(g, 20); final_setup(g); e("s_branch L_final")
    for k in range(7): e(f"ds_read_b64 {vr(T+2*k,2)}, v{VSEGR} offset:{L_SEG-L_SEGZ-(7-k)*256}")
    def cmac(dr, di, ar, ai, br, bi, cr, ci):
        e(f"v_fma_f32 v{dr}, v{ar}, v{br}, v{cr}", f"v_fma_f32 v{di}, v{ar}, v{bi}, v{ci}", f"v_fma_f32 v{dr}, -v{ai}, v{bi}, v{dr}", f"v_fma_f32 v{di}, v{ai}, v{br}, v{di}")
    for k in range(1, 7):
        e(f"s_waitcnt lgkmcnt({6-k})")
        d = (PSR, PSI) if k == 6 else (T+2*k, T+2*k+1)
        cmac(d[0], d[1], L16R, L16I, T+2*k-2, T+2*k-1, T+2*k, T+2*k+1)
    cmac(T+16, T+17, L16R, L16I, PSR, PSI, ER, EI)
    e(f"s_cmp_lg_u32 s{S_W}, 3", "s_cbranch_scc1 L_s4", "s_mov_b32 exec_lo, 0",
      f"buffer_store_dwordx4 {vr(T+16,4)}, v{T+20}, {sr(S_WS,4)}, s{S_EST} offen sc1", "s_mov_b64 exec, 1",
      f"buffer_store_dword v{T+18}, off, {sr(S_WS,4)}, s{S_EF} sc1", "s_mov_b64 exec, -1", "L_s4:")
    g.stamp(3)
    g.prio('s_es')
    def cmult():
        for t in range(16):
            e(f"v_mul_f32 v{RP+t}, v{CR}, v{UR+t}", f"v_fma_f32 v{RP+t}, -v{CI}, v{UI+t}, v{RP+t}", f"v_mul_f32 v{UI+t}, -v{CR}, v{UI+t}", f"v_fma_f32 v{UI+t}, -v{CI}, v{UR+t}, v{UI+t}")
    cq = c_groups(0) + c_groups(1) + c_groups(2) + c_groups(3)
    cdone = [0]
    def c_issue(n):
        for _ in range(n):
            k = 32-len(cq)
            if k in (16, 24):
                while cdone[0] <= (k-16)//8: c_read()
                e("s_waitcnt lgkmcnt(0)")
            g.play(cq.pop(0))
    def c_read():
        pc = cdone[0]; g.waitvm(f'c{pc}'); e("s_waitcnt lgkmcnt(7)"); read_c(pc); cdone[0] += 1
    n_a, n_b, n_c, n_d = o.get('c_sched', (16, 8, 0, 8))
    g.weave(g.capture(cmult), cq[:n_a]); del cq[:n_a]
    if o.get('e_delay'): e(f"s_sleep {o['e_delay']}")
    l = g.lab('ep'); d = g.lab('ed')
    eld = [f"buffer_load_dwordx4 {vr(T,4)}, v{VE0}, {sr(S_WS,4)}, 0 offen sc1", f"buffer_load_dwordx4 {vr(T+4,4)}, v{VE1}, {sr(S_WS,4)}, 0 offen sc1"]
    echk = [f"v_cmp_ne_u64 vcc, {sr(S_NON,2)}, {vr(T+2,2)}", f"v_cmp_ne_u64 {sr(S_M,2)}, {sr(S_NON,2)}, {vr(T+6,2)}",
            f"s_and_b64 vcc, vcc, {sr(M0,2)}", f"s_and_b64 {sr(S_M,2)}, {sr(S_M,2)}, {sr(M1,2)}", f"s_or_b64 vcc, vcc, {sr(S_M,2)}"]
    if o.get('ehint', 1):
        le = g.lab('en')
        e(f"s_cmp_eq_u64 {sr(M2,2)}, 0", f"s_cbranch_scc1 {le}")
        keep = list(g.vm)
        g.poll_issue(5, S_EPL, sr(M2,2), T+8, False); g.poll_wait(5, S_EPL, sr(M2,2), T+8, False, 0x100)
        g.vm = keep
        e(le+":")
    for x in eld: g.vmem(x, 'eld')
    g.prio('s_cb'); c_issue(n_b); g.prio('s_e')
    e(f"s_mov_b32 s{S_T0}, {o.get('timeout', 200000)}")
    g.waitvm('eld')
    e(*echk); e(f"s_cbranch_scc0 {d}", l+":"); g.count(1); e(*eld)
    e(f"s_sub_u32 s{S_T0}, s{S_T0}, 1", "s_waitcnt vmcnt(0)", f"s_cbranch_scc1 {d}"); e(*echk)
    e(f"s_cbranch_scc0 {d}", f"s_sleep {o.get('psleep',2)}", f"s_branch {l}", d+":")
    g.stamp(4)
    e(f"v_mul_f32 v{T+8}, v{W0R}, v{T}", f"v_mul_f32 v{T+9}, v{W0R}, v{T+1}", f"v_fma_f32 v{T+8}, -v{W0I}, v{T+1}, v{T+8}", f"v_fma_f32 v{T+9}, v{W0I}, v{T}, v{T+9}")
    cmac(T+8, T+9, W1R, W1I, T+4, T+5, T+8, T+9)
    e(f"ds_write_b64 v{VSEGR}, {vr(T+8,2)} offset:{L_HP-L_SEGZ}", f"v_add_u32 v{VN8}, {L_HP}, v{VN8}")
    g.arrive(1, T); g.rwait(1, T)
    c_issue(n_c)
    def pass2():
        for k in range(8): e(f"ds_read_b64 {vr(T+2*k,2)}, v{VN8} offset:{k*256}")
        for k in range(1, 8):
            e(f"s_waitcnt lgkmcnt({7-k})", f"v_add_f32 v{T}, v{T}, v{T+2*k}", f"v_add_f32 v{T+1}, v{T+1}, v{T+2*k+1}")
        cmac(PSR, PSI, LSR, LSI, T, T+1, PSR, PSI)
        e(f"v_mul_f32 v{ER}, v{CR}, v{PSR}", f"v_fma_f32 v{ER}, -v{CI}, v{PSI}, v{ER}", f"v_mul_f32 v{EI}, -v{CR}, v{PSI}", f"v_fma_f32 v{EI}, -v{CI}, v{PSR}, v{EI}")
        pr, pj = ER, EI
        for t in range(16):
            e(f"v_fmac_f32 v{RP+t}, v{LR}, v{pr}", f"v_fmac_f32 v{UI+t}, v{LR}, v{pj}", f"v_fmac_f32 v{RP+t}, v{LI}, v{pj}", f"v_fma_f32 v{UI+t}, -v{LI}, v{pr}, v{UI+t}")
            pr, pj = RP+t, UI+t
            if t == 8:
                g.cvt16(T, RP, 8); g.cvt16(T+8, UI, 8)
                g.mfma(48, T, SEL); g.mfma(112, T+8, SEL)
        g.cvt16(T+4, RP+8, 8); g.mfma(48, T+4, SEL+4, 48)
        g.cvt16(T+12, UI+8, 8); g.mfma(112, T+12, SEL+4, 112)
    g.prio('s_p2')
    pass2()
    for f in range(4):
        src = (48, 56, 112, 120)[f]
        g.cvt16(64+4*f, src, 8)
        g.vmem(f"buffer_store_dwordx4 {vr(64+4*f,4)}, v{V_L16}, {sr(S_WS,4)}, s{S_HST} offen offset:{1024*f} sc1", 'hst')
    g.stamp(5)
    g.prio('s_h')
    c_issue(min(n_d, len(cq)))
    e(f"s_lshl_b32 s{S_T0}, s{S_C}, 1", f"s_lshr_b32 s{S_T1}, s{S_W}, 1", f"s_add_u32 s{S_T0}, s{S_T0}, s{S_T1}", f"s_lshl_b32 s{S_T0}, s{S_T0}, 2", f"s_lshr_b32 s{S_T1}, s{S_J}, 2",
      f"s_add_u32 s{S_T0}, s{S_T0}, s{S_T1}", f"s_lshl_b32 s{S_T0}, s{S_T0}, 7", f"s_and_b32 s{S_T1}, s{S_J}, 3", f"s_lshl_b32 s{S_T1}, s{S_T1}, 4", f"s_add_u32 s{S_T0}, s{S_T0}, s{S_T1}",
      f"s_and_b32 s{S_T1}, s{S_W}, 1", f"s_lshl_b32 s{S_T1}, s{S_T1}, 3", f"s_add_u32 s{S_T0}, s{S_T0}, s{S_T1}", f"s_add_u32 s{S_EF}, s{S_T0}, {WS_FLAGS+FL_H}")
    rowhalf(g, S_T0)
    e(f"s_lshl_b32 s{S_T1}, s{S_C}, 1", f"s_add_u32 s{S_T0}, s{S_T0}, s{S_T1}", f"s_lshl_b32 s{S_EPL}, s{S_T0}, 2", f"s_add_u32 s{S_EPL}, s{S_EPL}, s{S_W}",
      f"s_lshl_b32 s{S_EPL}, s{S_EPL}, 7", f"s_add_u32 s{S_EPL}, s{S_EPL}, {WS_FLAGS+FL_H}",
      f"s_lshl_b32 s{S_KX}, s{S_T0}, 3", f"s_add_u32 s{S_KX}, s{S_KX}, s{S_W}", f"s_lshl_b32 s{S_KX}, s{S_KX}, 14", f"s_add_u32 s{S_KX}, s{S_KX}, {WS_A2H}", "v_lshlrev_b32 v18, 3, v0")
    for k in range(1, 8): e(f"s_add_u32 s{S_KX+k}, s{S_KX}, {(k>>1)*4096 + (k&1)*65536}")
    g.prio('s_f')
    g.waitvm('hst'); g.setflag(S_EF, 16)
    g.stamp(6)
    g.prio('s_c3')
    c_issue(len(cq))
    final_preload(g, 20)
    while cdone[0] < 3: c_read()
    if o.get('h_delay'): e(f"s_sleep {o['h_delay']}")
    g.stamp(7)
    g.prio('s_a')
    g.poll_issue(18, S_EPL, '0xff', 16)
    c_read()
    g.poll_wait(18, S_EPL, '0xff', 16, True, 0x10000)
    g.stamp(8)
    AB, NB, ACC = 16, 6, 64
    steps = [(jj, f) for jj in range(4) for f in range(4)]
    def lda(i):
        jj, f = steps[i]
        for rh in range(2):
            g.vmem(f"buffer_load_dwordx4 {vr(AB+8*(i%NB)+4*rh,4)}, v{V_L16}, {sr(S_WS,4)}, s{S_KX+2*jj+rh} offen offset:{1024*f} sc1", f'a{i}')
    nb0 = o.get('a2h_depth', 4)
    for i in range(nb0): lda(i)
    e("s_waitcnt lgkmcnt(0)")
    part_addr(g, 6, 64, S_M0B)
    for i in range(16):
        jj, f = steps[i]
        g.waitvm(f'a{i}')
        if i+nb0 < 16 and nb0 < NB: lda(i+nb0)
        for rh in range(2):
            for ch in range(2):
                acc = ACC+16*(2*rh+ch)
                g.mfma(acc, creg(jj, f >> 1, f & 1, ch), AB+8*(i%NB)+4*rh, None if i == 0 else acc)
        if i+nb0 < 16 and nb0 == NB: lda(i+nb0)
    g.cold = []
    g.stamp(9)
    for rh in range(2):
        for ch in range(2):
            for q in range(4): e(f"ds_write_b128 v{6+q}, {vr(ACC+16*(2*rh+ch)+4*q,4)} offset:{rh*8192+ch*128}")
    final_setup(g)

def final_setup(g):
    e = g.e
    g.srd(S_OUT, P_OUT, None, 4194304)
    e("v_lshrrev_b32 v16, 4, v0", "v_and_b32 v17, 15, v0", "v_xor_b32 v17, v17, v16", "v_lshlrev_b32 v17, 4, v17", "v_lshl_add_u32 v17, v16, 8, v17",
      f"s_lshl_b32 s{S_T0}, s{S_WV}, 11", f"v_add_u32 v17, s{S_T0}, v17", "v_xor_b32 v18, 64, v17", f"v_add_u32 v19, {SREG}, v17", f"v_add_u32 v20, {SREG}, v18")
    e(f"s_lshl_b32 s{S_T0}, s{S_WV}, 5", f"s_add_u32 s{S_T0}, s{S_T0}, {L_G}",
      f"v_lshl_add_u32 v16, v16, 2, s{S_T0}", "v_lshlrev_b32 v5, 1, v5")
    g.waitvm('fin')
    for q in range(2):
        e(f"v_lshlrev_b32 v30, 16, v{V_FX+4+q}", f"v_and_b32 v31, 0xffff0000, v{V_FX+4+q}")
        for i in range(2):
            d = 22+4*i+2*q
            e(f"v_lshlrev_b32 v{d}, 16, v{V_FX+2*i+q}", f"v_and_b32 v{d+1}, 0xffff0000, v{V_FX+2*i+q}", f"v_mul_f32 v{d}, v{d}, v30", f"v_mul_f32 v{d+1}, v{d+1}, v31")

def final(g):
    e = g.e; o = g.o
    e("L_final:")
    e("s_waitcnt lgkmcnt(0)", "s_barrier")
    g.stamp(15)
    e("ds_read_b32 v30, v16", "ds_read_b32 v36, v16 offset:16")
    for i in range(2):
        for k in range(4): e(f"ds_read_b128 {vr(40+24*i+4*k,4)}, v{19+i} offset:{k*16384+i*1024}")
        for k in range(2): e(f"ds_read_b128 {vr(56+24*i+4*k,4)}, v{17+i} offset:{TREG+k*16384+i*1024}")
    e(f"s_mov_b32 s{S_T0}, 0x8000")
    for i in range(2):
        b = 40+24*i; gg = 30 if i == 0 else 36
        e(f"s_waitcnt lgkmcnt({6-6*i})")
        for h in (0, 2):
            e(f"v_pk_add_f32 {vr(b+h,2)}, {vr(22+4*i+h,2)}, {vr(b+h,2)}",
              f"v_pk_add_f32 {vr(b+4+h,2)}, {vr(b+4+h,2)}, {vr(b+8+h,2)}",
              f"v_pk_add_f32 {vr(b+16+h,2)}, {vr(b+16+h,2)}, {vr(b+20+h,2)}",
              f"v_pk_add_f32 {vr(b+h,2)}, {vr(b+h,2)}, {vr(b+12+h,2)}",
              f"v_pk_add_f32 {vr(b+4+h,2)}, {vr(b+4+h,2)}, {vr(b+16+h,2)} neg_lo:[0,1] neg_hi:[0,1]",
              f"v_pk_add_f32 {vr(b+h,2)}, {vr(b+h,2)}, {vr(b+4+h,2)}",
              f"v_pk_fma_f32 {vr(b+h,2)}, {vr(b+h,2)}, {vr(gg,2)}, {vr(b+16+h,2)} op_sel_hi:[1,0,1]")
        e(f"buffer_store_dwordx4 {vr(b,4)}, v5, {sr(S_OUT,4)}, {'0' if i == 0 else 's%d' % S_T0} offen {o.get('outmod','sc1')}")
    e(f"s_or_b32 s{S_T0}, s{S_C}, s{S_J}", f"s_or_b32 s{S_T0}, s{S_T0}, s{S_WV}", "s_cbranch_scc1 L_f1",
      f"v_mov_b32 v16, s{S_NON}", "s_mov_b64 exec, 1", f"buffer_store_dword v16, off, {sr(S_WS,4)}, 0 offset:{WS_EPOCH} sc1", "s_mov_b64 exec, -1", "L_f1:")
    if o.get('stamps'):
        e("s_waitcnt vmcnt(0)")
        g.stamp(16)
        e(f"v_writelane_b32 v{V_STAMP}, s{S_FLOFF}, 30")
        e(f"s_lshl_b32 s{S_T0}, s{S_C}, 4", f"s_add_u32 s{S_T0}, s{S_T0}, s{S_J}", f"s_lshl_b32 s{S_T0}, s{S_T0}, 3", f"s_add_u32 s{S_T0}, s{S_T0}, s{S_WV}",
          f"s_lshl_b32 s{S_T0}, s{S_T0}, 8", f"s_add_u32 s{S_T0}, s{S_T0}, {WS_STAMP}", "v_lshlrev_b32 v16, 2, v0",
          f"buffer_store_dword v{V_STAMP}, v16, {sr(S_WS,4)}, s{S_T0} offen")
    if o.get('amp') is not None:
        e("s_waitcnt vmcnt(0)")
        g.stamp(16)
        e(f"s_cmp_lg_u32 s2, {o.get('ampwg',0)}", "s_cbranch_scc1 L_end", f"s_cmp_lg_u32 s{S_WV}, {o.get('ampwave',0)}", "s_cbranch_scc1 L_end",
          "s_sub_u32 s66, s66, s100", "s_mul_i32 s66, s66, 10", "s_memrealtime s[100:101]", "s_waitcnt lgkmcnt(0)", "s_add_u32 s66, s66, s100",
          "L_amp:", "s_memrealtime s[100:101]", "s_waitcnt lgkmcnt(0)", "s_sub_u32 s67, s100, s66", "s_cmp_lt_i32 s67, 0", "s_cbranch_scc1 L_amp")
    e("L_end:", "s_endpgm")
    e("L_role_coldS:")
    for r in g.cold: g.play(r)
    e("s_endpgm", "L_codeend:")

DEFAULTS = {'wq_start':0,'wq_end':18,'e_delay':2,'c_sched':(0,8,8,8),'timeout':20000,
            'prio':{'s_b7':2,'s_es':0,'t_b8':2,'t_q':0,'s_p2':1,'s_h':0,'t_g':2}}
def build(opt):
    opt = {**DEFAULTS, **opt}
    g = G(opt)
    if opt.get('stamps') or opt.get('amp') is not None:
        g.e("s_memrealtime s[100:101]")
    prologue(g)
    if opt.get('stamps'):
        pass
    roleS_start(g); roleT(g); roleS(g); final(g)
    lines = g.L
    if opt.get('stamps'):
        out = []
        for x in lines:
            out.append(x)
            if x in ("L_roleT:", "L_roleS:"):
                out += ["s_waitcnt lgkmcnt(0)", f"v_writelane_b32 v{V_STAMP}, s100, 31"]
        lines = out
    ins, added = fix(lines)
    errs = check_waits(ins)
    for x in errs[:5]: print("WAITCHECK", x, file=sys.stderr)
    ref = open('cdna_kernels/' + KNAME + '.s.ref').read().splitlines() if opt.get('refhdr', True) else []
    hdr = [x for x in ref if x.startswith(';') and '@launch' not in x and 'Override' not in x and 'grid=ceil' not in x]
    txt = "\n".join(hdr) + f"""
; @launch grid=(256,1,1) block=(512,1,1) lds={LDS_BYTES}
.amdgcn_target "amdgcn-amd-amdhsa--gfx950"
.text
.globl {KNAME}_kernel
.p2align 12
.p2align 8
.type {KNAME}_kernel,@function
{KNAME}_kernel:
""" + "\n".join((i.text if i.label else "    " + i.text) for i in ins) + f"""
.section .rodata,"a"
.p2align 6
.amdhsa_kernel {KNAME}_kernel
  .amdhsa_next_free_vgpr 256
  .amdhsa_next_free_sgpr 102
  .amdhsa_accum_offset 256
  .amdhsa_group_segment_fixed_size 0
  .amdhsa_kernarg_size 136
  .amdhsa_user_sgpr_count 2
  .amdhsa_user_sgpr_kernarg_segment_ptr 1
  .amdhsa_system_sgpr_workgroup_id_x 1
.end_amdhsa_kernel
"""
    return txt, len([i for i in ins if i.real]), added, errs

if __name__ == '__main__':
    out = sys.argv[1] if len(sys.argv) > 1 else 'k.s'
    opt = eval(sys.argv[2]) if len(sys.argv) > 2 else {}
    txt, n, added, errs = build(opt)
    open(out, 'w').write(txt)
    print(f"{out}: {n} instructions, {added} nops added, {len(errs)} wait errors")
```

```python
import sys
from asmfix import fix, check_waits
KNAME = 'gated_mix__ssm_conv_s5__linear_kernel_hedgehog__prompt'

WS_EPOCH = 0
WS_FLAGS = 0x1000
FL_E, FL_K, FL_H, FL_O = 0, 0x2000, 0x4000, 0x8000
WS_E     = 0x10000
WS_H2    = 0x40000
WS_KV    = 0x80000
REC = 2304
WS_A2H   = 0x200000
RECO = 2304
WS_A2O   = 0x700000
WS_STAMP = 0xA00000
WS_SIZE  = 0x1000000
SREG = 0x0
XREG = 0x8000
TREG = 0x10000
def xsl(s): return ((s+2) & 3)*16384
SCR  = 0x20000
L_TFL  = SCR + 0x0
L_SFL  = SCR + 0x10
L_G    = SCR + 0x200
L_GATE = SCR + 0x400
L_WPHI = SCR + 0x800
L_SEGZ = SCR + 0xC00
L_SEG  = SCR + 0x1400
L_ZD   = SCR + 0x1C00
L_BSL  = SCR + 0x2000
L_KVR  = SCR + 0x2000
L_ZR   = SCR + 0x6000
L_KVD  = SCR + 0x6400
L_HP   = SCR + 0x6C00
LDS_BYTES = 0x28000
LOG2E = 0x3fb8aa3b

def vr(a, n=1): return f"v{a}" if n == 1 else f"v[{a}:{a+n-1}]"
def sr(a, n=1): return f"s{a}" if n == 1 else f"s[{a}:{a+n-1}]"

class G:
    def __init__(self, opt):
        self.o = opt; self.L = []; self.vm = []; self.nlab = 0; self.cap = None
    def e(self, *xs):
        for x in xs: (self.L if self.cap is None else self.cap).append(x)
    def capture(self, fn):
        old = self.cap; self.cap = []; fn(); r = self.cap; self.cap = old; return r
    def play(self, items):
        for it in items:
            if isinstance(it, str): self.e(it)
            elif it[0] == 'vm': self.vmem(it[1], it[2])
            elif it[0] == 'wait': self.waitvm(*it[1])
            elif it[0] == 'grp': self.play(it[1])
    def weave(self, main, groups, start=0, end=None):
        end = len(main) if end is None else end
        n = len(groups); out = []; k = 0
        for i, it in enumerate(main):
            while k < n and i >= start + (end-start)*k//n and i >= start:
                out += groups[k]; k += 1
            out.append(it)
        while k < n: out += groups[k]; k += 1
        self.play(out)
    def lab(self, p):
        self.nlab += 1; return f"L_{p}{self.nlab}"
    def vmem(self, text, tag=None):
        if self.cap is not None: self.cap.append(('vm', text, tag)); return
        if tag and any(tag.startswith(x) for x in self.o.get('skip', ())): return
        self.e(text); self.vm.append(tag)
    def waitvm(self, *tags):
        if self.cap is not None: self.cap.append(('wait', tags)); return
        last = max((i for i, t in enumerate(self.vm) if t in tags), default=-1)
        if last < 0: return
        n = len(self.vm) - 1 - last
        assert n <= 63
        self.e(f"s_waitcnt vmcnt({n})")
        self.vm = self.vm[last+1:]
    def waitvm0(self):
        self.e("s_waitcnt vmcnt(0)"); self.vm = []
    def srd(self, d, base, off=None, size=0):
        if off is None:
            self.e(f"s_mov_b32 s{d}, s{base}", f"s_mov_b32 s{d+1}, s{base+1}", f"s_mov_b32 s{d+2}, {size}")
        else:
            self.e(f"s_add_u32 s{d}, s{base}, s{off}", f"s_addc_u32 s{d+1}, s{base+1}, 0", f"s_sub_u32 s{d+2}, {size}, s{off}")
        self.e(f"s_mov_b32 s{d+3}, 0x20000")
    def count(self, w):
        if self.o.get('stamps'): self.e(f"s_add_u32 s{S_FLOFF}, s{S_FLOFF}, {w}")
    def prio(self, key):
        p = self.o.get('prio', {}).get(key)
        if p is not None: self.e(f"s_setprio {p}")
    def stamp(self, i):
        if self.o.get('amp') == i: self.e("s_waitcnt lgkmcnt(0)", "s_memrealtime s[66:67]", "s_waitcnt lgkmcnt(0)")
        if not self.o.get('stamps'): return
        if self.o['stamps'] == 2 and i != 16: return
        self.e("s_waitcnt lgkmcnt(0)", "s_memrealtime s[100:101]", "s_memtime s[66:67]", "s_waitcnt lgkmcnt(0)", f"v_writelane_b32 v{V_STAMP}, s100, {i}", f"v_writelane_b32 v{V_STAMP}, s66, {i+32}")
    def mfma(self, d, a, b, c=None):
        cc = "0" if c is None else vr(c, 16)
        self.e(f"v_mfma_f32_32x32x16_bf16 {vr(d,16)}, {vr(a,4)}, {vr(b,4)}, {cc}")
    def cvt16(self, dst, src, n=16):
        for q in range(n//2): self.e(f"v_cvt_pk_bf16_f32 v{dst+q}, v{src+2*q}, v{src+2*q+1}")
    def arrive(self, stage, tmp):
        self.e(f"v_mov_b32 v{tmp}, {stage}", "s_mov_b64 exec, 1", f"ds_write_b32 v{V_MYFL}, v{tmp}", "s_mov_b64 exec, -1")
    def rwait(self, stage, tmp):
        l = self.lab('rs')
        self.e(l+":", f"ds_read_b128 {vr(tmp,4)}, v{V_FLB}", "s_waitcnt lgkmcnt(0)",
               f"v_min3_u32 v{tmp}, v{tmp}, v{tmp+1}, v{tmp+2}", f"v_min_u32 v{tmp}, v{tmp}, v{tmp+3}",
               f"v_cmp_gt_u32 vcc, {stage}, v{tmp}", f"s_cbranch_vccnz {l}")
    def setflag(self, soff, tmp, wide=True):
        self.e(f"v_mov_b32 v{tmp}, s{S_NON}")
        if wide: self.e(f"v_mov_b32 v{tmp+1}, s{S_NON+1}")
        self.e("s_mov_b64 exec, 1")
        self.vmem(f"buffer_store_dword{'x2' if wide else ''} {vr(tmp, 2 if wide else 1)}, off, {sr(S_WS,4)}, s{soff} sc1", 'flag')
        self.e("s_mov_b64 exec, -1")
    def poll_issue(self, vaddr, soff, mask, tmp, wide=True, track=True):
        self.e(f"v_mov_b32 v{tmp}, 0")
        if wide: self.e(f"v_mov_b32 v{tmp+1}, 0")
        self.e(f"s_mov_b64 exec, {mask}")
        x = f"buffer_atomic_add{'_x2' if wide else ''} {vr(tmp, 2 if wide else 1)}, v{vaddr}, {sr(S_WS,4)}, s{soff} offen sc0 sc1"
        if track: self.vmem(x, 'poll')
        else: self.e(x)
        self.e("s_mov_b64 exec, -1")
    def poll_wait(self, vaddr, soff, mask, tmp, wide=True, cnt=1, lag=0):
        l = self.lab('pl'); d = self.lab('pd')
        chk = [f"v_cmp_ne_u64 vcc, {sr(S_NON,2)}, {vr(tmp,2)}" if wide else f"v_cmp_ne_u32 vcc, s{S_NON}, v{tmp}", f"s_and_b64 vcc, vcc, {mask}"]
        self.waitvm('poll')
        self.e(*chk); self.e(f"s_cbranch_scc0 {d}", f"s_mov_b32 s{S_T0}, {self.o.get('timeout', 200000)}", l+":")
        self.count(cnt)
        if self.o.get('psleep', 2): self.e(f"s_sleep {self.o.get('psleep', 2)}")
        self.poll_issue(vaddr, soff, mask, tmp, wide, False)
        self.e(f"s_sub_u32 s{S_T0}, s{S_T0}, 1", "s_waitcnt vmcnt(0)", f"s_cbranch_scc1 {d}")
        self.e(*chk); self.e(f"s_cbranch_scc1 {l}")
        if lag: self.e(f"s_sleep {lag}")
        self.e(d+":")

S_WV = 3
S_X, S_A, S_B, S_WK, S_WVv, S_WQ, S_WS, S_OUT = 4, 8, 12, 16, 20, 24, 28, 32
P_X, P_LRE, P_LIM, P_BRE, P_BIM, P_CRE, P_CIM, P_LDT = 36, 38, 40, 42, 44, 46, 48, 50
P_DSK, P_BX, P_WQKV, P_WPHI, P_WO, P_GATE, P_OUT, P_DBG, P_WS = 52, 54, 56, 58, 60, 62, 64, 66, 68
S_KX = 70
S_KW = 78
S_NON = 86
S_C, S_J, S_W, S_R0 = 88, 89, 90, 91
S_FLOFF = 92
S_NN = 84
S_M0B = 93
S_T0, S_T1, S_T2, S_T3 = 94, 95, 96, 97
S_M = 98
S_EP = 54
S_DS = 55
V_LANE = 0
V_MYFL, V_FLB, V_L16, V_STAMP = 1, 2, 3, 4
V_FX = 10

def prologue(g):
    e = g.e; o = g.o
    e("s_cmp_ge_u32 s2, 256", "s_cbranch_scc1 L_end")
    e(f"s_load_dwordx16 s[36:51], s[0:1], 0", f"s_load_dwordx16 s[52:67], s[0:1], 64", f"s_load_dwordx2 s[68:69], s[0:1], 128")
    e("v_lshrrev_b32 v1, 6, v0", "v_and_b32 v0, 63, v0", f"v_readfirstlane_b32 s{S_WV}, v1")
    e(f"s_and_b32 s{S_T0}, s2, 3", f"s_lshl_b32 s{S_T0}, s{S_T0}, 2", f"s_bfe_u32 s{S_C}, s2, 0x20003", f"s_add_u32 s{S_C}, s{S_C}, s{S_T0}")
    e(f"s_and_b32 s{S_T0}, s2, 4", f"s_lshl_b32 s{S_T0}, s{S_T0}, 1", f"s_lshr_b32 s{S_J}, s2, 5", f"s_add_u32 s{S_J}, s{S_J}, s{S_T0}")
    e(f"s_and_b32 s{S_W}, s{S_WV}, 3")
    ra, rb_, rx, ry = o.get('rot', (2, 1, 0, 0))
    e(f"s_mul_i32 s{S_R0}, s{S_J}, {rb_}")
    if ra: e(f"s_mul_i32 s{S_T0}, s{S_C}, {ra}", f"s_add_u32 s{S_R0}, s{S_R0}, s{S_T0}")
    if rx: e(f"s_lshr_b32 s{S_T0}, s{S_C}, 2", f"s_mul_i32 s{S_T0}, s{S_T0}, {rx}", f"s_add_u32 s{S_R0}, s{S_R0}, s{S_T0}")
    if ry: e(f"s_lshr_b32 s{S_T0}, s{S_J}, 3", f"s_mul_i32 s{S_T0}, s{S_T0}, {ry}", f"s_add_u32 s{S_R0}, s{S_R0}, s{S_T0}")
    e(f"s_and_b32 s{S_R0}, s{S_R0}, 7")
    e(f"v_lshlrev_b32 v{V_L16}, 4, v0")
    if o.get('stamps'): e(f"v_mov_b32 v{V_STAMP}, 0", f"s_mov_b32 s{S_FLOFF}, 0")
    e(f"s_lshl_b32 s{S_M}, s{S_W}, 12", f"s_add_u32 s{S_M}, s{S_M}, {XREG}")
    e(f"s_cmp_lt_u32 s{S_WV}, 4", "s_cbranch_scc1 L_roleT")

def common_late(g):
    e = g.e
    e(f"s_lshl_b32 s{S_T0}, s{S_WV}, 2", f"s_add_u32 s{S_T0}, s{S_T0}, {L_TFL}", f"v_mov_b32 v{V_MYFL}, s{S_T0}",
      f"s_and_b32 s{S_T0}, s{S_T0}, 0xfffffff0", f"v_mov_b32 v{V_FLB}, s{S_T0}")

def scalar_prefetch(g, items):
    e = g.e
    e(f"s_lshl_b32 s{S_T0}, s2, 2", f"s_add_u32 s{S_T0}, s{S_T0}, s{S_W}")
    k = 0
    for pp, stride, first, n, ls in items:
        e(f"s_mul_i32 s{S_T1}, s{S_T0}, {stride}", f"s_add_u32 s{S_OUT}, s{pp}, s{S_T1}", f"s_addc_u32 s{S_OUT+1}, s{pp+1}, 0")
        for i in range(n):
            e(f"s_load_dword s{S_DS}, {sr(S_OUT,2)}, {first+ls*i} ; touch")

def nonce(g):
    g.e(f"s_mul_i32 s{S_NON}, s{S_EP}, 1664525", f"s_add_u32 s{S_NON}, s{S_NON}, 1013904223",
        f"s_mul_i32 s{S_NON+1}, s{S_EP}, 22695477", f"s_add_u32 s{S_NON+1}, s{S_NON+1}, 0x9e3779b9")

def frag_addr(g, dst, tmp, base_s=None, base_c=0):
    e = g.e
    e(f"v_and_b32 v{tmp}, 31, v0", f"v_lshlrev_b32 v{dst}, 7, v{tmp}", f"v_bfe_u32 v{tmp}, v0, 1, 3", f"v_lshrrev_b32 v{tmp+1}, 5, v0",
      f"v_xor_b32 v{tmp}, v{tmp}, v{tmp+1}", f"v_lshl_add_u32 v{dst}, v{tmp}, 4, v{dst}")
    if base_s is not None: e(f"v_add_u32 v{dst}, s{base_s}, v{dst}")
    if base_c: e(f"v_add_u32 v{dst}, {base_c}, v{dst}")
    for k in range(1, 4): e(f"v_xor_b32 v{dst+k}, {32*k}, v{dst}")

def make_sel(g, dst, tmp):
    e = g.e
    e(f"v_bfe_u32 v{tmp}, v0, 3, 2", f"v_and_b32 v{tmp+1}, 3, v0", f"v_lshl_add_u32 v{tmp}, v{tmp}, 2, v{tmp+1}",
      f"v_bfe_u32 v{tmp+1}, v0, 2, 1", f"v_lshrrev_b32 v{tmp+2}, 5, v0", f"v_xor_b32 v{tmp+1}, v{tmp+1}, v{tmp+2}",
      f"v_lshl_add_u32 v{tmp}, v{tmp+1}, 4, v{tmp}",
      f"v_and_b32 v{tmp+1}, 1, v0", f"v_lshlrev_b32 v{tmp+1}, 4, v{tmp+1}", f"v_mov_b32 v{tmp+2}, 0x3f80",
      f"v_lshlrev_b32 v{tmp+1}, v{tmp+1}, v{tmp+2}", f"v_lshrrev_b32 v{tmp}, 1, v{tmp}")
    for q in range(8):
        e(f"v_cmp_eq_u32 vcc, {q}, v{tmp}", f"v_cndmask_b32 v{dst+q}, 0, v{tmp+1}, vcc")

def rowhalf(g, d):
    if g.o.get('sig8'): g.e(f"s_lshr_b32 s{d}, s{S_J}, 3")
    else: g.e(f"s_and_b32 s{d}, s{S_J}, 1")
def colblk(g, d):
    if g.o.get('sig8'): g.e(f"s_and_b32 s{d}, s{S_J}, 7")
    else: g.e(f"s_lshr_b32 s{d}, s{S_J}, 1")

def final_preload(g, tmp):
    e = g.e
    rowhalf(g, S_T1)
    e(f"s_lshl_b32 s{S_T0}, s{S_C}, 7", f"s_lshl_b32 s{S_T1}, s{S_T1}, 6", f"s_add_u32 s{S_T0}, s{S_T0}, s{S_T1}",
      f"s_lshr_b32 s{S_T1}, s{S_WV}, 2", f"s_lshl_b32 s{S_T1}, s{S_T1}, 5", f"s_add_u32 s{S_T0}, s{S_T0}, s{S_T1}",
      f"s_lshl_b32 s{S_T1}, s{S_W}, 2", f"s_add_u32 s{S_T0}, s{S_T0}, s{S_T1}", f"s_lshl_b32 s{S_T0}, s{S_T0}, 10")
    colblk(g, S_T1); e(f"s_lshl_b32 s{S_T1}, s{S_T1}, 7")
    e(f"v_and_b32 v{tmp}, 15, v0", f"v_lshlrev_b32 v{tmp}, 3, v{tmp}", f"v_add_u32 v{tmp}, s{S_T1}, v{tmp}",
      f"v_lshrrev_b32 v5, 4, v0", f"v_lshl_add_u32 v5, v5, 10, v{tmp}", f"v_add_u32 v5, s{S_T0}, v5", f"v_add_u32 v{tmp+1}, 0x4000, v5")
    g.vmem(f"global_load_dwordx2 {vr(V_FX,2)}, v5, {sr(P_X,2)}", 'fin')
    g.vmem(f"global_load_dwordx2 {vr(V_FX+2,2)}, v{tmp+1}, {sr(P_X,2)}", 'fin')
    g.vmem(f"global_load_dwordx2 {vr(V_FX+4,2)}, v{tmp}, {sr(P_DSK,2)}", 'fin')

def part_addr(g, dst, tmp, base_s):
    e = g.e
    e(f"v_and_b32 v{tmp}, 31, v0", f"v_lshlrev_b32 v{dst}, 8, v{tmp}", f"v_and_b32 v{tmp}, 7, v0", f"v_lshrrev_b32 v{tmp+1}, 5, v0",
      f"v_xor_b32 v{tmp}, v{tmp}, v{tmp+1}", f"v_lshl_add_u32 v{dst}, v{tmp}, 4, v{dst}", f"v_add_u32 v{dst}, s{base_s}, v{dst}")
    for k in range(1, 4): e(f"v_xor_b32 v{dst+k}, {32*k}, v{dst}")

def softmax(g, p, out, tmp):
    e = g.e
    e(f"v_max3_f32 v{tmp}, v{p}, v{p+1}, v{p+2}")
    for i in range(3, 15, 2): e(f"v_max3_f32 v{tmp}, v{tmp}, v{p+i}, v{p+i+1}")
    e(f"v_max_f32 v{tmp}, v{tmp}, v{p+15}", f"v_mul_f32 v{tmp}, s{S_T3}, v{tmp}")
    for i in range(0, 16, 2):
        e(f"v_pk_fma_f32 {vr(p+i,2)}, {vr(p+i,2)}, {sr(S_T2,2)}, {vr(tmp,2)} op_sel_hi:[1,0,0]")
    for i in range(16): e(f"v_exp_f32 v{p+i}, v{p+i}")
    e(f"v_pk_add_f32 {vr(tmp,2)}, {vr(p,2)}, {vr(p+2,2)}", f"v_pk_add_f32 {vr(tmp+2,2)}, {vr(p+4,2)}, {vr(p+6,2)}")
    e(f"v_pk_add_f32 {vr(tmp,2)}, {vr(tmp,2)}, {vr(p+8,2)}", f"v_pk_add_f32 {vr(tmp+2,2)}, {vr(tmp+2,2)}, {vr(p+10,2)}")
    e(f"v_pk_add_f32 {vr(tmp,2)}, {vr(tmp,2)}, {vr(p+12,2)}", f"v_pk_add_f32 {vr(tmp+2,2)}, {vr(tmp+2,2)}, {vr(p+14,2)}")
    e(f"v_pk_add_f32 {vr(tmp,2)}, {vr(tmp,2)}, {vr(tmp+2,2)}", f"v_add_f32 v{tmp}, v{tmp}, v{tmp+1}", f"v_rcp_f32 v{tmp}, v{tmp}")
    for i in range(0, 16, 2):
        e(f"v_pk_mul_f32 {vr(p+i,2)}, {vr(p+i,2)}, {vr(tmp,2)} op_sel_hi:[1,0]")
    g.cvt16(out, p)

def softmax_np(g, p, out, tmp):
    e = g.e
    e(f"v_max3_f32 v{tmp}, v{p}, v{p+1}, v{p+2}")
    for i in range(3, 15, 2): e(f"v_max3_f32 v{tmp}, v{tmp}, v{p+i}, v{p+i+1}")
    e(f"v_max_f32 v{tmp}, v{tmp}, v{p+15}", f"v_mul_f32 v{tmp}, s{S_T3}, v{tmp}")
    e(f"v_fma_f32 v{p}, v{p}, s{S_T2}, v{tmp}", f"v_fma_f32 v{p+1}, v{p+1}, s{S_T2}, v{tmp}")
    for i in range(16):
        e(f"v_exp_f32 v{p+i}, v{p+i}")
        if i+2 < 16: e(f"v_fma_f32 v{p+i+2}, v{p+i+2}, s{S_T2}, v{tmp}")
        if i == 2: e(f"v_add_f32 v{tmp+1}, v{p}, v{p+1}")
        elif i > 2: e(f"v_add_f32 v{tmp+1}, v{tmp+1}, v{p+i-1}")
    e(f"v_add_f32 v{tmp+1}, v{tmp+1}, v{p+15}", f"v_rcp_f32 v{tmp+1}, v{tmp+1}")
    for i in range(0, 16, 2):
        e(f"v_mul_f32 v{p+i}, v{p+i}, v{tmp+1}", f"v_mul_f32 v{p+i+1}, v{p+i+1}, v{tmp+1}", f"v_cvt_pk_bf16_f32 v{out+i//2}, v{p+i}, v{p+i+1}")

def sum16(g, p, tmp):
    e = g.e
    e(f"v_pk_add_f32 {vr(tmp,2)}, {vr(p,2)}, {vr(p+2,2)}", f"v_pk_add_f32 {vr(tmp+2,2)}, {vr(p+4,2)}, {vr(p+6,2)}")
    e(f"v_pk_add_f32 {vr(tmp,2)}, {vr(tmp,2)}, {vr(p+8,2)}", f"v_pk_add_f32 {vr(tmp+2,2)}, {vr(tmp+2,2)}, {vr(p+10,2)}")
    e(f"v_pk_add_f32 {vr(tmp,2)}, {vr(tmp,2)}, {vr(p+12,2)}", f"v_pk_add_f32 {vr(tmp+2,2)}, {vr(tmp+2,2)}, {vr(p+14,2)}")
    e(f"v_pk_add_f32 {vr(tmp,2)}, {vr(tmp,2)}, {vr(tmp+2,2)}", f"v_add_f32 v{tmp}, v{tmp}, v{tmp+1}")

def rec_store(g, data, ck, vl4, soff, tag):
    e = g.e
    for a in range(2): g.vmem(f"buffer_store_dwordx4 {vr(data+4*a,4)}, v{V_L16}, {sr(S_WS,4)}, s{soff} offen offset:{1024*a} sc1", tag)
    e(f"v_add3_u32 v{ck}, v{data}, v{data+1}, v{data+2}", f"v_add3_u32 v{ck}, v{ck}, v{data+3}, v{data+4}", f"v_add3_u32 v{ck}, v{ck}, v{data+5}, v{data+6}",
      f"v_add_u32 v{ck}, v{ck}, v{data+7}", f"v_sub_u32 v{ck}, s{S_NON}, v{ck}")
    g.vmem(f"buffer_store_dword v{ck}, v{vl4}, {sr(S_WS,4)}, s{soff} offen offset:2048 sc1", tag)

class RecStream:
    def __init__(s, g, n, depth, buf, ck, tmp, vl4, offs, sA, sB):
        s.g, s.n, s.D, s.buf, s.ck, s.tmp, s.vl4, s.offs, s.sA, s.sB = g, n, depth, buf, ck, tmp, vl4, offs, sA, sB
        s.cold = []
    def frag(s, i, r, a): return s.buf + 16*(i % s.D) + 8*r + 4*a
    def load(s, i, track=True):
        g = s.g
        for r, sd in ((0, s.sA), (1, s.sB)):
            base, c = s.offs(i, r)
            g.e(f"s_add_u32 s{sd}, s{base}, {c}")
            ld = [f"buffer_load_dwordx4 {vr(s.frag(i,r,a),4)}, v{V_L16}, {sr(S_WS,4)}, s{sd} offen offset:{1024*a} sc1" for a in range(2)]
            ld.append(f"buffer_load_dword v{s.ck+2*(i % s.D)+r}, v{s.vl4}, {sr(S_WS,4)}, s{sd} offen offset:2048 sc1")
            for x in ld:
                if track: g.vmem(x, f'a{i}')
                else: g.e(x)
    def check(s, i):
        g = s.g; b = s.frag(i, 0, 0); c = s.ck+2*(i % s.D); t = s.tmp
        g.e(f"v_add3_u32 v{t}, v{c}, v{b}, v{b+1}", f"v_add3_u32 v{t+1}, v{c+1}, v{b+8}, v{b+9}")
        for k in range(2, 8, 2): g.e(f"v_add3_u32 v{t}, v{t}, v{b+k}, v{b+k+1}", f"v_add3_u32 v{t+1}, v{t+1}, v{b+8+k}, v{b+9+k}")
        g.e(f"v_cmp_ne_u64 vcc, {sr(S_NN,2)}, {vr(t,2)}")
    def need(s, i, inflight):
        g = s.g; lr = g.lab('rr'); lo = g.lab('ro'); l2 = g.lab('rq')
        g.waitvm(f'a{i}'); s.check(i)
        g.e(f"s_cbranch_vccnz {lr}" if not g.o.get('noval') else "s_nop 0", lo+":")
        def rt():
            g.e(lr+":", f"s_mov_b32 s{S_T0}, {g.o.get('timeout', 200000)}", l2+":", f"s_sleep {g.o.get('rsleep', 2)}"); g.count(0x1000000); s.load(i, False)
            g.e(f"s_sub_u32 s{S_T0}, s{S_T0}, 1", "s_waitcnt vmcnt(0)", f"s_cbranch_scc1 {lo}"); s.check(i)
            g.e(f"s_cbranch_vccnz {l2}")
            for k in inflight: s.load(k, False)
            g.e(f"s_branch {lo}", g.lab('role_c')+":")
        s.cold.append(g.capture(rt))

def epoch_load(g, v):
    g.e(f"v_mov_b32 v{v}, {WS_EPOCH}")
    g.vmem(f"global_load_dword v{v}, v{v}, {sr(P_WS,2)} sc1", 'ep')
def epoch_use(g, v):
    g.e(f"v_readfirstlane_b32 s{S_EP}, v{v}"); nonce(g)

def roleT(g):
    e = g.e; o = g.o
    g.vm = []
    X = 128
    VXO = 6
    VBO = 5
    VWO = 10
    VXA = 12
    VTR = 11
    WPA, WPB, SEL = 16, 20, 24
    ACC, RING, KP, DA, DB, PA, PB = 32, 48, 72, 80, 96, 112, 120
    e("L_roleT:")
    def slice_offs(s):
        e(f"s_add_u32 s{S_T0}, s{S_R0}, {s}", f"s_and_b32 s{S_T0}, s{S_T0}, 7", f"s_lshl_b32 s{S_KX+s}, s{S_T0}, 7", f"s_mul_i32 s{S_KW+s}, s{S_T0}, {64*3072}")
    for s in range(2): slice_offs(s)
    e("v_lshrrev_b32 v32, 5, v0", "v_bfe_u32 v33, v0, 3, 2", "v_and_b32 v34, 7, v0", "v_lshrrev_b32 v35, 4, v0", "v_xor_b32 v34, v34, v35", "v_lshlrev_b32 v34, 4, v34")
    e("v_lshl_add_u32 v36, v32, 4, v33", f"v_lshl_add_u32 v{VXO}, v36, 10, v34")
    e(f"v_xor_b32 v{VXO+1}, 64, v{VXO}", f"v_add_u32 v{VXO+2}, {2*3072}, v{VXO}", f"v_add_u32 v{VXO+3}, {3*3072}, v{VXO+1}", f"v_add_u32 v{VXO+1}, 3072, v{VXO+1}")
    e("v_lshl_add_u32 v36, v32, 3, v33", f"v_lshl_add_u32 v{VBO}, v36, 10, v34")
    e(f"s_and_b32 s{S_T0}, s{S_W}, 1", f"s_lshl_b32 s{S_T1}, s{S_T0}, 6", f"v_xor_b32 v{VBO}, s{S_T1}, v{VBO}",
      f"s_lshl_b32 s{S_T0}, s{S_T0}, 12", f"s_lshr_b32 s{S_T1}, s{S_W}, 1", f"s_lshl_b32 s{S_T1}, s{S_T1}, 14", f"s_add_u32 s{S_T0}, s{S_T0}, s{S_T1}",
      f"s_lshl_b32 s{S_T1}, s{S_J}, 15", f"s_add_u32 s{S_T2}, s{S_T0}, s{S_T1}")
    e(f"s_lshl_b32 s{S_T0}, s{S_C}, 17", f"s_lshl_b32 s{S_T1}, s{S_W}, 15", f"s_add_u32 s{S_T3}, s{S_T0}, s{S_T1}")
    e(f"s_lshl_b32 s{S_M0B}, s{S_W}, 10")
    e(f"v_lshrrev_b32 v36, 2, v0", f"v_mul_u32_u24 v36, 3072, v36", f"v_and_b32 v37, 3, v0", f"v_lshl_add_u32 v{VWO}, v37, 4, v36")
    e(f"s_mul_i32 s{S_T0}, s{S_W}, {16*3072}", f"s_lshl_b32 s{S_T1}, s{S_J}, 6", f"s_add_u32 s{S_T0}, s{S_T0}, s{S_T1}", f"s_add_u32 s{S_M+1}, s{S_T0}, 1024")
    for d, sz in ((S_X, 2097152), (S_A, 524288), (S_B, 524288), (S_WK, 1572864)):
        off = {S_X: S_T3, S_A: S_T2, S_B: S_T2, S_WK: S_M+1}[d]
        e(f"s_sub_u32 s{d+2}, {sz}, s{off}", f"s_mov_b32 s{d+3}, 0x20000")
    e(f"s_add_u32 m0, s{S_M}, {xsl(0)}")
    e("s_waitcnt lgkmcnt(0)")
    def base(d, p, off): e(f"s_add_u32 s{d}, s{p}, s{off}", f"s_addc_u32 s{d+1}, s{p+1}, 0")
    def dma_x(s, rng=range(4), setm0=True):
        if setm0: e(f"s_add_u32 m0, s{S_M}, {xsl(s)}")
        for gg in rng:
            g.vmem(f"buffer_load_dwordx4 v{VXO+gg}, {sr(S_X,4)}, s{S_KX+s} offen offset:{1024*gg} lds", f'x{s}')
    def dma_b(s):
        for part in range(2):
            e(f"s_add_u32 m0, s{S_M0B}, {L_BSL + (s%3)*8192 + part*4096}")
            g.vmem(f"buffer_load_dwordx4 v{VBO}, {sr(S_A if part==0 else S_B,4)}, s{S_KX+s} offen lds", f'x{s}')
    def dma_w(srd, slot, s, tag):
        e(f"s_add_u32 m0, s{S_M0B}, {TREG + slot*32768 + s*4096}")
        g.vmem(f"buffer_load_dwordx4 v{VWO}, {sr(srd,4)}, s{S_KW+s} offen lds", tag)
    def wgroups(srd, slot, tag, rng): return [g.capture(lambda s=s: dma_w(srd, slot, s, tag)) for s in rng]
    base(S_X, P_X, S_T3); dma_x(0, setm0=False)
    base(S_A, P_BRE, S_T2); base(S_B, P_BIM, S_T2); dma_b(0)
    base(S_WK, P_WQKV, S_M+1); dma_w(S_WK, -2, 0, 'x0')
    n1 = o.get('x1_pre', 2)
    dma_x(1, range(n1))
    if o.get('spre'): scalar_prefetch(g, [(P_CRE, 512, 0, 4, 128), (P_CIM, 512, 0, 4, 128)])
    for s in range(2, 8): slice_offs(s)
    e(f"v_add_u32 v113, {L_GATE}, v34")
    frag_addr(g, VXA, 32, base_s=S_M)
    e("v_lshrrev_b32 v32, 5, v0", "v_bfe_u32 v33, v0, 2, 2", "v_lshl_add_u32 v32, v32, 3, v33", "v_bfe_u32 v34, v0, 4, 1",
      f"v_lshlrev_b32 v{VTR}, 6, v32", f"v_lshl_add_u32 v{VTR}, v34, 5, v{VTR}", "v_and_b32 v35, 1, v0", f"v_lshl_add_u32 v{VTR}, v35, 4, v{VTR}",
      "v_bfe_u32 v35, v0, 1, 1", f"v_lshl_add_u32 v{VTR}, v35, 3, v{VTR}")
    e("v_lshlrev_b32 v112, 5, v32", "v_lshl_add_u32 v112, v34, 4, v112", "v_lshl_add_u32 v112, v35, 3, v112", f"v_add_u32 v112, {L_WPHI}, v112")
    rowhalf(g, S_T0)
    e(f"s_lshl_b32 s{S_T0}, s{S_T0}, 13", f"s_lshl_b32 s{S_T1}, s{S_W}, 11", f"s_add_u32 s{S_T0}, s{S_T0}, s{S_T1}", f"s_add_u32 s{S_T0}, s{S_T0}, {XREG}",
      f"v_add_u32 v115, s{S_T0}, v{V_L16}", "v_xor_b32 v116, 64, v115", "v_mov_b32 v118, 0", "v_mov_b32 v119, 0")
    e(f"s_sub_u32 s{S_T0}, s{S_M+1}, 1024"); g.srd(S_WQ, P_WQKV, S_T0, 1572864)
    e(f"s_add_u32 s{S_T0}, s{S_M+1}, 1024"); g.srd(S_WVv, P_WQKV, S_T0, 1572864)
    g.srd(S_WS, P_WS, None, WS_SIZE)
    common_late(g)
    make_sel(g, SEL, 32)
    g.arrive(0, 32)
    e(f"s_mov_b32 s{S_T2}, {LOG2E}", f"s_mov_b32 s{S_T3}, {LOG2E | 0x80000000}")
    g.stamp(0)
    dma_x(1, range(n1, 4), setm0=False); dma_b(1); dma_w(S_WK, -2, 1, 'x1')
    GB = 48
    WB = 80
    def gate_rd(s):
        b = GB+12*(s & 1)
        e(f"ds_read_b128 {vr(b,4)}, v115 offset:{xsl(s)}", f"ds_read_b128 {vr(b+4,4)}, v116 offset:{xsl(s)+1024}", f"ds_read_b128 {vr(b+8,4)}, v113 offset:{s*128}")
    def gate_dot(s):
        b = GB+12*(s & 1)
        for q in range(4): e(f"v_dot2c_f32_bf16 v118, v{b+q}, v{b+8+q}", f"v_dot2c_f32_bf16 v119, v{b+4+q}, v{b+8+q}")
    def kmm(s, k): g.mfma(ACC, WB+16*(s & 1)+4*k, X+16*s+4*k, None if (s == 0 and k == 0) else ACC)
    wv = wgroups(S_WVv, 1, 'wv', range(8))
    for s in range(8):
        g.waitvm(f'x{s}')
        e("s_waitcnt lgkmcnt(0)", "s_barrier")
        if s == 0: g.stamp(1)
        def issue():
            if s+2 < 8: dma_x(s+2); dma_b(s+2); dma_w(S_WK, -2, s+2, f'x{s+2}')
            if s == 0: epoch_load(g, 114)
            for _ in range(o.get('wv_sched', {6: 4, 7: 4}).get(s, 0)): g.play(wv.pop(0))
        if not o.get('dma_late'): issue()
        for k in range(4):
            if s > 0: kmm(s-1, k)
            e(f"ds_read_b128 {vr(X+16*s+4*k,4)}, v{VXA+k} offset:{xsl(s)}")
            for i in range(2): e(f"ds_read_b64_tr_b16 {vr(WB+16*(s&1)+4*k+2*i,2)}, v{VTR} offset:{(4*s+k)*1024+i*256}")
        if s >= 1: gate_rd(s-1)
        if o.get('dma_late'): issue()
        if s >= 2: gate_dot(s-2)
        if s == 2:
            for hd, dst in ((0, WPA), (1, WPB)):
                for i in range(2): e(f"ds_read_b64_tr_b16 {vr(dst+2*i,2)}, v112 offset:{hd*512+i*128}")
        if s == 3:
            epoch_use(g, 114)
            e("v_bfe_u32 v112, v0, 2, 1", "v_mul_u32_u24 v112, 0x8000, v112", "v_lshl_or_b32 v112, v112, 16, v112")
            for q in range(8): e(f"v_xor_b32 v{WPA+q}, v{WPA+q}, v112")
    e("s_waitcnt lgkmcnt(0)")
    for k in range(4): kmm(7, k)
    gate_rd(7); gate_dot(6)
    while wv: g.play(wv.pop(0))
    wq = wgroups(S_WQ, 0, 'wq', range(8))
    qa, qb, qc = o.get('wq_pre', (0, 0, 0))
    for _ in range(qa): g.play(wq.pop(0))
    e(f"v_add_u32 v{VTR}, {TREG}, v{VTR}")
    g.stamp(2)
    g.cvt16(KP, ACC, 8); g.mfma(DA, WPA, KP); g.cvt16(KP+4, ACC+8, 8); g.mfma(DB, WPB, KP+4)
    e("s_waitcnt lgkmcnt(0)"); gate_dot(7)
    e("v_lshrrev_b32 v113, 3, v0", f"s_lshl_b32 s{S_T0}, s{S_W}, 6", f"s_add_u32 s{S_T0}, s{S_T0}, {L_G}", f"v_lshl_add_u32 v113, v113, 2, s{S_T0}")
    for md in ("quad_perm:[1,0,3,2]", "quad_perm:[2,3,0,1]", "row_half_mirror"):
        e(f"v_add_f32_dpp v118, v118, v118 {md} row_mask:0xf bank_mask:0xf", f"v_add_f32_dpp v119, v119, v119 {md} row_mask:0xf bank_mask:0xf")
    e(f"v_mul_f32 v118, s{S_T3}, v118", f"v_mul_f32 v119, s{S_T3}, v119", "v_exp_f32 v118, v118", "v_exp_f32 v119, v119", "v_add_f32 v118, 1.0, v118", "v_add_f32 v119, 1.0, v119",
      "v_rcp_f32 v118, v118", "v_rcp_f32 v119, v119", "ds_write_b32 v113, v118", "ds_write_b32 v113, v119 offset:32")
    def wgemm(slot, transposed, groups=(), k0=0, k1=32, fill=()):
        D = 6
        groups = list(groups); n = len(groups); k = 0; fill = list(fill); nf = len(fill); kf = 0
        def rd(ks):
            for i in range(2): e(f"ds_read_b64_tr_b16 {vr(RING+4*(ks%D)+2*i,2)}, v{VTR} offset:{slot*32768+ks*1024+i*256}")
        for ks in range(D-1): rd(ks)
        for ks in range(32):
            if ks+D-1 < 32: rd(ks+D-1)
            upto = nf*(ks+1)//32
            if ks == 0:
                g.play(fill[:upto]); kf = upto
            e(f"s_waitcnt lgkmcnt({2*min(D-1, 31-ks)})")
            w = RING+4*(ks%D); x = X+4*ks
            if transposed: g.mfma(ACC, w, x, None if ks == 0 else ACC)
            else: g.mfma(ACC, x, w, None if ks == 0 else ACC)
            while k < n and ks >= k0 + (k1-k0)*k//n: g.play(groups[k]); k += 1
            upto = min(nf, nf*(ks+2)//32)
            g.play(fill[kf:upto]); kf = max(kf, upto)
    S_KVG, S_ZG, S_KVP, S_ZP, S_WOM, S_OST, S_NM = S_KX, S_KX+1, S_KX+2, S_KX+3, S_KX+4, S_KX+5, S_KX+6
    VKW, VKR, VZR, VZ8 = 12, 13, 14, 15
    VA, VB, ZT = 80, 88, 76
    H2 = o.get('hops', 1) == 2
    OCK = o.get('ock', 1)
    oh = o.get('ohint_at', 0) if OCK else None
    RO = RECO if OCK else 2048
    def su1():
        e(f"s_mov_b32 s{S_M}, 0xffff", f"s_mov_b32 s{S_M+1}, 0xffff", f"s_mov_b32 s{S_NM}, 0xffff0000", f"s_mov_b32 s{S_NM+1}, 0xffff0000")
        e(f"s_add_u32 s{S_T0}, s{S_M0B}, {L_KVR}", f"v_add_u32 v{VKW}, s{S_T0}, v{V_L16}")
    def su2():
        e(f"s_lshl_b32 s{S_T0}, s{S_W}, 12", f"s_add_u32 s{S_T0}, s{S_T0}, {L_KVR}", f"v_add_u32 v{VKR}, s{S_T0}, v{V_L16}")
    def su3():
        e(f"s_lshl_b32 s{S_T0}, s{S_W}, 6", f"s_add_u32 s{S_T0}, s{S_T0}, {L_ZR}", f"v_and_b32 v{VZ8}, 60, v0", f"v_add_u32 v{VZR}, s{S_T0}, v{VZ8}")
        if H2: e(f"v_lshlrev_b32 v{VZ8}, 8, v{VZ8}", f"v_and_or_b32 v{VZ8}, v{V_L16}, 48, v{VZ8}")
    def su4():
        e(f"s_lshl_b32 s{S_T0}, s{S_J}, 2", f"s_add_u32 s{S_T0}, s{S_T0}, s{S_W}", f"s_lshl_b32 s{S_KVG}, s{S_T0}, 14", f"s_add_u32 s{S_KVG}, s{S_KVG}, {WS_KV}")
        if H2: e(f"s_lshl_b32 s{S_ZG}, s{S_T0}, 10", f"s_add_u32 s{S_ZG}, s{S_ZG}, {WS_H2}")
    def su5():
        if H2: e(f"s_lshl_b32 s{S_T0}, s{S_C}, 6", f"s_add_u32 s{S_KVP}, s{S_KVG}, s{S_T0}", f"s_add_u32 s{S_ZP}, s{S_ZG}, s{S_T0}",
                 f"s_lshl_b32 s{S_T0}, s{S_C}, 10", f"s_add_u32 s{S_KVG}, s{S_KVG}, s{S_T0}")
        else: e(f"s_lshl_b32 s{S_T0}, s{S_C}, 10", f"s_add_u32 s{S_KVP}, s{S_KVG}, s{S_T0}")
    def su5b():
        e(f"s_lshl_b32 s{S_T0}, s{S_J}, 2", f"s_add_u32 s{S_T0}, s{S_T0}, s{S_W}", f"s_lshl_b32 s{S_T0}, s{S_T0}, 7", f"s_add_u32 s{S_B}, s{S_T0}, {WS_FLAGS+FL_K}",
          f"s_lshl_b32 s{S_T0}, s{S_C}, 2", f"s_add_u32 s{S_B+1}, s{S_B}, s{S_T0}")
    def su6():
        colblk(g, S_T1)
        e(f"s_lshl_b32 s{S_T0}, s{S_W}, 16", f"s_lshl_b32 s{S_T1}, s{S_T1}, 7", f"s_add_u32 s{S_T0}, s{S_T0}, s{S_T1}")
        g.srd(S_A, P_WO, S_T0, 524288)
    def su7():
        e(f"v_lshrrev_b32 v{VXO}, 3, v0", f"v_lshlrev_b32 v{VXO}, 10, v{VXO}", f"v_and_b32 v{VXO+1}, 7, v0", f"v_bfe_u32 v{VXO+2}, v0, 4, 1")
        e(f"v_lshlrev_b32 v{VXO+2}, 2, v{VXO+2}", f"v_xor_b32 v{VXO+1}, v{VXO+1}, v{VXO+2}", f"v_lshl_add_u32 v{VXO}, v{VXO+1}, 4, v{VXO}")
        for k in range(1, 4): e(f"v_add_u32 v{VXO+k}, {7168*k}, v{VXO}")
        e(f"s_lshl_b32 s{S_WOM}, s{S_W}, 13")
    def su10():
        e(f"s_lshl_b32 s{S_T0}, s{S_C}, 2", f"s_add_u32 s{S_T0}, s{S_T0}, s{S_W}", f"s_lshl_b32 s{S_T0}, s{S_T0}, 4", f"s_add_u32 s{S_T0}, s{S_T0}, s{S_J}",
          f"s_mul_i32 s{S_T0}, s{S_T0}, {RO}", f"s_add_u32 s{S_OST}, s{S_T0}, {WS_A2O}")
    for f in (su1, su2, su3, su4, su5, su5b): f()
    e(f"s_mov_b32 s{S_DS}, 0x3f803f80", f"s_lshl_b32 s{S_T0}, s{S_W}, 8", f"s_add_u32 s{S_T0}, s{S_T0}, {L_ZR}", f"v_lshl_add_u32 v{VBO}, v0, 2, s{S_T0}")
    def phik():
        softmax_np(g, DA, PA, KP)
        g.mfma(DA, PA, SEL); g.mfma(DA, PA+4, SEL+4, DA)
        softmax_np(g, DB, PB, KP)
        g.mfma(DB, PB, SEL); g.mfma(DB, PB+4, SEL+4, DB)
        e(f"v_mov_b32 v{ZT}, 0", f"v_mov_b32 v{ZT+1}, 0")
        g.cvt16(PA, DA)
        for q in range(16): e(f"v_mov_b32 v{VA+q}, 0")
        g.cvt16(PB, DB)
        for q in range(8): e(f"v_dot2c_f32_bf16 v{ZT}, s{S_DS}, v{PA+q}", f"v_dot2c_f32_bf16 v{ZT+1}, s{S_DS}, v{PB+q}")
    fill = g.capture(phik)
    npre = o.get('sm_pre', 30)
    g.weave(fill[:npre], wq[:qb]); fill = fill[npre:]; del wq[:qb]
    g.waitvm('wv'); e("s_barrier"); g.prio('t_b8')
    for _ in range(qc): g.play(wq.pop(0))
    g.stamp(3)
    if o.get('onlyS'):
        final_preload(g, 34); final_setup(g); e("s_branch L_final")
    wgemm(1, False, wq, o.get('wq_start', 8), o.get('wq_end', 26), fill)
    g.stamp(5)
    if o.get('khint_early', 1): g.setflag(S_B+1, KP, False)
    e(f"v_permlane32_swap_b32 v{ZT}, v{ZT+1}", f"v_add_f32 v{ZT}, v{ZT}, v{ZT+1}", f"ds_write_b32 v{VBO}, v{ZT}")
    for a in range(2):
        e(f"s_mov_b64 exec, {sr(S_M,2)}"); g.cvt16(VA+4*a, ACC+8*a, 8)
        e(f"s_mov_b64 exec, {sr(S_NM,2)}"); g.cvt16(VB+4*a, ACC+8*a, 8)
        e("s_mov_b64 exec, -1")
        g.mfma(DB, PA+4*a, VA+4*a, None if a == 0 else DB); g.mfma(DB, PB+4*a, VB+4*a, DB)
    su6(); su10()
    g.waitvm('wq')
    for q in range(4): e(f"ds_write_b128 v{VKW}, {vr(DB+4*q,4)} offset:{q*4096}")
    g.arrive(3, RING); su7(); g.rwait(3, RING)
    for q in range(4): e(f"ds_read_b32 v{KP+q}, v{VZR} offset:{q*256}")
    for q in range(4): e(f"ds_read_b128 {vr(DB+4*q,4)}, v{VKR} offset:{q*1024}")
    e(f"v_lshlrev_b32 v{VBO}, 2, v0", f"v_mov_b32 v{KP+7}, s{S_NON}", "s_waitcnt lgkmcnt(4)",
      f"v_pk_add_f32 {vr(KP,2)}, {vr(KP,2)}, {vr(KP+2,2)}", "s_waitcnt lgkmcnt(2)")
    e(f"v_pk_add_f32 {vr(DB,2)}, {vr(DB,2)}, {vr(DB+4,2)}", f"v_pk_add_f32 {vr(DB+2,2)}, {vr(DB+2,2)}, {vr(DB+6,2)}", f"v_add_f32 v{KP+6}, v{KP}, v{KP+1}", "s_waitcnt lgkmcnt(0)",
      f"v_pk_add_f32 {vr(DB+8,2)}, {vr(DB+8,2)}, {vr(DB+12,2)}", f"v_pk_add_f32 {vr(DB+10,2)}, {vr(DB+10,2)}, {vr(DB+14,2)}",
      f"v_pk_add_f32 {vr(DB,2)}, {vr(DB,2)}, {vr(DB+8,2)}", f"v_pk_add_f32 {vr(DB+2,2)}, {vr(DB+2,2)}, {vr(DB+10,2)}",
      f"v_cvt_pk_bf16_f32 v{KP+4}, v{DB}, v{DB+1}", f"v_cvt_pk_bf16_f32 v{KP+5}, v{DB+2}, v{DB+3}")
    g.vmem(f"buffer_store_dwordx4 {vr(KP+4,4)}, v{VZ8 if H2 else V_L16}, {sr(S_WS,4)}, s{S_KVP} offen sc1", 'kvst')
    if not o.get('khint_early', 1): g.setflag(S_B+1, KP, False)
    g.stamp(6)
    def wo_groups(kh):
        r = []
        for q in range(8):
            def f(q=q):
                if q % 4 == 0: e(f"s_add_u32 m0, s{S_WOM}, {TREG + kh*32768 + q*1024}", f"s_mov_b32 s{S_DS}, {kh*262144 + q*8192}")
                g.vmem(f"buffer_load_dwordx4 v{VXO+q%4}, {sr(S_A,4)}, s{S_DS} offen offset:{1024*(q%4)} lds", f'wo')
            r.append(g.capture(f))
        return r
    g.prio('t_q')
    wol = wo_groups(1) + wo_groups(0)
    def wo_issue(key):
        n = o.get('wo_sched', {}).get(key, 0); r = wol[:n]; del wol[:n]; return r
    kpoll = g.capture(lambda: g.poll_issue(VBO, S_B, '0xffff', VKW, False))
    wgemm(0, True, [kpoll]+wo_issue('q'), o.get('kpoll_at', 2), o.get('wo1_end', 20))
    assert len(wol) >= 8
    g.arrive(4, RING); g.prio('t_g')
    g.stamp(7)
    KG, TT = X, 32
    retry = []
    def validated(load, check, tag, cnt):
        lr = g.lab('gr'); lo = g.lab('go'); l2 = g.lab('gq')
        g.waitvm(tag); check()
        e(f"s_cbranch_vccnz {lr}" if not o.get('noval') else "s_nop 0", lo+":")
        def rt():
            e(lr+":", f"s_mov_b32 s{S_T0}, {o.get('timeout', 200000)}", l2+":", f"s_sleep {o.get('rsleep', 4)}"); g.count(cnt); load(False)
            e(f"s_sub_u32 s{S_T0}, s{S_T0}, 1", "s_waitcnt vmcnt(0)", f"s_cbranch_scc1 {lo}"); check()
            e(f"s_cbranch_vccnz {l2}", f"s_branch {lo}", g.lab('role_c')+":")
        retry.append(g.capture(rt))
    def gload(i, track=True):
        e(f"s_add_u32 s{S_T1}, s{S_KVG}, {4096*i}")
        for k in range(4):
            x = f"buffer_load_dwordx4 {vr(KG+16*i+4*k,4)}, v{V_L16}, {sr(S_WS,4)}, s{S_T1} offen offset:{1024*k} sc1"
            g.vmem(x, f'kg{i}') if track else e(x)
    def gcheck(i):
        e(f"v_xor_b32 v{TT+6}, s{S_NON}, v{KG+16*i+3}")
        for k in range(1, 4): e(f"v_bitop3_b32 v{TT+6}, v{TT+6}, s{S_NON}, v{KG+16*i+4*k+3} bitop3:0xf6")
        e(f"v_cmp_ne_u32 vcc, 0, v{TT+6}")
    G1, G2 = 52, 68
    def load1(track=True):
        for i in range(4):
            x = f"buffer_load_dwordx4 {vr(G1+4*i,4)}, v{V_L16}, {sr(S_WS,4)}, s{S_KVG} offen offset:{256*i} sc1"
            g.vmem(x, 'kg1') if track else e(x)
    def check1():
        e(f"v_xor_b32 v{TT+6}, s{S_NON}, v{G1+3}")
        for i in range(1, 4): e(f"v_bitop3_b32 v{TT+6}, v{TT+6}, s{S_NON}, v{G1+4*i+3} bitop3:0xf6")
        e(f"v_cmp_ne_u32 vcc, 0, v{TT+6}")
    def load2(track=True):
        x = f"buffer_load_dwordx4 {vr(G2,4)}, v{V_L16}, {sr(S_WS,4)}, s{S_ZG} offen sc1"
        g.vmem(x, 'kg2') if track else e(x)
    def check2(): e(f"v_cmp_ne_u32 vcc, s{S_NON}, v{G2+3}")
    g.poll_wait(VBO, S_B, '0xffff', VKW, False, 0x100, o.get('hint_lag', 8))
    if H2:
        e("s_mov_b64 exec, 0xffff"); load1(); e("s_mov_b64 exec, -1")
        e(f"s_add_u32 s{S_B}, s{S_B}, 64", f"s_add_u32 s{S_B+1}, s{S_B+1}, 64")
        g.setflag(S_B+1, VKR, False)
        ggr = []; ng = 0
    else:
        ggr = [g.capture(lambda i=i: gload(i)) for i in range(4)]
        ng = o.get('g_pre', 2)
    for x in ggr[:ng]: g.play(x)
    g.cvt16(KP, ACC, 8); g.mfma(DA, WPA, KP); g.cvt16(KP+4, ACC+8, 8); g.mfma(DB, WPB, KP+4)
    sm = softmax_np if o.get('smq_np') else softmax
    def hop1():
        e(f"s_mov_b32 s{S_NM}, 0x3f80", f"s_mov_b32 s{S_NM+1}, 0x3f800000", f"v_mov_b32 v{TT+11}, s{S_NON}", "s_mov_b64 exec, 0xffff")
        validated(load1, check1, 'kg1', 1)
        e(f"v_lshlrev_b32 v{TT}, 16, v{G1}", f"v_and_b32 v{TT+1}, 0xffff0000, v{G1}", f"v_lshlrev_b32 v{TT+2}, 16, v{G1+1}", f"v_and_b32 v{TT+3}, 0xffff0000, v{G1+1}",
          f"v_add_f32 v{TT+4}, v{G1+2}, v{G1+6}")
        for i in range(1, 4):
            r = G1+4*i
            e(f"v_dot2c_f32_bf16 v{TT}, s{S_NM}, v{r}", f"v_dot2c_f32_bf16 v{TT+1}, s{S_NM+1}, v{r}", f"v_dot2c_f32_bf16 v{TT+2}, s{S_NM}, v{r+1}", f"v_dot2c_f32_bf16 v{TT+3}, s{S_NM+1}, v{r+1}")
            if i > 1: e(f"v_add_f32 v{TT+4}, v{TT+4}, v{r+2}")
        for md in ("row_ror:4", "row_ror:8"):
            for k in (4, 0, 1, 2, 3): e(f"v_add_f32_dpp v{TT+k}, v{TT+k}, v{TT+k} {md} row_mask:0xf bank_mask:0xf")
        e(f"v_cvt_pk_bf16_f32 v{TT+10}, v{TT+4}, v{TT+4}", f"v_cvt_pk_bf16_f32 v{TT+8}, v{TT}, v{TT+1}", f"v_cvt_pk_bf16_f32 v{TT+9}, v{TT+2}, v{TT+3}", "s_mov_b64 exec, 15")
        g.vmem(f"buffer_store_dwordx4 {vr(TT+8,4)}, v{V_L16}, {sr(S_WS,4)}, s{S_ZP} offen sc1", 'kvst2')
        e("s_mov_b64 exec, -1")
        g.poll_issue(VBO, S_B, '0xffff', VKW, False)
    if H2 and o.get('hop1_mid', 1):
        sm(g, DA, PA, RING); hop1(); sm(g, DB, PB, RING)
    else:
        g.weave(g.capture(lambda: (sm(g, DA, PA, RING), sm(g, DB, PB, RING))), ggr[ng:], o.get('g_start', 40), o.get('g_end', 120))
        if H2: hop1()
    g.rwait(4, TT)
    for x in wo_issue('g'): g.play(x)
    e(f"s_lshl_b32 s{S_T0}, s{S_W}, 3", f"s_add_u32 s{S_T0}, s{S_T0}, {L_KVD}", f"v_lshlrev_b32 v106, 5, v0", f"v_add_u32 v102, s{S_T0}, v106", f"v_add_u32 v106, {L_KVD}, v106")
    e("v_bfe_u32 v103, v0, 4, 1", "v_lshlrev_b32 v103, 5, v103", "v_lshrrev_b32 v107, 5, v0", "v_lshl_add_u32 v103, v107, 3, v103", "v_bfe_u32 v107, v0, 2, 2", "v_lshl_add_u32 v103, v107, 1, v103",
      f"s_lshr_b32 s{S_T0}, s{S_W}, 1", f"s_lshl_b32 s{S_T0}, s{S_T0}, 6", f"s_and_b32 s{S_T1}, s{S_W}, 1", f"s_lshl_b32 s{S_T1}, s{S_T1}, 4", f"s_add_u32 s{S_T0}, s{S_T0}, s{S_T1}",
      f"s_add_u32 s{S_T0}, s{S_T0}, {L_ZD}", f"v_add_u32 v103, s{S_T0}, v103")
    e("v_and_b32 v107, 32, v0", f"v_add_u32 v107, {L_ZD}, v107", f"v_cndmask_b32 v104, v107, v106, {sr(S_M,2)}", "v_add_u32 v107, 64, v107", f"v_cndmask_b32 v105, v106, v107, {sr(S_M,2)}")
    e(f"s_lshl_b32 s{S_T0}, s{S_C}, 2", f"s_add_u32 s{S_T0}, s{S_T0}, s{S_W}", f"s_lshl_b32 s{S_T0}, s{S_T0}, 8", f"s_lshr_b32 s{S_T1}, s{S_J}, 3", f"s_lshl_b32 s{S_T1}, s{S_T1}, 7",
      f"s_add_u32 s{S_T0}, s{S_T0}, s{S_T1}", f"s_and_b32 s{S_T1}, s{S_J}, 7", f"s_lshl_b32 s{S_T1}, s{S_T1}, {2 if OCK else 3}", f"s_add_u32 s{S_T0}, s{S_T0}, s{S_T1}", f"s_add_u32 s{S_B+1}, s{S_T0}, {WS_FLAGS+FL_O}")
    e(f"s_mov_b32 s{S_T2}, 0x3f80", f"s_mov_b32 s{S_T3}, 0x3f800000")
    g.stamp(8)
    if H2:
        g.poll_wait(VBO, S_B, '0xffff', VKW, False, 0x100, o.get('hint_lag', 8))
        load2()
        if oh == -1: g.setflag(S_B+1, TT+6, False)
        for x in wo_issue('l'): g.play(x)
        validated(load2, check2, 'kg2', 1)
        if oh == 0: g.setflag(S_B+1, TT+6, False)
        g.stamp(9)
        e(f"ds_write_b64 v102, {vr(G2,2)}", f"ds_write_b16 v103, v{G2+2}")
    else:
        for i in range(4):
            validated(lambda t, i=i: gload(i, t), lambda i=i: gcheck(i), f'kg{i}', 1)
            if i == 3 and oh == 0: g.setflag(S_B+1, TT+6, False)
            for k in range(4):
                r = KG+16*i+4*k
                if i == 0 and k == 0:
                    e(f"v_lshlrev_b32 v{TT}, 16, v{r}", f"v_and_b32 v{TT+1}, 0xffff0000, v{r}", f"v_lshlrev_b32 v{TT+2}, 16, v{r+1}", f"v_and_b32 v{TT+3}, 0xffff0000, v{r+1}")
                    continue
                e(f"v_dot2c_f32_bf16 v{TT}, s{S_T2}, v{r}", f"v_dot2c_f32_bf16 v{TT+1}, s{S_T3}, v{r}", f"v_dot2c_f32_bf16 v{TT+2}, s{S_T2}, v{r+1}", f"v_dot2c_f32_bf16 v{TT+3}, s{S_T3}, v{r+1}",
                  f"v_add_f32 v{TT+4}, v{KG+2 if (i == 0 and k == 1) else TT+4}, v{r+2}")
        g.stamp(9)
        e(f"v_cvt_pk_bf16_f32 v{TT+4}, v{TT+4}, v{TT+4}", f"ds_write_b16 v103, v{TT+4}", f"v_cvt_pk_bf16_f32 v{TT}, v{TT}, v{TT+1}", f"v_cvt_pk_bf16_f32 v{TT+1}, v{TT+2}, v{TT+3}", f"ds_write_b64 v102, {vr(TT,2)}")
    wo_in = not wol and o.get('wo_sync5', 1)
    if wo_in: g.waitvm('wo')
    g.arrive(5, 36)
    for x in wo_issue('s'): g.play(x)
    g.rwait(5, 36)
    if oh == 1: g.setflag(S_B+1, TT+6, False)
    g.stamp(10)
    for a in range(2): e(f"ds_read_b128 {vr(32+4*a,4)}, v104 offset:{16*a}", f"ds_read_b128 {vr(40+4*a,4)}, v105 offset:{16*a}")
    VL4 = 21
    e(f"s_mov_b32 s{S_T1}, 0x358637bd", f"v_lshlrev_b32 v{VL4}, {2 if OCK else 3}, v0")
    e("s_waitcnt lgkmcnt(3)"); g.mfma(48, 32, PA)
    e("s_waitcnt lgkmcnt(1)"); g.mfma(48, 36, PA+4, 48); g.mfma(64, 40, PB)
    e("s_waitcnt lgkmcnt(0)"); g.mfma(64, 44, PB+4, 64)
    rowhalf(g, S_T0)
    e(f"s_lshl_b32 s{S_T0}, s{S_T0}, 1", f"s_and_b32 s{S_T2}, s{S_W}, 1", f"s_add_u32 s{S_T0}, s{S_T0}, s{S_T2}",
      f"s_lshr_b32 s{S_T2}, s{S_W}, 1", f"s_lshl_b32 s{S_T2}, s{S_T2}, 3",
      f"s_lshl_b32 s{S_KX}, s{S_C}, 2", f"s_add_u32 s{S_KX}, s{S_KX}, s{S_T0}", f"s_lshl_b32 s{S_KX}, s{S_KX}, 4", f"s_add_u32 s{S_KX}, s{S_KX}, s{S_T2}",
      f"s_lshl_b32 s{S_B}, s{S_KX}, 4", f"s_add_u32 s{S_B}, s{S_B}, {WS_FLAGS+FL_O}")
    for hd, num, den in ((0, 48, 56), (1, 72, 64)):
        e(f"v_add_f32 v{den}, s{S_T1}, v{den}", f"v_rcp_f32 v{den}, v{den}")
        for i in range(8): e(f"v_mul_f32 v{num+i}, v{num+i}, v{den}")
        g.cvt16(80+4*hd, num, 8)
        g.vmem(f"buffer_store_dwordx4 {vr(80+4*hd,4)}, v{V_L16}, {sr(S_WS,4)}, s{S_OST} offen offset:{1024*hd} sc1", 'ost')
    if OCK:
        e("v_add3_u32 v88, v80, v81, v82", "v_add3_u32 v88, v88, v83, v84", "v_add3_u32 v88, v88, v85, v86", "v_add_u32 v88, v88, v87", f"v_sub_u32 v88, s{S_NON}, v88")
        g.vmem(f"buffer_store_dword v88, v{VL4}, {sr(S_WS,4)}, s{S_OST} offen offset:2048 sc1", 'ost')
    if oh == 2: g.setflag(S_B+1, 34, False)
    g.stamp(11)
    g.prio('t_o')
    if OCK:
        final_preload(g, 34)
        if not o.get('opoll_late'): g.poll_issue(VL4, S_B, '0xff', 104, False)
        for x in wol: g.play(x)
    else:
        for x in wo_issue('o'): g.play(x)
    e(f"s_mul_i32 s{S_KX}, s{S_KX}, {RO}", f"s_add_u32 s{S_KX}, s{S_KX}, {WS_A2O}", f"s_mov_b32 s{S_NN}, s{S_NON}", f"s_mov_b32 s{S_NN+1}, s{S_NON}")
    e("v_lshrrev_b32 v96, 5, v0", "v_bfe_u32 v97, v0, 2, 2", "v_lshl_add_u32 v96, v96, 3, v97", "v_lshlrev_b32 v96, 7, v96", "v_bfe_u32 v97, v0, 3, 1", "v_lshl_add_u32 v96, v97, 6, v96",
      "v_bfe_u32 v97, v0, 4, 1", "v_lshl_add_u32 v96, v97, 5, v96", "v_and_b32 v97, 3, v0", "v_lshl_add_u32 v96, v97, 3, v96",
      f"s_lshr_b32 s{S_T0}, s{S_W}, 1", f"s_lshl_b32 s{S_T0}, s{S_T0}, 15", f"s_add_u32 s{S_T0}, s{S_T0}, {TREG}", f"v_add_u32 v96, s{S_T0}, v96", "v_xor_b32 v97, 64, v96")
    def trreads():
        if not wo_in: g.waitvm('wo'); g.arrive(6, 100); g.rwait(6, 100)
        for ks in range(16):
            for ch in range(2):
                for i in range(2): e(f"ds_read_b64_tr_b16 {vr(X+8*ks+4*ch+2*i,2)}, v{96+ch} offset:{ks*2048+i*512}")
        g.arrive(7, 100)
    if not OCK:
        trd = False
        if wo_in: trreads(); trd = True
        g.waitvm('ost'); g.setflag(S_B+1, 34)
        for x in wol: g.play(x)
        final_preload(g, 34)
        if not trd and o.get('tr_first', 1): trreads(); trd = True
        e(f"s_lshl_b32 s{S_T0}, s{S_W}, 13", f"s_add_u32 s{S_T0}, s{S_T0}, {TREG}"); part_addr(g, 6, 36, S_T0)
        if o.get('o_delay'): e(f"s_sleep {o['o_delay']}")
        g.poll_issue(VL4, S_B, '0xff', 104)
        if not trd: trreads()
        final_setup(g)
        g.stamp(12); g.prio('t_a')
        g.poll_wait(VL4, S_B, '0xff', 104, True, 0x10000)
        g.stamp(13)
        for k4 in range(4):
            if k4: e(f"s_add_u32 s{S_KX}, s{S_KX}, 4096")
            for k in range(4): g.vmem(f"buffer_load_dwordx4 {vr(32+16*k4+4*k,4)}, v{V_L16}, {sr(S_WS,4)}, s{S_KX} offen offset:{1024*k} sc1", f'a{4*k4+k}')
        g.rwait(7, 100)
        for ks in range(16):
            g.waitvm(f'a{ks}')
            for ch in range(2): g.mfma(96+16*ch, X+8*ks+4*ch, 32+4*ks, None if ks == 0 else 96+16*ch)
    else:
        rs = RecStream(g, 4, 4, 32, 8, 30, VL4, lambda i, r: (S_KX, (2*i+r)*RECO), S_KX+1, S_KX+2)
        tr_first = o.get('tr_first', 1)
        keep = None
        if tr_first: trreads()
        if o.get('opoll_late'): g.poll_issue(VL4, S_B, '0xff', 104, False)
        final_setup(g)
        g.stamp(12); g.prio('t_a')
        g.poll_wait(VL4, S_B, '0xff', 104, False, 0x10000, o.get('ohint_lag', 8))
        nl = 4 if tr_first else o.get('a2o_pre', 2)
        for i in range(nl): rs.load(i)
        if not tr_first: trreads()
        for i in range(nl, 4): rs.load(i)
        g.rwait(7, 100)
        g.stamp(13)
        for i in range(4):
            rs.need(i, range(i+1, 4))
            for r in range(2):
                for a in range(2):
                    ks = 4*i+2*r+a
                    for ch in range(2): g.mfma(96+16*ch, X+8*ks+4*ch, rs.frag(i, r, a), None if ks == 0 else 96+16*ch)
            if i == 2:
                e(f"s_lshl_b32 s{S_T0}, s{S_W}, 13", f"s_add_u32 s{S_T0}, s{S_T0}, {TREG}"); part_addr(g, 6, 10, S_T0)
        retry += rs.cold
    g.stamp(14)
    for ch in range(2):
        for q in range(4): e(f"ds_write_b128 v{6+q}, {vr(96+16*ch+4*q,4)} offset:{ch*128}")
    e("s_branch L_final")
    e("L_role_cold:")
    for r in retry: g.play(r)

def roleS_start(g):
    e = g.e; o = g.o
    g.vm = []
    VXA, VBA = 12, 6
    e("L_roleS:", "s_setprio 2")
    if o.get('codepre', 1):
        e(f"s_getpc_b64 {sr(S_KX,2)}", "L_pc:",
          f"s_sub_u32 s{S_KX}, s{S_KX}, L_pc-{KNAME}_kernel", f"s_subb_u32 s{S_KX+1}, s{S_KX+1}, 0",
          f"s_lshr_b32 s{S_T0}, s2, 3", f"s_lshl_b32 s{S_T0}, s{S_T0}, 2", f"s_add_u32 s{S_T0}, s{S_T0}, s{S_W}", f"s_lshl_b32 s{S_T0}, s{S_T0}, 8",
          f"v_lshl_add_u32 v98, v0, 7, s{S_T0}", f"v_min_u32 v98, L_codeend-4-{KNAME}_kernel, v98", "s_mov_b64 exec, 3", f"global_load_dword v99, v98, {sr(S_KX,2)}", "s_mov_b64 exec, -1")
    e("v_and_b32 v96, 19, v0", "v_bfe_u32 v97, v0, 2, 1", "v_lshl_add_u32 v96, v97, 3, v96", "v_bfe_u32 v97, v0, 3, 1", "v_lshl_add_u32 v96, v97, 2, v96",
      f"s_lshl_b32 s{S_T0}, s{S_J}, 5", f"v_add_u32 v96, s{S_T0}, v96", "v_lshlrev_b32 v96, 1, v96")
    e(f"s_lshl_b32 s{S_T0}, s{S_R0}, 3", f"s_bitcmp1_b32 s{S_W}, 0", f"s_cselect_b32 s{S_T0}, 0, s{S_T0}", f"s_cselect_b32 s{S_T1}, {L_WPHI-L_GATE}, 0", f"s_add_u32 m0, s{S_T1}, {L_GATE}",
      f"v_add_u32 v97, s{S_T0}, v0", "v_and_b32 v97, 63, v97", "v_lshlrev_b32 v97, 4, v97", f"s_mov_b32 s{S_X+2}, 1024", f"s_mov_b32 s{S_X+3}, 0x20000", f"s_lshl_b32 s{S_T1}, s{S_J}, 10")
    frag_addr(g, VBA, 104, base_c=L_BSL)
    e(f"s_sub_u32 s{S_T0}, s{S_M}, {L_BSL}")
    for k in range(4): e(f"v_add_u32 v{VXA+k}, s{S_T0}, v{VBA+k}")
    e(f"v_mov_b32 v114, {WS_EPOCH}")
    e("s_waitcnt lgkmcnt(0)")
    e(f"s_add_u32 s{S_X}, s{P_WPHI}, s{S_T1}", f"s_addc_u32 s{S_X+1}, s{P_WPHI+1}, 0", f"s_bitcmp1_b32 s{S_W}, 0", f"s_cselect_b64 {sr(S_X,2)}, {sr(S_X,2)}, {sr(P_GATE,2)}")
    e(f"global_load_ushort v100, v96, {sr(P_LDT,2)}", f"global_load_ushort v101, v96, {sr(P_LRE,2)}", f"global_load_ushort v102, v96, {sr(P_LIM,2)}",
      f"global_load_dword v114, v114, {sr(P_WS,2)} sc1")
    e(f"s_cmp_ge_u32 s{S_W}, 2", "s_cbranch_scc1 L_s1", f"buffer_load_dwordx4 v97, {sr(S_X,4)}, 0 offen lds", "L_s1:")
    if o.get('spre'): scalar_prefetch(g, [(P_WO, 512, 0, 4, 128), (P_WQKV, 1536, 0, 4, 128)] if o['spre'] == 1 else [(P_WO, 512, 0, 4, 128)])
    e("s_branch L_role_Smain")

def roleS(g):
    e = g.e; o = g.o
    g.vm = []
    VXA, VBA = 12, 6
    LR, LI, L16R, L16I, LSR, LSI, W0R, W0I, W1R, W1I, CR, CI = range(16, 28)
    PSR, PSI, ER, EI = 28, 29, 30, 31
    VE0, VE1, VSEGR, VN8 = 32, 33, 34, 35
    VCO = 36
    SEL = 40
    UR, UI, RP = 48, 64, 80
    T = 96
    FB = 128
    e("L_role_Smain:", f"s_setprio {o.get('sprioA', 0)}")
    g.srd(S_WS, P_WS, None, WS_SIZE)
    common_late(g)
    make_sel(g, SEL, 104)
    e(f"s_lshl_b32 s{S_T0}, s{S_W}, 9", f"s_add_u32 s{S_T0}, s{S_T0}, {L_SEGZ}", f"v_lshl_add_u32 v{VSEGR}, v0, 3, s{S_T0}", "v_mov_b32 v104, 0", "v_mov_b32 v105, 0")
    e(f"ds_write_b64 v{VSEGR}, v[104:105]")
    g.arrive(0, 104)
    e(f"v_and_b32 v{VN8}, 31, v0", f"v_lshlrev_b32 v{VN8}, 3, v{VN8}")
    e("v_lshrrev_b32 v106, 5, v0", f"s_lshl_b32 s{S_T0}, s{S_W}, 2", f"v_add_u32 v107, s{S_T0}, v106", "v_add_u32 v108, 2, v107")
    e(f"s_lshl_b32 s{S_T0}, s{S_J}, 13", f"s_add_u32 s{S_T0}, s{S_T0}, {WS_E}", f"v_lshl_add_u32 v109, v{VN8}, 1, s{S_T0}", "v_mov_b32 v110, 0x7ffffff0")
    M0, M1 = S_KW, S_KW+2
    S_EST, S_HST = S_KW+4, S_KW+5
    for i, (cp, m, d) in enumerate(((107, M0, VE0), (108, M1, VE1))):
        e(f"v_cmp_gt_u32 {sr(m,2)}, s{S_C}, v{cp}", f"v_lshl_add_u32 v{d}, v{cp}, 9, v109", f"v_cndmask_b32 v{d}, v110, v{d}, {sr(m,2)}")
        e(f"v_sub_u32 v{cp}, s{S_C}, v{cp}", f"v_add_u32 v{cp}, -1, v{cp}", f"v_max_i32 v{cp}, 0, v{cp}", f"v_lshlrev_b32 v{cp}, 7, v{cp}", f"v_cvt_f32_u32 v{cp}, v{cp}")
    e(f"s_lshl_b32 s{S_T0}, s{S_W}, 1", f"v_add_u32 v106, s{S_T0}, v106", "v_lshlrev_b32 v106, 4, v106", "v_cvt_f32_u32 v106, v106")
    e(f"s_mov_b32 s{S_T2}, {LOG2E}")
    colblk(g, S_T0)
    e(f"s_lshl_b32 s{S_T0}, s{S_T0}, 16", f"s_lshl_b32 s{S_T1}, s{S_W}, 8", f"s_add_u32 s{S_T0}, s{S_T0}, s{S_T1}")
    g.srd(S_A, P_CRE, S_T0, 524288); g.srd(S_B, P_CIM, S_T0, 524288)
    e(f"s_lshl_b32 s{S_M0B}, s{S_W}, 14", f"s_add_u32 s{S_M0B}, s{S_M0B}, {SREG}")
    e(f"v_lshrrev_b32 v{VCO}, 3, v0", f"v_lshlrev_b32 v{VCO}, 10, v{VCO}", f"v_and_b32 v109, 7, v0", f"v_lshrrev_b32 v110, 4, v0", f"v_xor_b32 v109, v109, v110",
      f"v_lshl_add_u32 v{VCO}, v109, 4, v{VCO}", f"v_xor_b32 v{VCO+1}, 64, v{VCO}", f"v_add_u32 v{VCO+2}, {2*7168}, v{VCO}", f"v_add_u32 v{VCO+3}, {3*7168}, v{VCO+1}", f"v_add_u32 v{VCO+1}, 7168, v{VCO+1}")
    e(f"s_lshl_b32 s{S_T0}, s{S_J}, 4", f"s_add_u32 s{S_T0}, s{S_T0}, s{S_C}", f"s_lshl_b32 s{S_T0}, s{S_T0}, 9", f"s_add_u32 s{S_EST}, s{S_T0}, {WS_E}")
    e(f"s_lshl_b32 s{S_T0}, s{S_C}, 2", f"s_add_u32 s{S_T0}, s{S_T0}, s{S_W}", f"s_lshl_b32 s{S_T0}, s{S_T0}, 4", f"s_add_u32 s{S_T0}, s{S_T0}, s{S_J}",
      f"s_mul_i32 s{S_T0}, s{S_T0}, {2*REC}", f"s_add_u32 s{S_HST}, s{S_T0}, {WS_A2H}", "v_lshlrev_b32 v5, 2, v0")
    S_EF, S_EPL, M2 = S_WK, S_WK+1, S_WK+2
    e(f"s_lshl_b32 s{S_T0}, s{S_J}, 9", f"s_add_u32 s{S_T0}, s{S_T0}, {WS_FLAGS+FL_E}", f"s_lshl_b32 s{S_T1}, s{S_W}, 7", f"s_add_u32 s{S_EPL}, s{S_T0}, s{S_T1}",
      f"s_lshr_b32 s{S_T1}, s{S_C}, 2", f"s_lshl_b32 s{S_T1}, s{S_T1}, 7", f"s_add_u32 s{S_T0}, s{S_T0}, s{S_T1}", f"s_and_b32 s{S_T1}, s{S_C}, 3", f"s_lshl_b32 s{S_T1}, s{S_T1}, 2",
      f"s_add_u32 s{S_EF}, s{S_T0}, s{S_T1}", f"s_lshl_b32 s{S_T0}, s{S_W}, 2", f"s_sub_i32 s{S_T0}, s{S_C}, s{S_T0}", f"s_max_i32 s{S_T0}, s{S_T0}, 0", f"s_min_i32 s{S_T0}, s{S_T0}, 4",
      f"s_bfm_b64 {sr(M2,2)}, s{S_T0}, 0")
    if o.get('flagwarm', 1):
        e(f"s_cmp_lg_u32 s{S_W}, 3", "s_cbranch_scc1 L_s7", "s_cmp_ge_u32 s2, 192", "s_cbranch_scc1 L_s7", f"s_lshl_b32 s{S_T0}, s2, 8", f"s_add_u32 s{S_T0}, s{S_T0}, {WS_FLAGS}",
          "v_lshlrev_b32 v109, 7, v0", "v_mov_b32 v110, 0", "s_mov_b64 exec, 3", f"buffer_atomic_add v110, v109, {sr(S_WS,4)}, s{S_T0} offen sc1", "s_mov_b64 exec, -1", "L_s7:")
    def cpow(dr, di, n):
        if n is None: e("v_exp_f32 v111, v103", "v_rndne_f32 v113, v104", "v_sub_f32 v112, v104, v113")
        else: e(f"v_mul_f32 v111, {n}, v103", f"v_mul_f32 v112, {n}, v104", "v_exp_f32 v111, v111", "v_rndne_f32 v113, v112", "v_sub_f32 v112, v112, v113")
        e(f"v_cos_f32 v{dr}, v112", f"v_sin_f32 v{di}, v112", f"v_mul_f32 v{dr}, v111, v{dr}", f"v_mul_f32 v{di}, v111, v{di}")
    def params():
        e("v_lshlrev_b32 v100, 16, v100", "v_lshlrev_b32 v101, 16, v101", "v_lshlrev_b32 v102, 16, v102")
        e(f"v_mul_f32 v100, s{S_T2}, v100", "v_exp_f32 v100, v100", "v_cvt_pk_bf16_f32 v100, v100, v100", "v_lshlrev_b32 v100, 16, v100")
        e("v_mul_f32 v103, v100, v101", f"v_mul_f32 v103, s{S_T2}, v103", "v_mul_f32 v104, v100, v102", "v_mul_f32 v104, 0.15915494, v104")
        cpow(LR, LI, None); cpow(L16R, L16I, "0x41800000"); cpow(LSR, LSI, "v106"); cpow(W0R, W0I, "v107"); cpow(W1R, W1I, "v108")
        e(f"v_add_f32 v111, -1.0, v{LR}", "v_mul_f32 v112, v101, v101", "v_fmac_f32 v112, v102, v102", "v_rcp_f32 v112, v112",
          f"v_mul_f32 v{CR}, v111, v101", f"v_fmac_f32 v{CR}, v{LI}, v102", f"v_mul_f32 v{CI}, v{LI}, v101", f"v_fma_f32 v{CI}, -v111, v102, v{CI}",
          "v_add_f32 v112, v112, v112", f"v_mul_f32 v{CR}, v{CR}, v112", f"v_mul_f32 v{CI}, v{CI}, v112")
        e(f"v_mov_b32 v{T+18}, s{S_NON}", f"v_mov_b32 v{T+19}, s{S_NON+1}", f"v_lshlrev_b32 v{T+20}, 1, v{VN8}")
    par = g.capture(params)
    def touch_c():
        l = g.lab('tc')
        e(f"s_cmp_eq_u32 s{S_W}, 3", f"s_cbranch_scc1 {l}", f"s_lshl_b32 s{S_T0}, s2, 11", f"v_lshl_add_u32 v10, v0, 7, s{S_T0}",
          f"s_cmp_eq_u32 s{S_W}, 1", f"s_cselect_b64 {sr(S_KX,2)}, {sr(P_CIM,2)}, {sr(P_CRE,2)}", f"s_cmp_eq_u32 s{S_W}, 2", f"s_cselect_b64 {sr(S_KX,2)}, {sr(P_WO,2)}, {sr(S_KX,2)}",
          "s_mov_b64 exec, 0xffff", f"global_load_dword v10, v10, {sr(S_KX,2)} ; touch", "s_mov_b64 exec, -1", l+":")
    def touch_w(which):
        l = g.lab('tw')
        e(f"s_cmp_lg_u32 s{S_W}, 3", f"s_cbranch_scc1 {l}", f"s_mul_i32 s{S_T0}, s2, 6144", "v_bfe_u32 v11, v0, 3, 1", "v_mul_u32_u24 v11, 3072, v11", "v_and_b32 v117, 23, v0", "v_lshl_add_u32 v11, v117, 7, v11", f"v_add_u32 v11, s{S_T0}, v11",
          f"s_mov_b32 exec_lo, {hex({1:0xffff0000,2:0xffff,3:0xffffffff}[which])}", "s_mov_b32 exec_hi, 0", f"global_load_dword v11, v11, {sr(P_WQKV,2)} ; touch", "s_mov_b64 exec, -1", l+":")
    def touches(s):
        if o.get('vpre', 3) == s: touch_c()
        if o.get('wpre', (None,))[0] == s: touch_w(o['wpre'][1])
    touches(-1)
    g.stamp(0)
    def mm(s):
        b = FB+48*(s&1); r = []
        for k in range(4):
            first = (s == 0 and k == 0)
            r.append(g.capture(lambda: g.mfma(UR, b+12*k, b+12*k+4, None if first else UR)))
            r.append(g.capture(lambda: g.mfma(UI, b+12*k, b+12*k+8, None if first else UI)))
        return r
    for s in range(8):
        e("s_waitcnt lgkmcnt(0)", "s_barrier")
        if s == 0: g.stamp(1)
        b = FB+48*(s&1)
        rd = []
        for k in range(4):
            rd += [f"ds_read_b128 {vr(b+12*k,4)}, v{VXA+k} offset:{xsl(s)}",
                   f"ds_read_b128 {vr(b+12*k+4,4)}, v{VBA+k} offset:{(s%3)*8192}",
                   f"ds_read_b128 {vr(b+12*k+8,4)}, v{VBA+k} offset:{(s%3)*8192+4096}"]
        if s == 0:
            e(*rd); g.waitvm0(); epoch_use(g, 114)
        else:
            m = mm(s-1)
            for k in range(8):
                g.play(m[k])
                if k < 4: e(*rd[3*k:3*k+3])
                else:
                    g.play(par[:4]); par = par[4:]
        touches(s)
    assert not par
    g.prio('s_b7')
    m = mm(7)
    for k in range(8):
        if k % 2 == 0: e(f"s_waitcnt lgkmcnt({9-3*(k//2)})")
        g.play(m[k])
    e(f"s_sub_u32 s{S_T0}, s{S_M0B}, {L_BSL}")
    for k in range(4): e(f"v_add_u32 v{VBA+k}, s{S_T0}, v{VBA+k}")
    if o.get('ehint_early', 1):
        e(f"s_cmp_lg_u32 s{S_W}, 3", "s_cbranch_scc1 L_s8", "s_mov_b64 exec, 1", f"buffer_store_dword v{T+18}, off, {sr(S_WS,4)}, s{S_EF} sc1", "s_mov_b64 exec, -1", "L_s8:")
    g.stamp(2)
    def c_groups(pc):
        part, kh2 = pc & 1, pc >> 1; r = []
        for q in range(8):
            def f(q=q):
                if q % 4 == 0: e(f"s_add_u32 m0, s{S_M0B}, {(pc&1)*8192 + q*1024}", f"s_mov_b32 s{S_DS}, {kh2*128 + q*8192}")
                g.vmem(f"buffer_load_dwordx4 v{VCO+q%4}, {sr(S_A if part == 0 else S_B,4)}, s{S_DS} offen offset:{1024*(q%4)} lds", f'c{pc}')
            r.append(g.capture(f))
        return r
    def dma_c(pc):
        for x in c_groups(pc): g.play(x)
    def creg(jj, part, a, ch): return FB + 4*(((jj*2+part)*2+a)*2+ch)
    def read_c(pc):
        part, kh2 = pc & 1, pc >> 1
        for ks in range(4):
            for ch in range(2): e(f"ds_read_b128 {vr(creg(2*kh2+(ks>>1), part, ks&1, ch),4)}, v{VBA+ks} offset:{(pc&1)*8192+ch*4096}")
    pr, pi = UR, UI
    for t in range(1, 16):
        nr, ni = (ER, EI) if t & 1 else (T, T+1)
        e(f"v_fma_f32 v{nr}, v{LR}, v{pr}, v{UR+t}", f"v_fma_f32 v{ni}, v{LR}, v{pi}, v{UI+t}", f"v_fma_f32 v{nr}, -v{LI}, v{pi}, v{nr}", f"v_fma_f32 v{ni}, v{LI}, v{pr}, v{ni}")
        pr, pi = nr, ni
    e(f"ds_write_b64 v{VSEGR}, {vr(ER,2)} offset:{L_SEG-L_SEGZ}", "s_waitcnt lgkmcnt(0)", "s_barrier")
    if o.get('onlyT'):
        final_preload(g, 20); final_setup(g); e("s_branch L_final")
    for k in range(7): e(f"ds_read_b64 {vr(T+2*k,2)}, v{VSEGR} offset:{L_SEG-L_SEGZ-(7-k)*256}")
    def cmac(dr, di, ar, ai, br, bi, cr, ci):
        e(f"v_fma_f32 v{dr}, v{ar}, v{br}, v{cr}", f"v_fma_f32 v{di}, v{ar}, v{bi}, v{ci}", f"v_fma_f32 v{dr}, -v{ai}, v{bi}, v{dr}", f"v_fma_f32 v{di}, v{ai}, v{br}, v{di}")
    for k in range(1, 7):
        e(f"s_waitcnt lgkmcnt({6-k})")
        d = (PSR, PSI) if k == 6 else (T+2*k, T+2*k+1)
        cmac(d[0], d[1], L16R, L16I, T+2*k-2, T+2*k-1, T+2*k, T+2*k+1)
    cmac(T+16, T+17, L16R, L16I, PSR, PSI, ER, EI)
    e(f"s_cmp_lg_u32 s{S_W}, 3", "s_cbranch_scc1 L_s4", "s_mov_b32 exec_lo, 0",
      f"buffer_store_dwordx4 {vr(T+16,4)}, v{T+20}, {sr(S_WS,4)}, s{S_EST} offen sc1")
    if not o.get('ehint_early', 1): e("s_mov_b64 exec, 1", f"buffer_store_dword v{T+18}, off, {sr(S_WS,4)}, s{S_EF} sc1")
    e("s_mov_b64 exec, -1", "L_s4:")
    if o.get('ehint_early', 1): g.poll_issue(5, S_EPL, '15', T+8, False)
    g.stamp(3)
    g.prio('s_es')
    def cmult():
        for t in range(16):
            e(f"v_mul_f32 v{RP+t}, v{CR}, v{UR+t}", f"v_fma_f32 v{RP+t}, -v{CI}, v{UI+t}, v{RP+t}", f"v_mul_f32 v{UI+t}, -v{CR}, v{UI+t}", f"v_fma_f32 v{UI+t}, -v{CI}, v{UR+t}, v{UI+t}")
    cq = c_groups(0) + c_groups(1) + c_groups(2) + c_groups(3)
    cdone = [0]
    def c_issue(n):
        for _ in range(n):
            k = 32-len(cq)
            if k in (16, 24):
                while cdone[0] <= (k-16)//8: c_read()
                e("s_waitcnt lgkmcnt(0)")
            g.play(cq.pop(0))
    def c_read():
        pc = cdone[0]; g.waitvm(f'c{pc}'); e("s_waitcnt lgkmcnt(7)"); read_c(pc); cdone[0] += 1
    n_a, n_b, n_c, n_d = o.get('c_sched', (16, 8, 0, 8))
    g.weave(g.capture(cmult), cq[:n_a]); del cq[:n_a]
    if o.get('e_delay'): e(f"s_sleep {o['e_delay']}")
    l = g.lab('ep'); d = g.lab('ed')
    eld = [f"buffer_load_dwordx4 {vr(T,4)}, v{VE0}, {sr(S_WS,4)}, 0 offen sc1", f"buffer_load_dwordx4 {vr(T+4,4)}, v{VE1}, {sr(S_WS,4)}, 0 offen sc1"]
    echk = [f"v_cmp_ne_u64 vcc, {sr(S_NON,2)}, {vr(T+2,2)}", f"v_cmp_ne_u64 {sr(S_M,2)}, {sr(S_NON,2)}, {vr(T+6,2)}",
            f"s_and_b64 vcc, vcc, {sr(M0,2)}", f"s_and_b64 {sr(S_M,2)}, {sr(S_M,2)}, {sr(M1,2)}", f"s_or_b64 vcc, vcc, {sr(S_M,2)}"]
    if o.get('ehint_early', 1): g.poll_wait(5, S_EPL, sr(M2,2), T+8, False, 0x100, o.get('hint_lag', 8))
    elif o.get('ehint', 1):
        le = g.lab('en')
        e(f"s_cmp_eq_u64 {sr(M2,2)}, 0", f"s_cbranch_scc1 {le}")
        keep = list(g.vm)
        g.poll_issue(5, S_EPL, sr(M2,2), T+8, False); g.poll_wait(5, S_EPL, sr(M2,2), T+8, False, 0x100)
        g.vm = keep
        e(le+":")
    for x in eld: g.vmem(x, 'eld')
    g.prio('s_cb'); c_issue(n_b); g.prio('s_e')
    e(f"s_lshl_b32 s{S_T0}, s{S_C}, 1", f"s_lshr_b32 s{S_T1}, s{S_W}, 1", f"s_add_u32 s{S_T0}, s{S_T0}, s{S_T1}", f"s_lshl_b32 s{S_T0}, s{S_T0}, 2", f"s_lshr_b32 s{S_T1}, s{S_J}, 2",
      f"s_add_u32 s{S_T0}, s{S_T0}, s{S_T1}", f"s_lshl_b32 s{S_T0}, s{S_T0}, 7", f"s_and_b32 s{S_T1}, s{S_J}, 3", f"s_lshl_b32 s{S_T1}, s{S_T1}, 4", f"s_add_u32 s{S_T0}, s{S_T0}, s{S_T1}",
      f"s_and_b32 s{S_T1}, s{S_W}, 1", f"s_lshl_b32 s{S_T1}, s{S_T1}, 3", f"s_add_u32 s{S_T0}, s{S_T0}, s{S_T1}", f"s_add_u32 s{S_EF}, s{S_T0}, {WS_FLAGS+FL_H}")
    e(f"s_mov_b32 s{S_T0}, {o.get('timeout', 200000)}")
    g.waitvm('eld')
    e(*echk); e(f"s_cbranch_scc0 {d}", l+":"); g.count(1); e(*eld)
    e(f"s_sub_u32 s{S_T0}, s{S_T0}, 1", "s_waitcnt vmcnt(0)", f"s_cbranch_scc1 {d}"); e(*echk)
    e(f"s_cbranch_scc0 {d}", f"s_sleep {o.get('psleep',2)}", f"s_branch {l}", d+":")
    g.stamp(4)
    e(f"v_mul_f32 v{T+8}, v{W0R}, v{T}", f"v_mul_f32 v{T+9}, v{W0R}, v{T+1}", f"v_fma_f32 v{T+8}, -v{W0I}, v{T+1}, v{T+8}", f"v_fma_f32 v{T+9}, v{W0I}, v{T}, v{T+9}")
    cmac(T+8, T+9, W1R, W1I, T+4, T+5, T+8, T+9)
    e(f"ds_write_b64 v{VSEGR}, {vr(T+8,2)} offset:{L_HP-L_SEGZ}", f"v_add_u32 v{VN8}, {L_HP}, v{VN8}")
    g.arrive(1, T); g.rwait(1, T)
    c_issue(n_c)
    def pass2():
        for k in range(8): e(f"ds_read_b64 {vr(T+2*k,2)}, v{VN8} offset:{k*256}")
        for k in range(1, 8):
            e(f"s_waitcnt lgkmcnt({7-k})", f"v_add_f32 v{T}, v{T}, v{T+2*k}", f"v_add_f32 v{T+1}, v{T+1}, v{T+2*k+1}")
        cmac(PSR, PSI, LSR, LSI, T, T+1, PSR, PSI)
        e(f"v_mul_f32 v{ER}, v{CR}, v{PSR}", f"v_fma_f32 v{ER}, -v{CI}, v{PSI}, v{ER}", f"v_mul_f32 v{EI}, -v{CR}, v{PSI}", f"v_fma_f32 v{EI}, -v{CI}, v{PSR}, v{EI}")
        pr, pj = ER, EI
        for t in range(16):
            e(f"v_fmac_f32 v{RP+t}, v{LR}, v{pr}", f"v_fmac_f32 v{UI+t}, v{LR}, v{pj}", f"v_fmac_f32 v{RP+t}, v{LI}, v{pj}", f"v_fma_f32 v{UI+t}, -v{LI}, v{pr}, v{UI+t}")
            pr, pj = RP+t, UI+t
            if t == 8:
                g.cvt16(T, RP, 8); g.cvt16(T+8, UI, 8)
                g.mfma(48, T, SEL); g.mfma(112, T+8, SEL)
        g.cvt16(T+4, RP+8, 8); g.mfma(48, T+4, SEL+4, 48)
        g.cvt16(T+12, UI+8, 8); g.mfma(112, T+12, SEL+4, 112)
    g.prio('s_p2')
    pass2()
    HCK = o.get('hck', 0)
    g.prio('s_st')
    if HCK:
        VL4 = 5
        g.cvt16(64, 48); rec_store(g, 64, 80, VL4, S_HST, 'hst')
        e(f"s_add_u32 s{S_HST}, s{S_HST}, {REC}")
        g.cvt16(72, 112); rec_store(g, 72, 81, VL4, S_HST, 'hst')
        g.setflag(S_EF, 16)
    else:
        for f in range(4):
            src = (48, 56, 112, 120)[f]
            g.cvt16(64+4*f, src, 8)
            g.vmem(f"buffer_store_dwordx4 {vr(64+4*f,4)}, v{V_L16}, {sr(S_WS,4)}, s{S_HST} offen offset:{1024*(f&1)+REC*(f>>1)} sc1", 'hst')
    g.stamp(5)
    g.prio('s_h')
    c_issue(min(n_d, len(cq)))
    rowhalf(g, S_T0)
    e(f"s_lshl_b32 s{S_T1}, s{S_C}, 1", f"s_add_u32 s{S_T0}, s{S_T0}, s{S_T1}", f"s_lshl_b32 s{S_EPL}, s{S_T0}, 2", f"s_add_u32 s{S_EPL}, s{S_EPL}, s{S_W}",
      f"s_lshl_b32 s{S_EPL}, s{S_EPL}, 7", f"s_add_u32 s{S_EPL}, s{S_EPL}, {WS_FLAGS+FL_H}",
      f"s_lshl_b32 s{S_KX}, s{S_T0}, 3", f"s_add_u32 s{S_KX}, s{S_KX}, s{S_W}", f"s_mul_i32 s{S_KX}, s{S_KX}, {8*REC}", f"s_add_u32 s{S_KX}, s{S_KX}, {WS_A2H}", "v_lshlrev_b32 v18, 3, v0")
    ACC = 64
    if not HCK:
        for k in range(1, 8): e(f"s_add_u32 s{S_KX+k}, s{S_KX}, {(k>>1)*2*REC + (k&1)*32*REC}")
        g.prio('s_f')
        g.waitvm('hst'); g.setflag(S_EF, 16)
    else: e(f"s_mov_b32 s{S_NN}, s{S_NON}", f"s_mov_b32 s{S_NN+1}, s{S_NON}", "v_mov_b32 v1, v5")
    g.stamp(6)
    g.prio('s_c3')
    c_issue(len(cq))
    if not HCK: final_preload(g, 20)
    while cdone[0] < 3: c_read()
    if o.get('h_delay'): e(f"s_sleep {o['h_delay']}")
    g.stamp(7)
    g.prio('s_a')
    g.poll_issue(18, S_EPL, '0xff', 16)
    c_read()
    g.poll_wait(18, S_EPL, '0xff', 16, True, 0x10000, o.get('hhint_lag', 0))
    g.stamp(8)
    g.prio('s_g')
    g.cold = []
    if HCK:
        rs = RecStream(g, 8, 3, 16, 10, 6, 1, lambda i, r: (S_KX, (i + 32*r)*REC), S_KX+1, S_KX+2)
        dp = o.get('hck_depth', 2)
        for i in range(dp): rs.load(i)
        e("s_waitcnt lgkmcnt(0)")
        for i in range(8):
            rs.need(i, range(i+1, min(8, i+dp)))
            if dp == 2 and i+2 < 8: rs.load(i+2)
            for a in range(2):
                for rh in range(2):
                    for ch in range(2):
                        acc = ACC+16*(2*rh+ch)
                        g.mfma(acc, creg(i >> 1, i & 1, a, ch), rs.frag(i, rh, a), None if (i == 0 and a == 0) else acc)
            if dp == 3 and i+3 < 8: rs.load(i+3)
        final_preload(g, 20)
        part_addr(g, 6, 22, S_M0B)
        g.cold = rs.cold
    else:
        AB, NB = 16, 6
        steps = [(jj, f) for jj in range(4) for f in range(4)]
        def lda(i):
            jj, f = steps[i]
            for rh in range(2):
                g.vmem(f"buffer_load_dwordx4 {vr(AB+8*(i%NB)+4*rh,4)}, v{V_L16}, {sr(S_WS,4)}, s{S_KX+2*jj+rh} offen offset:{1024*(f&1)+REC*(f>>1)} sc1", f'a{i}')
        nb0 = o.get('a2h_depth', 4)
        for i in range(nb0): lda(i)
        e("s_waitcnt lgkmcnt(0)")
        part_addr(g, 6, 64, S_M0B)
        for i in range(16):
            jj, f = steps[i]
            g.waitvm(f'a{i}')
            if i+nb0 < 16 and nb0 < NB: lda(i+nb0)
            for rh in range(2):
                for ch in range(2):
                    acc = ACC+16*(2*rh+ch)
                    g.mfma(acc, creg(jj, f >> 1, f & 1, ch), AB+8*(i%NB)+4*rh, None if i == 0 else acc)
            if i+nb0 < 16 and nb0 == NB: lda(i+nb0)
    g.stamp(9)
    for rh in range(2):
        for ch in range(2):
            for q in range(4): e(f"ds_write_b128 v{6+q}, {vr(ACC+16*(2*rh+ch)+4*q,4)} offset:{rh*8192+ch*128}")
    final_setup(g)

def final_setup(g):
    e = g.e
    g.srd(S_OUT, P_OUT, None, 4194304)
    e("v_lshrrev_b32 v16, 4, v0", "v_and_b32 v17, 15, v0", "v_xor_b32 v17, v17, v16", "v_lshlrev_b32 v17, 4, v17", "v_lshl_add_u32 v17, v16, 8, v17",
      f"s_lshl_b32 s{S_T0}, s{S_WV}, 11", f"v_add_u32 v17, s{S_T0}, v17", "v_xor_b32 v18, 64, v17", f"v_add_u32 v19, {TREG}, v17", f"v_add_u32 v20, {TREG}, v18")
    e(f"s_lshl_b32 s{S_T0}, s{S_WV}, 5", f"s_add_u32 s{S_T0}, s{S_T0}, {L_G}",
      f"v_lshl_add_u32 v16, v16, 2, s{S_T0}", "v_lshlrev_b32 v5, 1, v5")
    g.waitvm('fin')
    for q in range(2):
        e(f"v_lshlrev_b32 v30, 16, v{V_FX+4+q}", f"v_and_b32 v31, 0xffff0000, v{V_FX+4+q}")
        for i in range(2):
            d = 22+4*i+2*q
            e(f"v_lshlrev_b32 v{d}, 16, v{V_FX+2*i+q}", f"v_and_b32 v{d+1}, 0xffff0000, v{V_FX+2*i+q}", f"v_mul_f32 v{d}, v{d}, v30", f"v_mul_f32 v{d+1}, v{d+1}, v31")

def final(g):
    e = g.e; o = g.o
    e("L_final:")
    e("s_waitcnt lgkmcnt(0)", "s_barrier")
    g.stamp(15)
    e("ds_read_b32 v30, v16", "ds_read_b32 v36, v16 offset:16")
    for i in range(2):
        for k in range(4): e(f"ds_read_b128 {vr(40+24*i+4*k,4)}, v{17+i} offset:{SREG+k*16384+i*1024}")
        for k in range(2): e(f"ds_read_b128 {vr(56+24*i+4*k,4)}, v{19+i} offset:{k*16384+i*1024}")
    e(f"s_mov_b32 s{S_T0}, 0x8000")
    for i in range(2):
        b = 40+24*i; gg = 30 if i == 0 else 36
        e(f"s_waitcnt lgkmcnt({6-6*i})")
        for h in (0, 2):
            e(f"v_pk_add_f32 {vr(b+h,2)}, {vr(22+4*i+h,2)}, {vr(b+h,2)}",
              f"v_pk_add_f32 {vr(b+4+h,2)}, {vr(b+4+h,2)}, {vr(b+8+h,2)}",
              f"v_pk_add_f32 {vr(b+16+h,2)}, {vr(b+16+h,2)}, {vr(b+20+h,2)}",
              f"v_pk_add_f32 {vr(b+h,2)}, {vr(b+h,2)}, {vr(b+12+h,2)}",
              f"v_pk_add_f32 {vr(b+4+h,2)}, {vr(b+4+h,2)}, {vr(b+16+h,2)} neg_lo:[0,1] neg_hi:[0,1]",
              f"v_pk_add_f32 {vr(b+h,2)}, {vr(b+h,2)}, {vr(b+4+h,2)}",
              f"v_pk_fma_f32 {vr(b+h,2)}, {vr(b+h,2)}, {vr(gg,2)}, {vr(b+16+h,2)} op_sel_hi:[1,0,1]")
        e(f"buffer_store_dwordx4 {vr(b,4)}, v5, {sr(S_OUT,4)}, {'0' if i == 0 else 's%d' % S_T0} offen {o.get('outmod','sc1')}")
    e(f"s_or_b32 s{S_T0}, s{S_C}, s{S_J}", f"s_or_b32 s{S_T0}, s{S_T0}, s{S_WV}", "s_cbranch_scc1 L_f1",
      f"v_mov_b32 v16, s{S_NON}", "s_mov_b64 exec, 1", f"buffer_store_dword v16, off, {sr(S_WS,4)}, 0 offset:{WS_EPOCH} sc1", "s_mov_b64 exec, -1", "L_f1:")
    if o.get('stamps'):
        e("s_waitcnt vmcnt(0)")
        g.stamp(16)
        e(f"v_writelane_b32 v{V_STAMP}, s{S_FLOFF}, 30")
        e(f"s_lshl_b32 s{S_T0}, s{S_C}, 4", f"s_add_u32 s{S_T0}, s{S_T0}, s{S_J}", f"s_lshl_b32 s{S_T0}, s{S_T0}, 3", f"s_add_u32 s{S_T0}, s{S_T0}, s{S_WV}",
          f"s_lshl_b32 s{S_T0}, s{S_T0}, 8", f"s_add_u32 s{S_T0}, s{S_T0}, {WS_STAMP}", "v_lshlrev_b32 v16, 2, v0",
          f"buffer_store_dword v{V_STAMP}, v16, {sr(S_WS,4)}, s{S_T0} offen")
    if o.get('amp') is not None:
        e("s_waitcnt vmcnt(0)")
        g.stamp(16)
        e(f"s_cmp_lg_u32 s2, {o.get('ampwg',0)}", "s_cbranch_scc1 L_end", f"s_cmp_lg_u32 s{S_WV}, {o.get('ampwave',0)}", "s_cbranch_scc1 L_end",
          "s_sub_u32 s66, s66, s100", "s_mul_i32 s66, s66, 10", "s_memrealtime s[100:101]", "s_waitcnt lgkmcnt(0)", "s_add_u32 s66, s66, s100",
          "L_amp:", "s_memrealtime s[100:101]", "s_waitcnt lgkmcnt(0)", "s_sub_u32 s67, s100, s66", "s_cmp_lt_i32 s67, 0", "s_cbranch_scc1 L_amp")
    e("L_end:", "s_endpgm")
    e("L_role_coldS:")
    for r in g.cold: g.play(r)
    e("s_endpgm", "L_codeend:")

DEFAULTS = {'wq_start':0,'wq_end':18,'rot':(2,1,1,0),'vpre':7,'flagwarm':0,'wo_sched':{'q':8,'o':8},'ock':0,'sig8':1,'c_sched':(0,8,8,8),'timeout':20000,
            'prio':{'s_b7':2,'s_es':0,'t_b8':2,'t_q':0,'s_p2':1,'s_h':0,'t_g':2}}
def build(opt):
    opt = {**DEFAULTS, **opt}
    g = G(opt)
    if opt.get('stamps') or opt.get('amp') is not None:
        g.e("s_memrealtime s[100:101]")
    prologue(g)
    if opt.get('stamps'):
        pass
    roleS_start(g); roleT(g); roleS(g); final(g)
    lines = g.L
    if opt.get('stamps'):
        out = []
        for x in lines:
            out.append(x)
            if x in ("L_roleT:", "L_roleS:"):
                out += ["s_waitcnt lgkmcnt(0)", f"v_writelane_b32 v{V_STAMP}, s100, 31"]
        lines = out
    ins, added = fix(lines)
    errs = check_waits(ins)
    for x in errs[:5]: print("WAITCHECK", x, file=sys.stderr)
    ref = open('cdna_kernels/' + KNAME + '.s.ref').read().splitlines() if opt.get('refhdr', True) else []
    hdr = [x for x in ref if x.startswith(';') and '@launch' not in x and 'Override' not in x and 'grid=ceil' not in x]
    txt = "\n".join(hdr) + f"""
; @launch grid=(256,1,1) block=(512,1,1) lds={LDS_BYTES}
.amdgcn_target "amdgcn-amd-amdhsa--gfx950"
.text
.globl {KNAME}_kernel
.p2align 12
.p2align 8
.type {KNAME}_kernel,@function
{KNAME}_kernel:
""" + "\n".join((i.text if i.label else "    " + i.text) for i in ins) + f"""
.section .rodata,"a"
.p2align 6
.amdhsa_kernel {KNAME}_kernel
  .amdhsa_next_free_vgpr 256
  .amdhsa_next_free_sgpr 102
  .amdhsa_accum_offset 256
  .amdhsa_group_segment_fixed_size 0
  .amdhsa_kernarg_size 136
  .amdhsa_user_sgpr_count 2
  .amdhsa_user_sgpr_kernarg_segment_ptr 1
  .amdhsa_system_sgpr_workgroup_id_x 1
.end_amdhsa_kernel
"""
    return txt, len([i for i in ins if i.real]), added, errs

if __name__ == '__main__':
    out = sys.argv[1] if len(sys.argv) > 1 else 'k.s'
    opt = eval(sys.argv[2]) if len(sys.argv) > 2 else {}
    txt, n, added, errs = build(opt)
    open(out, 'w').write(txt)
    print(f"{out}: {n} instructions, {added} nops added, {len(errs)} wait errors")
```

```python
import sys
from asmfix import fix, check_waits
KNAME = 'gated_mix__ssm_conv_s5__linear_kernel_hedgehog__prompt'

WS_EPOCH = 0
WS_FLAGS = 0x1000
FL_E, FL_K, FL_H, FL_O = 0, 0x2000, 0x4000, 0x8000
WS_E     = 0x10000
WS_H2    = 0x40000
WS_KV    = 0x80000
REC = 2304
WS_A2H   = 0x200000
RECO = 2304
WS_A2O   = 0x700000
WS_STAMP = 0xA00000
WS_SIZE  = 0x1000000
SREG = 0x0
XREG = 0x8000
TREG = 0x10000
def xsl(s): return ((s+2) & 3)*16384
SCR  = 0x20000
L_TFL  = SCR + 0x0
L_SFL  = SCR + 0x10
L_G    = SCR + 0x200
L_GATE = SCR + 0x400
L_WPHI = SCR + 0x800
L_SEGZ = SCR + 0xC00
L_SEG  = SCR + 0x1400
L_ZD   = SCR + 0x1C00
L_BSL  = SCR + 0x2000
L_KVR  = SCR + 0x2000
L_ZR   = SCR + 0x6000
L_KVD  = SCR + 0x6400
L_HP   = SCR + 0x6C00
LDS_BYTES = 0x28000
LOG2E = 0x3fb8aa3b

def vr(a, n=1): return f"v{a}" if n == 1 else f"v[{a}:{a+n-1}]"
def sr(a, n=1): return f"s{a}" if n == 1 else f"s[{a}:{a+n-1}]"

class G:
    def __init__(self, opt):
        self.o = opt; self.L = []; self.vm = []; self.nlab = 0; self.cap = None
    def e(self, *xs):
        for x in xs: (self.L if self.cap is None else self.cap).append(x)
    def capture(self, fn):
        old = self.cap; self.cap = []; fn(); r = self.cap; self.cap = old; return r
    def play(self, items):
        for it in items:
            if isinstance(it, str): self.e(it)
            elif it[0] == 'vm': self.vmem(it[1], it[2])
            elif it[0] == 'wait': self.waitvm(*it[1])
            elif it[0] == 'grp': self.play(it[1])
    def weave(self, main, groups, start=0, end=None):
        end = len(main) if end is None else end
        n = len(groups); out = []; k = 0
        for i, it in enumerate(main):
            while k < n and i >= start + (end-start)*k//n and i >= start:
                out += groups[k]; k += 1
            out.append(it)
        while k < n: out += groups[k]; k += 1
        self.play(out)
    def lab(self, p):
        self.nlab += 1; return f"L_{p}{self.nlab}"
    def vmem(self, text, tag=None):
        if self.cap is not None: self.cap.append(('vm', text, tag)); return
        if tag and any(tag.startswith(x) for x in self.o.get('skip', ())): return
        self.e(text); self.vm.append(tag)
    def waitvm(self, *tags):
        if self.cap is not None: self.cap.append(('wait', tags)); return
        last = max((i for i, t in enumerate(self.vm) if t in tags), default=-1)
        if last < 0: return
        n = len(self.vm) - 1 - last
        assert n <= 63
        self.e(f"s_waitcnt vmcnt({n})")
        self.vm = self.vm[last+1:]
    def waitvm0(self):
        self.e("s_waitcnt vmcnt(0)"); self.vm = []
    def srd(self, d, base, off=None, size=0):
        if off is None:
            self.e(f"s_mov_b32 s{d}, s{base}", f"s_mov_b32 s{d+1}, s{base+1}", f"s_mov_b32 s{d+2}, {size}")
        else:
            self.e(f"s_add_u32 s{d}, s{base}, s{off}", f"s_addc_u32 s{d+1}, s{base+1}, 0", f"s_sub_u32 s{d+2}, {size}, s{off}")
        self.e(f"s_mov_b32 s{d+3}, 0x20000")
    def count(self, w):
        if self.o.get('stamps'): self.e(f"s_add_u32 s{S_FLOFF}, s{S_FLOFF}, {w}")
    def prio(self, key):
        p = self.o.get('prio', {}).get(key)
        if p is not None: self.e(f"s_setprio {p}")
    def stamp(self, i):
        if self.o.get('amp') == i: self.e("s_waitcnt lgkmcnt(0)", "s_memrealtime s[66:67]", "s_waitcnt lgkmcnt(0)")
        if not self.o.get('stamps'): return
        if self.o['stamps'] == 2:
            if i == self.o.get('probe'): self.e("s_waitcnt lgkmcnt(0)", "s_memrealtime s[66:67]", "s_waitcnt lgkmcnt(0)")
            if i != 16: return
            self.e(f"v_writelane_b32 v{V_STAMP}, s100, 31", f"v_writelane_b32 v{V_STAMP}, s66, 17")
        if i >= 20: return
        self.e("s_waitcnt lgkmcnt(0)", "s_memrealtime s[100:101]", "s_memtime s[66:67]", "s_waitcnt lgkmcnt(0)", f"v_writelane_b32 v{V_STAMP}, s100, {i}", f"v_writelane_b32 v{V_STAMP}, s66, {i+32}")
    def mfma(self, d, a, b, c=None):
        cc = "0" if c is None else vr(c, 16)
        self.e(f"v_mfma_f32_32x32x16_bf16 {vr(d,16)}, {vr(a,4)}, {vr(b,4)}, {cc}")
    def cvt16(self, dst, src, n=16):
        for q in range(n//2): self.e(f"v_cvt_pk_bf16_f32 v{dst+q}, v{src+2*q}, v{src+2*q+1}")
    def arrive(self, stage, tmp):
        self.e(f"v_mov_b32 v{tmp}, {stage}", "s_mov_b64 exec, 1", f"ds_write_b32 v{V_MYFL}, v{tmp}", "s_mov_b64 exec, -1")
    def rwait(self, stage, tmp):
        l = self.lab('rs')
        self.e(l+":", f"ds_read_b128 {vr(tmp,4)}, v{V_FLB}", "s_waitcnt lgkmcnt(0)",
               f"v_min3_u32 v{tmp}, v{tmp}, v{tmp+1}, v{tmp+2}", f"v_min_u32 v{tmp}, v{tmp}, v{tmp+3}",
               f"v_cmp_gt_u32 vcc, {stage}, v{tmp}", f"s_cbranch_vccnz {l}")
    def setflag(self, soff, tmp, wide=True):
        self.e(f"v_mov_b32 v{tmp}, s{S_NON}")
        if wide: self.e(f"v_mov_b32 v{tmp+1}, s{S_NON+1}")
        self.e("s_mov_b64 exec, 1")
        self.vmem(f"buffer_store_dword{'x2' if wide else ''} {vr(tmp, 2 if wide else 1)}, off, {sr(S_WS,4)}, s{soff} sc1", 'flag')
        self.e("s_mov_b64 exec, -1")
    def poll_issue(self, vaddr, soff, mask, tmp, wide=True, track=True):
        self.e(f"v_mov_b32 v{tmp}, 0")
        if wide: self.e(f"v_mov_b32 v{tmp+1}, 0")
        self.e(f"s_mov_b64 exec, {mask}")
        x = f"buffer_atomic_add{'_x2' if wide else ''} {vr(tmp, 2 if wide else 1)}, v{vaddr}, {sr(S_WS,4)}, s{soff} offen sc0 sc1"
        if track: self.vmem(x, 'poll')
        else: self.e(x)
        self.e("s_mov_b64 exec, -1")
    def poll_wait(self, vaddr, soff, mask, tmp, wide=True, cnt=1, lag=0):
        l = self.lab('pl'); d = self.lab('pd')
        chk = [f"v_cmp_ne_u64 vcc, {sr(S_NON,2)}, {vr(tmp,2)}" if wide else f"v_cmp_ne_u32 vcc, s{S_NON}, v{tmp}", f"s_and_b64 vcc, vcc, {mask}"]
        self.waitvm('poll')
        self.e(*chk); self.e(f"s_cbranch_scc0 {d}", f"s_mov_b32 s{S_T0}, {self.o.get('timeout', 200000)}", l+":")
        self.count(cnt)
        if self.o.get('psleep', 2): self.e(f"s_sleep {self.o.get('psleep', 2)}")
        self.poll_issue(vaddr, soff, mask, tmp, wide, False)
        self.e(f"s_sub_u32 s{S_T0}, s{S_T0}, 1", "s_waitcnt vmcnt(0)", f"s_cbranch_scc1 {d}")
        self.e(*chk); self.e(f"s_cbranch_scc1 {l}")
        if lag: self.e(f"s_sleep {lag}")
        self.e(d+":")

S_WV = 3
S_X, S_A, S_B, S_WK, S_WVv, S_WQ, S_WS, S_OUT = 4, 8, 12, 16, 20, 24, 28, 32
P_X, P_LRE, P_LIM, P_BRE, P_BIM, P_CRE, P_CIM, P_LDT = 36, 38, 40, 42, 44, 46, 48, 50
P_DSK, P_BX, P_WQKV, P_WPHI, P_WO, P_GATE, P_OUT, P_DBG, P_WS = 52, 54, 56, 58, 60, 62, 64, 66, 68
S_KX = 70
S_KW = 78
S_NON = 86
S_C, S_J, S_W, S_R0 = 88, 89, 90, 91
S_FLOFF = 92
S_NN = 84
S_M0B = 93
S_T0, S_T1, S_T2, S_T3 = 94, 95, 96, 97
S_M = 98
S_EP = 54
S_DS = 55
V_LANE = 0
V_MYFL, V_FLB, V_L16, V_STAMP = 1, 2, 3, 4
V_FX = 10

def prologue(g):
    e = g.e; o = g.o
    e("s_cmp_ge_u32 s2, 256", "s_cbranch_scc1 L_end")
    e(f"s_load_dwordx16 s[36:51], s[0:1], 0", f"s_load_dwordx16 s[52:67], s[0:1], 64", f"s_load_dwordx2 s[68:69], s[0:1], 128")
    e("v_lshrrev_b32 v1, 6, v0", "v_and_b32 v0, 63, v0", f"v_readfirstlane_b32 s{S_WV}, v1")
    e(f"s_and_b32 s{S_T0}, s2, 3", f"s_lshl_b32 s{S_T0}, s{S_T0}, 2", f"s_bfe_u32 s{S_C}, s2, 0x20003", f"s_add_u32 s{S_C}, s{S_C}, s{S_T0}")
    e(f"s_and_b32 s{S_T0}, s2, 4", f"s_lshl_b32 s{S_T0}, s{S_T0}, 1", f"s_lshr_b32 s{S_J}, s2, 5", f"s_add_u32 s{S_J}, s{S_J}, s{S_T0}")
    e(f"s_and_b32 s{S_W}, s{S_WV}, 3")
    ra, rb_, rx, ry = o.get('rot', (2, 1, 0, 0))
    e(f"s_mul_i32 s{S_R0}, s{S_J}, {rb_}")
    if ra: e(f"s_mul_i32 s{S_T0}, s{S_C}, {ra}", f"s_add_u32 s{S_R0}, s{S_R0}, s{S_T0}")
    if rx: e(f"s_lshr_b32 s{S_T0}, s{S_C}, 2", f"s_mul_i32 s{S_T0}, s{S_T0}, {rx}", f"s_add_u32 s{S_R0}, s{S_R0}, s{S_T0}")
    if ry: e(f"s_lshr_b32 s{S_T0}, s{S_J}, 3", f"s_mul_i32 s{S_T0}, s{S_T0}, {ry}", f"s_add_u32 s{S_R0}, s{S_R0}, s{S_T0}")
    e(f"s_and_b32 s{S_R0}, s{S_R0}, 7")
    e(f"v_lshlrev_b32 v{V_L16}, 4, v0")
    if o.get('stamps'): e(f"v_mov_b32 v{V_STAMP}, 0", f"s_mov_b32 s{S_FLOFF}, 0")
    e(f"s_lshl_b32 s{S_M}, s{S_W}, 12", f"s_add_u32 s{S_M}, s{S_M}, {XREG}")
    e(f"s_cmp_lt_u32 s{S_WV}, 4", "s_cbranch_scc1 L_roleT")

def common_late(g):
    e = g.e
    e(f"s_lshl_b32 s{S_T0}, s{S_WV}, 2", f"s_add_u32 s{S_T0}, s{S_T0}, {L_TFL}", f"v_mov_b32 v{V_MYFL}, s{S_T0}",
      f"s_and_b32 s{S_T0}, s{S_T0}, 0xfffffff0", f"v_mov_b32 v{V_FLB}, s{S_T0}")

def scalar_prefetch(g, items):
    e = g.e
    e(f"s_lshl_b32 s{S_T0}, s2, 2", f"s_add_u32 s{S_T0}, s{S_T0}, s{S_W}")
    k = 0
    for pp, stride, first, n, ls in items:
        e(f"s_mul_i32 s{S_T1}, s{S_T0}, {stride}", f"s_add_u32 s{S_OUT}, s{pp}, s{S_T1}", f"s_addc_u32 s{S_OUT+1}, s{pp+1}, 0")
        for i in range(n):
            e(f"s_load_dword s{S_DS}, {sr(S_OUT,2)}, {first+ls*i} ; touch")

def nonce(g):
    g.e(f"s_mul_i32 s{S_NON}, s{S_EP}, 1664525", f"s_add_u32 s{S_NON}, s{S_NON}, 1013904223",
        f"s_mul_i32 s{S_NON+1}, s{S_EP}, 22695477", f"s_add_u32 s{S_NON+1}, s{S_NON+1}, 0x9e3779b9")

def frag_addr(g, dst, tmp, base_s=None, base_c=0):
    e = g.e
    e(f"v_and_b32 v{tmp}, 31, v0", f"v_lshlrev_b32 v{dst}, 7, v{tmp}", f"v_bfe_u32 v{tmp}, v0, 1, 3", f"v_lshrrev_b32 v{tmp+1}, 5, v0",
      f"v_xor_b32 v{tmp}, v{tmp}, v{tmp+1}", f"v_lshl_add_u32 v{dst}, v{tmp}, 4, v{dst}")
    if base_s is not None: e(f"v_add_u32 v{dst}, s{base_s}, v{dst}")
    if base_c: e(f"v_add_u32 v{dst}, {base_c}, v{dst}")
    for k in range(1, 4): e(f"v_xor_b32 v{dst+k}, {32*k}, v{dst}")

def make_sel(g, dst, tmp):
    e = g.e
    e(f"v_bfe_u32 v{tmp}, v0, 3, 2", f"v_and_b32 v{tmp+1}, 3, v0", f"v_lshl_add_u32 v{tmp}, v{tmp}, 2, v{tmp+1}",
      f"v_bfe_u32 v{tmp+1}, v0, 2, 1", f"v_lshrrev_b32 v{tmp+2}, 5, v0", f"v_xor_b32 v{tmp+1}, v{tmp+1}, v{tmp+2}",
      f"v_lshl_add_u32 v{tmp}, v{tmp+1}, 4, v{tmp}",
      f"v_and_b32 v{tmp+1}, 1, v0", f"v_lshlrev_b32 v{tmp+1}, 4, v{tmp+1}", f"v_mov_b32 v{tmp+2}, 0x3f80",
      f"v_lshlrev_b32 v{tmp+1}, v{tmp+1}, v{tmp+2}", f"v_lshrrev_b32 v{tmp}, 1, v{tmp}")
    for q in range(8):
        e(f"v_cmp_eq_u32 vcc, {q}, v{tmp}", f"v_cndmask_b32 v{dst+q}, 0, v{tmp+1}, vcc")

def rowhalf(g, d):
    if g.o.get('sig8'): g.e(f"s_lshr_b32 s{d}, s{S_J}, 3")
    else: g.e(f"s_and_b32 s{d}, s{S_J}, 1")
def colblk(g, d):
    if g.o.get('sig8'): g.e(f"s_and_b32 s{d}, s{S_J}, 7")
    else: g.e(f"s_lshr_b32 s{d}, s{S_J}, 1")

def final_preload(g, tmp):
    e = g.e
    rowhalf(g, S_T1)
    e(f"s_lshl_b32 s{S_T0}, s{S_C}, 7", f"s_lshl_b32 s{S_T1}, s{S_T1}, 6", f"s_add_u32 s{S_T0}, s{S_T0}, s{S_T1}",
      f"s_lshr_b32 s{S_T1}, s{S_WV}, 2", f"s_lshl_b32 s{S_T1}, s{S_T1}, 5", f"s_add_u32 s{S_T0}, s{S_T0}, s{S_T1}",
      f"s_lshl_b32 s{S_T1}, s{S_W}, 2", f"s_add_u32 s{S_T0}, s{S_T0}, s{S_T1}", f"s_lshl_b32 s{S_T0}, s{S_T0}, 10")
    colblk(g, S_T1); e(f"s_lshl_b32 s{S_T1}, s{S_T1}, 7")
    e(f"v_and_b32 v{tmp}, 15, v0", f"v_lshlrev_b32 v{tmp}, 3, v{tmp}", f"v_add_u32 v{tmp}, s{S_T1}, v{tmp}",
      f"v_lshrrev_b32 v5, 4, v0", f"v_lshl_add_u32 v5, v5, 10, v{tmp}", f"v_add_u32 v5, s{S_T0}, v5", f"v_add_u32 v{tmp+1}, 0x4000, v5")
    g.vmem(f"global_load_dwordx2 {vr(V_FX,2)}, v5, {sr(P_X,2)}", 'fin')
    g.vmem(f"global_load_dwordx2 {vr(V_FX+2,2)}, v{tmp+1}, {sr(P_X,2)}", 'fin')
    g.vmem(f"global_load_dwordx2 {vr(V_FX+4,2)}, v{tmp}, {sr(P_DSK,2)}", 'fin')

def part_addr(g, dst, tmp, base_s):
    e = g.e
    e(f"v_and_b32 v{tmp}, 31, v0", f"v_lshlrev_b32 v{dst}, 8, v{tmp}", f"v_and_b32 v{tmp}, 7, v0", f"v_lshrrev_b32 v{tmp+1}, 5, v0",
      f"v_xor_b32 v{tmp}, v{tmp}, v{tmp+1}", f"v_lshl_add_u32 v{dst}, v{tmp}, 4, v{dst}", f"v_add_u32 v{dst}, s{base_s}, v{dst}")
    for k in range(1, 4): e(f"v_xor_b32 v{dst+k}, {32*k}, v{dst}")

def softmax(g, p, out, tmp):
    e = g.e
    e(f"v_max3_f32 v{tmp}, v{p}, v{p+1}, v{p+2}")
    for i in range(3, 15, 2): e(f"v_max3_f32 v{tmp}, v{tmp}, v{p+i}, v{p+i+1}")
    e(f"v_max_f32 v{tmp}, v{tmp}, v{p+15}", f"v_mul_f32 v{tmp}, s{S_T3}, v{tmp}")
    for i in range(0, 16, 2):
        e(f"v_pk_fma_f32 {vr(p+i,2)}, {vr(p+i,2)}, {sr(S_T2,2)}, {vr(tmp,2)} op_sel_hi:[1,0,0]")
    for i in range(16): e(f"v_exp_f32 v{p+i}, v{p+i}")
    e(f"v_pk_add_f32 {vr(tmp,2)}, {vr(p,2)}, {vr(p+2,2)}", f"v_pk_add_f32 {vr(tmp+2,2)}, {vr(p+4,2)}, {vr(p+6,2)}")
    e(f"v_pk_add_f32 {vr(tmp,2)}, {vr(tmp,2)}, {vr(p+8,2)}", f"v_pk_add_f32 {vr(tmp+2,2)}, {vr(tmp+2,2)}, {vr(p+10,2)}")
    e(f"v_pk_add_f32 {vr(tmp,2)}, {vr(tmp,2)}, {vr(p+12,2)}", f"v_pk_add_f32 {vr(tmp+2,2)}, {vr(tmp+2,2)}, {vr(p+14,2)}")
    e(f"v_pk_add_f32 {vr(tmp,2)}, {vr(tmp,2)}, {vr(tmp+2,2)}", f"v_add_f32 v{tmp}, v{tmp}, v{tmp+1}", f"v_rcp_f32 v{tmp}, v{tmp}")
    for i in range(0, 16, 2):
        e(f"v_pk_mul_f32 {vr(p+i,2)}, {vr(p+i,2)}, {vr(tmp,2)} op_sel_hi:[1,0]")
    g.cvt16(out, p)

def softmax_np(g, p, out, tmp):
    e = g.e
    e(f"v_max3_f32 v{tmp}, v{p}, v{p+1}, v{p+2}")
    for i in range(3, 15, 2): e(f"v_max3_f32 v{tmp}, v{tmp}, v{p+i}, v{p+i+1}")
    e(f"v_max_f32 v{tmp}, v{tmp}, v{p+15}", f"v_mul_f32 v{tmp}, s{S_T3}, v{tmp}")
    e(f"v_fma_f32 v{p}, v{p}, s{S_T2}, v{tmp}", f"v_fma_f32 v{p+1}, v{p+1}, s{S_T2}, v{tmp}")
    for i in range(16):
        e(f"v_exp_f32 v{p+i}, v{p+i}")
        if i+2 < 16: e(f"v_fma_f32 v{p+i+2}, v{p+i+2}, s{S_T2}, v{tmp}")
        if i == 2: e(f"v_add_f32 v{tmp+1}, v{p}, v{p+1}")
        elif i > 2: e(f"v_add_f32 v{tmp+1}, v{tmp+1}, v{p+i-1}")
    e(f"v_add_f32 v{tmp+1}, v{tmp+1}, v{p+15}", f"v_rcp_f32 v{tmp+1}, v{tmp+1}")
    for i in range(0, 16, 2):
        e(f"v_mul_f32 v{p+i}, v{p+i}, v{tmp+1}", f"v_mul_f32 v{p+i+1}, v{p+i+1}, v{tmp+1}", f"v_cvt_pk_bf16_f32 v{out+i//2}, v{p+i}, v{p+i+1}")

def sum16(g, p, tmp):
    e = g.e
    e(f"v_pk_add_f32 {vr(tmp,2)}, {vr(p,2)}, {vr(p+2,2)}", f"v_pk_add_f32 {vr(tmp+2,2)}, {vr(p+4,2)}, {vr(p+6,2)}")
    e(f"v_pk_add_f32 {vr(tmp,2)}, {vr(tmp,2)}, {vr(p+8,2)}", f"v_pk_add_f32 {vr(tmp+2,2)}, {vr(tmp+2,2)}, {vr(p+10,2)}")
    e(f"v_pk_add_f32 {vr(tmp,2)}, {vr(tmp,2)}, {vr(p+12,2)}", f"v_pk_add_f32 {vr(tmp+2,2)}, {vr(tmp+2,2)}, {vr(p+14,2)}")
    e(f"v_pk_add_f32 {vr(tmp,2)}, {vr(tmp,2)}, {vr(tmp+2,2)}", f"v_add_f32 v{tmp}, v{tmp}, v{tmp+1}")

def rec_store(g, data, ck, vl4, soff, tag):
    e = g.e
    for a in range(2): g.vmem(f"buffer_store_dwordx4 {vr(data+4*a,4)}, v{V_L16}, {sr(S_WS,4)}, s{soff} offen offset:{1024*a} sc1", tag)
    e(f"v_add3_u32 v{ck}, v{data}, v{data+1}, v{data+2}", f"v_add3_u32 v{ck}, v{ck}, v{data+3}, v{data+4}", f"v_add3_u32 v{ck}, v{ck}, v{data+5}, v{data+6}",
      f"v_add_u32 v{ck}, v{ck}, v{data+7}", f"v_sub_u32 v{ck}, s{S_NON}, v{ck}")
    g.vmem(f"buffer_store_dword v{ck}, v{vl4}, {sr(S_WS,4)}, s{soff} offen offset:2048 sc1", tag)

class RecStream:
    def __init__(s, g, n, depth, buf, ck, tmp, vl4, offs, sA, sB):
        s.g, s.n, s.D, s.buf, s.ck, s.tmp, s.vl4, s.offs, s.sA, s.sB = g, n, depth, buf, ck, tmp, vl4, offs, sA, sB
        s.cold = []
    def frag(s, i, r, a): return s.buf + 16*(i % s.D) + 8*r + 4*a
    def load(s, i, track=True):
        g = s.g
        for r, sd in ((0, s.sA), (1, s.sB)):
            base, c = s.offs(i, r)
            g.e(f"s_add_u32 s{sd}, s{base}, {c}")
            ld = [f"buffer_load_dwordx4 {vr(s.frag(i,r,a),4)}, v{V_L16}, {sr(S_WS,4)}, s{sd} offen offset:{1024*a} sc1" for a in range(2)]
            ld.append(f"buffer_load_dword v{s.ck+2*(i % s.D)+r}, v{s.vl4}, {sr(S_WS,4)}, s{sd} offen offset:2048 sc1")
            for x in ld:
                if track: g.vmem(x, f'a{i}')
                else: g.e(x)
    def check(s, i):
        g = s.g; b = s.frag(i, 0, 0); c = s.ck+2*(i % s.D); t = s.tmp
        g.e(f"v_add3_u32 v{t}, v{c}, v{b}, v{b+1}", f"v_add3_u32 v{t+1}, v{c+1}, v{b+8}, v{b+9}")
        for k in range(2, 8, 2): g.e(f"v_add3_u32 v{t}, v{t}, v{b+k}, v{b+k+1}", f"v_add3_u32 v{t+1}, v{t+1}, v{b+8+k}, v{b+9+k}")
        g.e(f"v_cmp_ne_u64 vcc, {sr(S_NN,2)}, {vr(t,2)}")
    def need(s, i, inflight):
        g = s.g; lr = g.lab('rr'); lo = g.lab('ro'); l2 = g.lab('rq')
        g.waitvm(f'a{i}'); s.check(i)
        g.e(f"s_cbranch_vccnz {lr}" if not g.o.get('noval') else "s_nop 0", lo+":")
        def rt():
            g.e(lr+":", f"s_mov_b32 s{S_T0}, {g.o.get('timeout', 200000)}", l2+":", f"s_sleep {g.o.get('rsleep', 2)}"); g.count(0x1000000); s.load(i, False)
            g.e(f"s_sub_u32 s{S_T0}, s{S_T0}, 1", "s_waitcnt vmcnt(0)", f"s_cbranch_scc1 {lo}"); s.check(i)
            g.e(f"s_cbranch_vccnz {l2}")
            for k in inflight: s.load(k, False)
            g.e(f"s_branch {lo}", g.lab('role_c')+":")
        s.cold.append(g.capture(rt))

def epoch_load(g, v):
    g.e(f"v_mov_b32 v{v}, {WS_EPOCH}")
    g.vmem(f"global_load_dword v{v}, v{v}, {sr(P_WS,2)} sc1", 'ep')
def epoch_use(g, v):
    g.e(f"v_readfirstlane_b32 s{S_EP}, v{v}"); nonce(g)

def roleT(g):
    e = g.e; o = g.o
    g.vm = []
    X = 128
    VXO = 6
    VBO = 5
    VWO = 10
    VXA = 12
    VTR = 11
    WPA, WPB, SEL = 16, 20, 24
    ACC, RING, KP, DA, DB, PA, PB = 32, 48, 72, 80, 96, 112, 120
    e("L_roleT:")
    def slice_offs(s):
        e(f"s_add_u32 s{S_T0}, s{S_R0}, {s}", f"s_and_b32 s{S_T0}, s{S_T0}, 7", f"s_lshl_b32 s{S_KX+s}, s{S_T0}, 7", f"s_mul_i32 s{S_KW+s}, s{S_T0}, {64*3072}")
    for s in range(2): slice_offs(s)
    e("v_lshrrev_b32 v32, 5, v0", "v_bfe_u32 v33, v0, 3, 2", "v_and_b32 v34, 7, v0", "v_lshrrev_b32 v35, 4, v0", "v_xor_b32 v34, v34, v35", "v_lshlrev_b32 v34, 4, v34")
    e("v_lshl_add_u32 v36, v32, 4, v33", f"v_lshl_add_u32 v{VXO}, v36, 10, v34")
    e(f"v_xor_b32 v{VXO+1}, 64, v{VXO}", f"v_add_u32 v{VXO+2}, {2*3072}, v{VXO}", f"v_add_u32 v{VXO+3}, {3*3072}, v{VXO+1}", f"v_add_u32 v{VXO+1}, 3072, v{VXO+1}")
    e("v_lshl_add_u32 v36, v32, 3, v33", f"v_lshl_add_u32 v{VBO}, v36, 10, v34")
    e(f"s_and_b32 s{S_T0}, s{S_W}, 1", f"s_lshl_b32 s{S_T1}, s{S_T0}, 6", f"v_xor_b32 v{VBO}, s{S_T1}, v{VBO}",
      f"s_lshl_b32 s{S_T0}, s{S_T0}, 12", f"s_lshr_b32 s{S_T1}, s{S_W}, 1", f"s_lshl_b32 s{S_T1}, s{S_T1}, 14", f"s_add_u32 s{S_T0}, s{S_T0}, s{S_T1}",
      f"s_lshl_b32 s{S_T1}, s{S_J}, 15", f"s_add_u32 s{S_T2}, s{S_T0}, s{S_T1}")
    e(f"s_lshl_b32 s{S_T0}, s{S_C}, 17", f"s_lshl_b32 s{S_T1}, s{S_W}, 15", f"s_add_u32 s{S_T3}, s{S_T0}, s{S_T1}")
    e(f"s_lshl_b32 s{S_M0B}, s{S_W}, 10")
    e(f"v_lshrrev_b32 v36, 2, v0", f"v_mul_u32_u24 v36, 3072, v36", f"v_and_b32 v37, 3, v0", f"v_lshl_add_u32 v{VWO}, v37, 4, v36")
    e(f"s_mul_i32 s{S_T0}, s{S_W}, {16*3072}", f"s_lshl_b32 s{S_T1}, s{S_J}, 6", f"s_add_u32 s{S_T0}, s{S_T0}, s{S_T1}", f"s_add_u32 s{S_M+1}, s{S_T0}, 1024")
    for d, sz in ((S_X, 2097152), (S_A, 524288), (S_B, 524288), (S_WK, 1572864)):
        off = {S_X: S_T3, S_A: S_T2, S_B: S_T2, S_WK: S_M+1}[d]
        e(f"s_sub_u32 s{d+2}, {sz}, s{off}", f"s_mov_b32 s{d+3}, 0x20000")
    e(f"s_add_u32 m0, s{S_M}, {xsl(0)}")
    e("s_waitcnt lgkmcnt(0)")
    g.stamp(20)
    def base(d, p, off): e(f"s_add_u32 s{d}, s{p}, s{off}", f"s_addc_u32 s{d+1}, s{p+1}, 0")
    def dma_x(s, rng=range(4), setm0=True):
        if setm0: e(f"s_add_u32 m0, s{S_M}, {xsl(s)}")
        for gg in rng:
            g.vmem(f"buffer_load_dwordx4 v{VXO+gg}, {sr(S_X,4)}, s{S_KX+s} offen offset:{1024*gg} lds", f'x{s}')
    def dma_b(s):
        for part in range(2):
            e(f"s_add_u32 m0, s{S_M0B}, {L_BSL + (s%3)*8192 + part*4096}")
            g.vmem(f"buffer_load_dwordx4 v{VBO}, {sr(S_A if part==0 else S_B,4)}, s{S_KX+s} offen lds", f'x{s}')
    def dma_w(srd, slot, s, tag):
        e(f"s_add_u32 m0, s{S_M0B}, {TREG + slot*32768 + s*4096}")
        g.vmem(f"buffer_load_dwordx4 v{VWO}, {sr(srd,4)}, s{S_KW+s} offen lds", tag)
    def wgroups(srd, slot, tag, rng): return [g.capture(lambda s=s: dma_w(srd, slot, s, tag)) for s in rng]
    base(S_X, P_X, S_T3); dma_x(0, setm0=False)
    base(S_A, P_BRE, S_T2); base(S_B, P_BIM, S_T2); dma_b(0)
    base(S_WK, P_WQKV, S_M+1); dma_w(S_WK, -2, 0, 'x0')
    g.stamp(21)
    n1 = o.get('x1_pre', 2)
    dma_x(1, range(n1))
    if o.get('spre'): scalar_prefetch(g, [(P_CRE, 512, 0, 4, 128), (P_CIM, 512, 0, 4, 128)])
    for s in range(2, 8): slice_offs(s)
    e(f"v_add_u32 v113, {L_GATE}, v34")
    frag_addr(g, VXA, 32, base_s=S_M)
    e("v_lshrrev_b32 v32, 5, v0", "v_bfe_u32 v33, v0, 2, 2", "v_lshl_add_u32 v32, v32, 3, v33", "v_bfe_u32 v34, v0, 4, 1",
      f"v_lshlrev_b32 v{VTR}, 6, v32", f"v_lshl_add_u32 v{VTR}, v34, 5, v{VTR}", "v_and_b32 v35, 1, v0", f"v_lshl_add_u32 v{VTR}, v35, 4, v{VTR}",
      "v_bfe_u32 v35, v0, 1, 1", f"v_lshl_add_u32 v{VTR}, v35, 3, v{VTR}")
    e("v_lshlrev_b32 v112, 5, v32", "v_lshl_add_u32 v112, v34, 4, v112", "v_lshl_add_u32 v112, v35, 3, v112", f"v_add_u32 v112, {L_WPHI}, v112")
    rowhalf(g, S_T0)
    e(f"s_lshl_b32 s{S_T0}, s{S_T0}, 13", f"s_lshl_b32 s{S_T1}, s{S_W}, 11", f"s_add_u32 s{S_T0}, s{S_T0}, s{S_T1}", f"s_add_u32 s{S_T0}, s{S_T0}, {XREG}",
      f"v_add_u32 v115, s{S_T0}, v{V_L16}", "v_xor_b32 v116, 64, v115", "v_mov_b32 v118, 0", "v_mov_b32 v119, 0")
    e(f"s_sub_u32 s{S_T0}, s{S_M+1}, 1024"); g.srd(S_WQ, P_WQKV, S_T0, 1572864)
    e(f"s_add_u32 s{S_T0}, s{S_M+1}, 1024"); g.srd(S_WVv, P_WQKV, S_T0, 1572864)
    g.srd(S_WS, P_WS, None, WS_SIZE)
    common_late(g)
    make_sel(g, SEL, 32)
    g.arrive(0, 32)
    e(f"s_mov_b32 s{S_T2}, {LOG2E}", f"s_mov_b32 s{S_T3}, {LOG2E | 0x80000000}")
    g.stamp(0)
    dma_x(1, range(n1, 4), setm0=False); dma_b(1); dma_w(S_WK, -2, 1, 'x1')
    GB = 48
    WB = 80
    def gate_rd(s):
        b = GB+12*(s & 1)
        e(f"ds_read_b128 {vr(b,4)}, v115 offset:{xsl(s)}", f"ds_read_b128 {vr(b+4,4)}, v116 offset:{xsl(s)+1024}", f"ds_read_b128 {vr(b+8,4)}, v113 offset:{s*128}")
    def gate_dot(s):
        b = GB+12*(s & 1)
        for q in range(4): e(f"v_dot2c_f32_bf16 v118, v{b+q}, v{b+8+q}", f"v_dot2c_f32_bf16 v119, v{b+4+q}, v{b+8+q}")
    def kmm(s, k): g.mfma(ACC, WB+16*(s & 1)+4*k, X+16*s+4*k, None if (s == 0 and k == 0) else ACC)
    wv = wgroups(S_WVv, 1, 'wv', range(8))
    for s in range(8):
        g.waitvm(f'x{s}')
        e("s_waitcnt lgkmcnt(0)", "s_barrier")
        if s == 0: g.stamp(1)
        g.stamp(30+s)
        if s == 7: g.prio('t_b7')
        def issue():
            if s+2 < 8: dma_x(s+2); dma_b(s+2); dma_w(S_WK, -2, s+2, f'x{s+2}')
            if s == 0: epoch_load(g, 114)
            for _ in range(o.get('wv_sched', {6: 4, 7: 4}).get(s, 0)): g.play(wv.pop(0))
        if not o.get('dma_late'): issue()
        for k in range(4):
            if s > 0: kmm(s-1, k)
            e(f"ds_read_b128 {vr(X+16*s+4*k,4)}, v{VXA+k} offset:{xsl(s)}")
            for i in range(2): e(f"ds_read_b64_tr_b16 {vr(WB+16*(s&1)+4*k+2*i,2)}, v{VTR} offset:{(4*s+k)*1024+i*256}")
        if s >= 1: gate_rd(s-1)
        if o.get('dma_late'): issue()
        if s >= 2: gate_dot(s-2)
        if s == 2:
            for hd, dst in ((0, WPA), (1, WPB)):
                for i in range(2): e(f"ds_read_b64_tr_b16 {vr(dst+2*i,2)}, v112 offset:{hd*512+i*128}")
        if s == 3:
            epoch_use(g, 114)
            e("v_bfe_u32 v112, v0, 2, 1", "v_mul_u32_u24 v112, 0x8000, v112", "v_lshl_or_b32 v112, v112, 16, v112")
            for q in range(8): e(f"v_xor_b32 v{WPA+q}, v{WPA+q}, v112")
    e("s_waitcnt lgkmcnt(0)")
    for k in range(4): kmm(7, k)
    gate_rd(7); gate_dot(6)
    while wv: g.play(wv.pop(0))
    wq = wgroups(S_WQ, 0, 'wq', range(8))
    qa, qb, qc = o.get('wq_pre', (0, 0, 0))
    for _ in range(qa): g.play(wq.pop(0))
    e(f"v_add_u32 v{VTR}, {TREG}, v{VTR}")
    g.stamp(2)
    g.cvt16(KP, ACC, 8); g.mfma(DA, WPA, KP); g.cvt16(KP+4, ACC+8, 8); g.mfma(DB, WPB, KP+4)
    e("s_waitcnt lgkmcnt(0)"); gate_dot(7)
    def gate_fin():
        e(f"v_lshrrev_b32 v{GA}, 3, v0", f"s_lshl_b32 s{S_T0}, s{S_W}, 6", f"s_add_u32 s{S_T0}, s{S_T0}, {L_G}", f"v_lshl_add_u32 v{GA}, v{GA}, 2, s{S_T0}")
        for md in ("quad_perm:[1,0,3,2]", "quad_perm:[2,3,0,1]", "row_half_mirror"):
            e(f"v_add_f32_dpp v{G0}, v{G0}, v{G0} {md} row_mask:0xf bank_mask:0xf", f"v_add_f32_dpp v{G1_}, v{G1_}, v{G1_} {md} row_mask:0xf bank_mask:0xf")
        e(f"v_mul_f32 v{G0}, s{S_T3}, v{G0}", f"v_mul_f32 v{G1_}, s{S_T3}, v{G1_}", f"v_exp_f32 v{G0}, v{G0}", f"v_exp_f32 v{G1_}, v{G1_}", f"v_add_f32 v{G0}, 1.0, v{G0}", f"v_add_f32 v{G1_}, 1.0, v{G1_}",
          f"v_rcp_f32 v{G0}, v{G0}", f"v_rcp_f32 v{G1_}, v{G1_}", f"ds_write_b32 v{GA}, v{G0}", f"ds_write_b32 v{GA}, v{G1_} offset:32")
    if o.get('gate_late'):
        G0, G1_, GA = 8, 9, 7
        e(f"v_mov_b32 v{G0}, v118", f"v_mov_b32 v{G1_}, v119")
    else:
        G0, G1_, GA = 118, 119, 113
        gate_fin()
    def wgemm(slot, transposed, groups=(), k0=0, k1=32, fill=(), hooks={}):
        D = 6
        groups = list(groups); n = len(groups); k = 0; fill = list(fill); nf = len(fill); kf = 0
        def rd(ks):
            for i in range(2): e(f"ds_read_b64_tr_b16 {vr(RING+4*(ks%D)+2*i,2)}, v{VTR} offset:{slot*32768+ks*1024+i*256}")
        for ks in range(D-1): rd(ks)
        for ks in range(32):
            if ks+D-1 < 32: rd(ks+D-1)
            upto = nf*(ks+1)//32
            if ks == 0:
                g.play(fill[:upto]); kf = upto
            e(f"s_waitcnt lgkmcnt({2*min(D-1, 31-ks)})")
            w = RING+4*(ks%D); x = X+4*ks
            if transposed: g.mfma(ACC, w, x, None if ks == 0 else ACC)
            else: g.mfma(ACC, x, w, None if ks == 0 else ACC)
            if ks in hooks: hooks[ks]()
            while k < n and ks >= k0 + (k1-k0)*k//n: g.play(groups[k]); k += 1
            upto = min(nf, nf*(ks+2)//32)
            g.play(fill[kf:upto]); kf = max(kf, upto)
    S_KVG, S_ZG, S_KVP, S_ZP, S_WOM, S_OST, S_NM = S_KX, S_KX+1, S_KX+2, S_KX+3, S_KX+4, S_KX+5, S_KX+6
    VKW, VKR, VZR, VZ8 = 12, 13, 14, 15
    VA, VB, ZT = 80, 88, 76
    H2 = o.get('hops', 1) == 2
    OCK = o.get('ock', 1)
    oh = o.get('ohint_at', 0) if OCK else None
    RO = RECO if OCK else 2048
    def su1():
        e(f"s_mov_b32 s{S_M}, 0xffff", f"s_mov_b32 s{S_M+1}, 0xffff", f"s_mov_b32 s{S_NM}, 0xffff0000", f"s_mov_b32 s{S_NM+1}, 0xffff0000")
        e(f"s_add_u32 s{S_T0}, s{S_M0B}, {L_KVR}", f"v_add_u32 v{VKW}, s{S_T0}, v{V_L16}")
    def su2():
        e(f"s_lshl_b32 s{S_T0}, s{S_W}, 12", f"s_add_u32 s{S_T0}, s{S_T0}, {L_KVR}", f"v_add_u32 v{VKR}, s{S_T0}, v{V_L16}")
    def su3():
        e(f"s_lshl_b32 s{S_T0}, s{S_W}, 6", f"s_add_u32 s{S_T0}, s{S_T0}, {L_ZR}", f"v_and_b32 v{VZ8}, 60, v0", f"v_add_u32 v{VZR}, s{S_T0}, v{VZ8}")
        if H2: e(f"v_lshlrev_b32 v{VZ8}, 8, v{VZ8}", f"v_and_or_b32 v{VZ8}, v{V_L16}, 48, v{VZ8}")
    def su4():
        e(f"s_lshl_b32 s{S_T0}, s{S_J}, 2", f"s_add_u32 s{S_T0}, s{S_T0}, s{S_W}", f"s_lshl_b32 s{S_KVG}, s{S_T0}, 14", f"s_add_u32 s{S_KVG}, s{S_KVG}, {WS_KV}")
        if H2: e(f"s_lshl_b32 s{S_ZG}, s{S_T0}, 10", f"s_add_u32 s{S_ZG}, s{S_ZG}, {WS_H2}")
    def su5():
        if H2: e(f"s_lshl_b32 s{S_T0}, s{S_C}, 6", f"s_add_u32 s{S_KVP}, s{S_KVG}, s{S_T0}", f"s_add_u32 s{S_ZP}, s{S_ZG}, s{S_T0}",
                 f"s_lshl_b32 s{S_T0}, s{S_C}, 10", f"s_add_u32 s{S_KVG}, s{S_KVG}, s{S_T0}")
        else: e(f"s_lshl_b32 s{S_T0}, s{S_C}, 10", f"s_add_u32 s{S_KVP}, s{S_KVG}, s{S_T0}")
    def su5b():
        e(f"s_lshl_b32 s{S_T0}, s{S_J}, 2", f"s_add_u32 s{S_T0}, s{S_T0}, s{S_W}", f"s_lshl_b32 s{S_T0}, s{S_T0}, 7", f"s_add_u32 s{S_B}, s{S_T0}, {WS_FLAGS+FL_K}",
          f"s_lshl_b32 s{S_T0}, s{S_C}, 2", f"s_add_u32 s{S_B+1}, s{S_B}, s{S_T0}")
    def su6():
        colblk(g, S_T1)
        e(f"s_lshl_b32 s{S_T0}, s{S_W}, 16", f"s_lshl_b32 s{S_T1}, s{S_T1}, 7", f"s_add_u32 s{S_T0}, s{S_T0}, s{S_T1}")
        g.srd(S_A, P_WO, S_T0, 524288)
    def su7():
        e(f"v_lshrrev_b32 v{VXO}, 3, v0", f"v_lshlrev_b32 v{VXO}, 10, v{VXO}", f"v_and_b32 v{VXO+1}, 7, v0", f"v_bfe_u32 v{VXO+2}, v0, 4, 1")
        e(f"v_lshlrev_b32 v{VXO+2}, 2, v{VXO+2}", f"v_xor_b32 v{VXO+1}, v{VXO+1}, v{VXO+2}", f"v_lshl_add_u32 v{VXO}, v{VXO+1}, 4, v{VXO}")
        for k in range(1, 4): e(f"v_add_u32 v{VXO+k}, {7168*k}, v{VXO}")
        e(f"s_lshl_b32 s{S_WOM}, s{S_W}, 13")
    def su10():
        e(f"s_lshl_b32 s{S_T0}, s{S_C}, 2", f"s_add_u32 s{S_T0}, s{S_T0}, s{S_W}", f"s_lshl_b32 s{S_T0}, s{S_T0}, 4", f"s_add_u32 s{S_T0}, s{S_T0}, s{S_J}",
          f"s_mul_i32 s{S_T0}, s{S_T0}, {RO}", f"s_add_u32 s{S_OST}, s{S_T0}, {WS_A2O}")
    for f in (su1, su2, su3, su4, su5, su5b): f()
    e(f"s_mov_b32 s{S_DS}, 0x3f803f80", f"s_lshl_b32 s{S_T0}, s{S_W}, 8", f"s_add_u32 s{S_T0}, s{S_T0}, {L_ZR}", f"v_lshl_add_u32 v{VBO}, v0, 2, s{S_T0}")
    def phik():
        softmax_np(g, DA, PA, KP)
        g.mfma(DA, PA, SEL); g.mfma(DA, PA+4, SEL+4, DA)
        softmax_np(g, DB, PB, KP)
        g.mfma(DB, PB, SEL); g.mfma(DB, PB+4, SEL+4, DB)
        e(f"v_mov_b32 v{ZT}, 0", f"v_mov_b32 v{ZT+1}, 0")
        g.cvt16(PA, DA)
        for q in range(16): e(f"v_mov_b32 v{VA+q}, 0")
        g.cvt16(PB, DB)
        for q in range(8): e(f"v_dot2c_f32_bf16 v{ZT}, s{S_DS}, v{PA+q}", f"v_dot2c_f32_bf16 v{ZT+1}, s{S_DS}, v{PB+q}")
    fill = g.capture(phik)
    npre = o.get('sm_pre', 30)
    g.weave(fill[:npre], wq[:qb]); fill = fill[npre:]; del wq[:qb]
    g.waitvm('wv'); e("s_barrier"); g.prio('t_b8')
    for _ in range(qc): g.play(wq.pop(0))
    g.stamp(3)
    if o.get('onlyS'):
        final_preload(g, 34); final_setup(g); e("s_branch L_final")
    wgemm(1, False, wq, o.get('wq_start', 8), o.get('wq_end', 26), fill)
    g.stamp(5)
    if o.get('khint_early', 1) == 1: g.setflag(S_B+1, KP, False)
    e(f"v_permlane32_swap_b32 v{ZT}, v{ZT+1}", f"v_add_f32 v{ZT}, v{ZT}, v{ZT+1}", f"ds_write_b32 v{VBO}, v{ZT}")
    for a in range(2):
        e(f"s_mov_b64 exec, {sr(S_M,2)}"); g.cvt16(VA+4*a, ACC+8*a, 8)
        e(f"s_mov_b64 exec, {sr(S_NM,2)}"); g.cvt16(VB+4*a, ACC+8*a, 8)
        e("s_mov_b64 exec, -1")
        g.mfma(DB, PA+4*a, VA+4*a, None if a == 0 else DB); g.mfma(DB, PB+4*a, VB+4*a, DB)
    su6(); su10()
    g.waitvm('wq')
    for q in range(4): e(f"ds_write_b128 v{VKW}, {vr(DB+4*q,4)} offset:{q*4096}")
    g.arrive(3, RING)
    if o.get('khint_early', 1) == 2: g.setflag(S_B+1, KP, False)
    if o.get('gate_late'): gate_fin()
    su7(); e(f"v_lshlrev_b32 v{VBO}, 2, v0"); g.rwait(3, RING)
    if o.get('kpoll_at', 2) < 0: g.poll_issue(VBO, S_B, '0xffff', VKW, False)
    for q in range(4): e(f"ds_read_b32 v{KP+q}, v{VZR} offset:{q*256}")
    for q in range(4): e(f"ds_read_b128 {vr(DB+4*q,4)}, v{VKR} offset:{q*1024}")
    e(f"v_mov_b32 v{KP+7}, s{S_NON}", "s_waitcnt lgkmcnt(4)",
      f"v_pk_add_f32 {vr(KP,2)}, {vr(KP,2)}, {vr(KP+2,2)}", "s_waitcnt lgkmcnt(2)")
    e(f"v_pk_add_f32 {vr(DB,2)}, {vr(DB,2)}, {vr(DB+4,2)}", f"v_pk_add_f32 {vr(DB+2,2)}, {vr(DB+2,2)}, {vr(DB+6,2)}", f"v_add_f32 v{KP+6}, v{KP}, v{KP+1}", "s_waitcnt lgkmcnt(0)",
      f"v_pk_add_f32 {vr(DB+8,2)}, {vr(DB+8,2)}, {vr(DB+12,2)}", f"v_pk_add_f32 {vr(DB+10,2)}, {vr(DB+10,2)}, {vr(DB+14,2)}",
      f"v_pk_add_f32 {vr(DB,2)}, {vr(DB,2)}, {vr(DB+8,2)}", f"v_pk_add_f32 {vr(DB+2,2)}, {vr(DB+2,2)}, {vr(DB+10,2)}",
      f"v_cvt_pk_bf16_f32 v{KP+4}, v{DB}, v{DB+1}", f"v_cvt_pk_bf16_f32 v{KP+5}, v{DB+2}, v{DB+3}")
    g.vmem(f"buffer_store_dwordx4 {vr(KP+4,4)}, v{VZ8 if H2 else V_L16}, {sr(S_WS,4)}, s{S_KVP} offen sc1", 'kvst')
    if not o.get('khint_early', 1): g.setflag(S_B+1, KP, False)
    g.stamp(6)
    def wo_groups(kh):
        r = []
        for q in range(8):
            def f(q=q):
                if q % 4 == 0: e(f"s_add_u32 m0, s{S_WOM}, {TREG + kh*32768 + q*1024}", f"s_mov_b32 s{S_DS}, {kh*262144 + q*8192}")
                g.vmem(f"buffer_load_dwordx4 v{VXO+q%4}, {sr(S_A,4)}, s{S_DS} offen offset:{1024*(q%4)} lds", f'wo')
            r.append(g.capture(f))
        return r
    g.prio('t_q')
    wol = wo_groups(1) + wo_groups(0)
    def wo_issue(key):
        n = o.get('wo_sched', {}).get(key, 0); r = wol[:n]; del wol[:n]; return r
    KG, TT = X, 32
    retry = []
    def validated(load, check, tag, cnt):
        lr = g.lab('gr'); lo = g.lab('go'); l2 = g.lab('gq')
        g.waitvm(tag); check()
        e(f"s_cbranch_vccnz {lr}" if not o.get('noval') else "s_nop 0", lo+":")
        def rt():
            e(lr+":", f"s_mov_b32 s{S_T0}, {o.get('timeout', 200000)}", l2+":", f"s_sleep {o.get('rsleep', 4)}"); g.count(cnt); load(False)
            e(f"s_sub_u32 s{S_T0}, s{S_T0}, 1", "s_waitcnt vmcnt(0)", f"s_cbranch_scc1 {lo}"); check()
            e(f"s_cbranch_vccnz {l2}", f"s_branch {lo}", g.lab('role_c')+":")
        retry.append(g.capture(rt))
    def gload(i, track=True):
        e(f"s_add_u32 s{S_T1}, s{S_KVG}, {4096*i}")
        for k in range(4):
            x = f"buffer_load_dwordx4 {vr(KG+16*i+4*k,4)}, v{V_L16}, {sr(S_WS,4)}, s{S_T1} offen offset:{1024*k} sc1"
            g.vmem(x, f'kg{i}') if track else e(x)
    def gcheck(i):
        e(f"v_xor_b32 v{TT+6}, s{S_NON}, v{KG+16*i+3}")
        for k in range(1, 4): e(f"v_bitop3_b32 v{TT+6}, v{TT+6}, s{S_NON}, v{KG+16*i+4*k+3} bitop3:0xf6")
        e(f"v_cmp_ne_u32 vcc, 0, v{TT+6}")
    G1, G2 = X, 68
    def load1(track=True):
        for i in range(4):
            x = f"buffer_load_dwordx4 {vr(G1+4*i,4)}, v{V_L16}, {sr(S_WS,4)}, s{S_KVG} offen offset:{256*i} sc1"
            g.vmem(x, 'kg1') if track else e(x)
    def check1():
        e(f"v_xor_b32 v{TT+6}, s{S_NON}, v{G1+3}")
        for i in range(1, 4): e(f"v_bitop3_b32 v{TT+6}, v{TT+6}, s{S_NON}, v{G1+4*i+3} bitop3:0xf6")
        e(f"v_cmp_ne_u32 vcc, 0, v{TT+6}")
    def load2(track=True):
        x = f"buffer_load_dwordx4 {vr(G2,4)}, v{V_L16}, {sr(S_WS,4)}, s{S_ZG} offen sc1"
        g.vmem(x, 'kg2') if track else e(x)
    def check2(): e(f"v_cmp_ne_u32 vcc, s{S_NON}, v{G2+3}")
    ggr = [] if H2 else [g.capture(lambda i=i: gload(i)) for i in range(4)]
    def first():
        g.prio('t_m')
        g.poll_wait(VBO, S_B, '0xffff', VKW, False, 0x100, o.get('hint_lag', 8))
        if H2:
            e("s_mov_b64 exec, 0xffff"); load1(); e("s_mov_b64 exec, -1")
            e(f"s_add_u32 s{S_B}, s{S_B}, 64", f"s_add_u32 s{S_B+1}, s{S_B+1}, 64")
            if o.get('hint2_at', 0) == 0: g.setflag(S_B+1, VKR, False)
        else:
            for _ in range(o.get('g_pre', 2)): g.play(ggr.pop(0))
        g.prio('t_m2')
    hooks = {}
    if o.get('kpoll_at', 2) >= 0: hooks[o.get('kpoll_at', 2)] = lambda: g.poll_issue(VBO, S_B, '0xffff', VKW, False)
    mid = o.get('mid_at')
    if mid is not None:
        assert mid >= 16
        hooks[mid] = first
    wgemm(0, True, wo_issue('q'), o.get('wo1_start', 4), o.get('wo1_end', 20), hooks=hooks)
    assert len(wol) >= 8
    g.arrive(4, RING); g.prio('t_g')
    g.stamp(7)
    if mid is None: first()
    else:
        for _ in range(min(len(ggr), o.get('g_post', 2))): g.play(ggr.pop(0))
    ng = 0
    g.cvt16(KP, ACC, 8); g.mfma(DA, WPA, KP); g.cvt16(KP+4, ACC+8, 8); g.mfma(DB, WPB, KP+4)
    sm = softmax_np if o.get('smq_np') else softmax
    def hop1():
        e(f"s_mov_b32 s{S_NM}, 0x3f80", f"s_mov_b32 s{S_NM+1}, 0x3f800000", f"v_mov_b32 v{TT+11}, s{S_NON}", "s_mov_b64 exec, 0xffff")
        validated(load1, check1, 'kg1', 1)
        e(f"v_lshlrev_b32 v{TT}, 16, v{G1}", f"v_and_b32 v{TT+1}, 0xffff0000, v{G1}", f"v_lshlrev_b32 v{TT+2}, 16, v{G1+1}", f"v_and_b32 v{TT+3}, 0xffff0000, v{G1+1}",
          f"v_add_f32 v{TT+4}, v{G1+2}, v{G1+6}")
        for i in range(1, 4):
            r = G1+4*i
            e(f"v_dot2c_f32_bf16 v{TT}, s{S_NM}, v{r}", f"v_dot2c_f32_bf16 v{TT+1}, s{S_NM+1}, v{r}", f"v_dot2c_f32_bf16 v{TT+2}, s{S_NM}, v{r+1}", f"v_dot2c_f32_bf16 v{TT+3}, s{S_NM+1}, v{r+1}")
            if i > 1: e(f"v_add_f32 v{TT+4}, v{TT+4}, v{r+2}")
        for md in ("row_ror:4", "row_ror:8"):
            for k in (4, 0, 1, 2, 3): e(f"v_add_f32_dpp v{TT+k}, v{TT+k}, v{TT+k} {md} row_mask:0xf bank_mask:0xf")
        e(f"v_cvt_pk_bf16_f32 v{TT+10}, v{TT+4}, v{TT+4}", f"v_cvt_pk_bf16_f32 v{TT+8}, v{TT}, v{TT+1}", f"v_cvt_pk_bf16_f32 v{TT+9}, v{TT+2}, v{TT+3}", "s_mov_b64 exec, 15")
        g.vmem(f"buffer_store_dwordx4 {vr(TT+8,4)}, v{V_L16}, {sr(S_WS,4)}, s{S_ZP} offen sc1", 'kvst2')
        e("s_mov_b64 exec, -1")
        if o.get('hint2_at', 0) == 1: g.setflag(S_B+1, VKR, False)
        if not o.get('p2_sm'): g.poll_issue(VBO, S_B, '0xffff', VKW, False)
    l2done = False
    if H2 and o.get('hop1_mid', 1) == 2:
        both = g.capture(lambda: (sm(g, DA, PA, RING), sm(g, DB, PB, RING)))
        n1, n2 = o.get('h1_sm', 0), o.get('h2_sm', len(both))
        g.play(both[:n1]); hop1()
        if o.get('p2_sm'):
            g.play(both[n1:o['p2_sm']]); g.poll_issue(VBO, S_B, '0xffff', VKW, False); n1 = o['p2_sm']
        g.play(both[n1:n2])
        if n2 < len(both):
            g.poll_wait(VBO, S_B, '0xffff', VKW, False, 0x100, o.get('hint_lag', 8)); load2(); l2done = True
            g.play(both[n2:])
    elif H2 and o.get('hop1_mid', 1):
        sm(g, DA, PA, RING); hop1(); sm(g, DB, PB, RING)
    else:
        g.weave(g.capture(lambda: (sm(g, DA, PA, RING), sm(g, DB, PB, RING))), ggr[ng:], o.get('g_start', 40), o.get('g_end', 120))
        if H2: hop1()
    g.rwait(4, TT)
    for x in wo_issue('g'): g.play(x)
    e(f"s_lshl_b32 s{S_T0}, s{S_W}, 3", f"s_add_u32 s{S_T0}, s{S_T0}, {L_KVD}", f"v_lshlrev_b32 v106, 5, v0", f"v_add_u32 v102, s{S_T0}, v106", f"v_add_u32 v106, {L_KVD}, v106")
    e("v_bfe_u32 v103, v0, 4, 1", "v_lshlrev_b32 v103, 5, v103", "v_lshrrev_b32 v107, 5, v0", "v_lshl_add_u32 v103, v107, 3, v103", "v_bfe_u32 v107, v0, 2, 2", "v_lshl_add_u32 v103, v107, 1, v103",
      f"s_lshr_b32 s{S_T0}, s{S_W}, 1", f"s_lshl_b32 s{S_T0}, s{S_T0}, 6", f"s_and_b32 s{S_T1}, s{S_W}, 1", f"s_lshl_b32 s{S_T1}, s{S_T1}, 4", f"s_add_u32 s{S_T0}, s{S_T0}, s{S_T1}",
      f"s_add_u32 s{S_T0}, s{S_T0}, {L_ZD}", f"v_add_u32 v103, s{S_T0}, v103")
    e("v_and_b32 v107, 32, v0", f"v_add_u32 v107, {L_ZD}, v107", f"v_cndmask_b32 v104, v107, v106, {sr(S_M,2)}", "v_add_u32 v107, 64, v107", f"v_cndmask_b32 v105, v106, v107, {sr(S_M,2)}")
    e(f"s_lshl_b32 s{S_T0}, s{S_C}, 2", f"s_add_u32 s{S_T0}, s{S_T0}, s{S_W}", f"s_lshl_b32 s{S_T0}, s{S_T0}, 8", f"s_lshr_b32 s{S_T1}, s{S_J}, 3", f"s_lshl_b32 s{S_T1}, s{S_T1}, 7",
      f"s_add_u32 s{S_T0}, s{S_T0}, s{S_T1}", f"s_and_b32 s{S_T1}, s{S_J}, 7", f"s_lshl_b32 s{S_T1}, s{S_T1}, {2 if OCK else 3}", f"s_add_u32 s{S_T0}, s{S_T0}, s{S_T1}", f"s_add_u32 s{S_B+1}, s{S_T0}, {WS_FLAGS+FL_O}")
    e(f"s_mov_b32 s{S_T2}, 0x3f80", f"s_mov_b32 s{S_T3}, 0x3f800000")
    g.stamp(8)
    if H2:
        if not l2done:
            g.poll_wait(VBO, S_B, '0xffff', VKW, False, 0x100, o.get('hint_lag', 8))
            load2()
        if oh == -1: g.setflag(S_B+1, TT+6, False)
        for x in wo_issue('l'): g.play(x)
        validated(load2, check2, 'kg2', 1)
        if oh == 0: g.setflag(S_B+1, TT+6, False)
        g.stamp(9)
        e(f"ds_write_b64 v102, {vr(G2,2)}", f"ds_write_b16 v103, v{G2+2}")
    else:
        for i in range(4):
            validated(lambda t, i=i: gload(i, t), lambda i=i: gcheck(i), f'kg{i}', 1)
            if i == 3 and oh == 0: g.setflag(S_B+1, TT+6, False)
            for k in range(4):
                r = KG+16*i+4*k
                if i == 0 and k == 0:
                    e(f"v_lshlrev_b32 v{TT}, 16, v{r}", f"v_and_b32 v{TT+1}, 0xffff0000, v{r}", f"v_lshlrev_b32 v{TT+2}, 16, v{r+1}", f"v_and_b32 v{TT+3}, 0xffff0000, v{r+1}")
                    continue
                e(f"v_dot2c_f32_bf16 v{TT}, s{S_T2}, v{r}", f"v_dot2c_f32_bf16 v{TT+1}, s{S_T3}, v{r}", f"v_dot2c_f32_bf16 v{TT+2}, s{S_T2}, v{r+1}", f"v_dot2c_f32_bf16 v{TT+3}, s{S_T3}, v{r+1}",
                  f"v_add_f32 v{TT+4}, v{KG+2 if (i == 0 and k == 1) else TT+4}, v{r+2}")
        g.stamp(9)
        e(f"v_cvt_pk_bf16_f32 v{TT+4}, v{TT+4}, v{TT+4}", f"ds_write_b16 v103, v{TT+4}", f"v_cvt_pk_bf16_f32 v{TT}, v{TT}, v{TT+1}", f"v_cvt_pk_bf16_f32 v{TT+1}, v{TT+2}, v{TT+3}", f"ds_write_b64 v102, {vr(TT,2)}")
    wo_in = not wol and o.get('wo_sync5', 1)
    if wo_in: g.waitvm('wo')
    g.arrive(5, 36)
    for x in wo_issue('s'): g.play(x)
    g.rwait(5, 36)
    if oh == 1: g.setflag(S_B+1, TT+6, False)
    g.stamp(10)
    for a in range(2): e(f"ds_read_b128 {vr(32+4*a,4)}, v104 offset:{16*a}", f"ds_read_b128 {vr(40+4*a,4)}, v105 offset:{16*a}")
    VL4 = 21
    e(f"s_mov_b32 s{S_T1}, 0x358637bd", f"v_lshlrev_b32 v{VL4}, {2 if OCK else 3}, v0")
    e("s_waitcnt lgkmcnt(3)"); g.mfma(48, 32, PA)
    e("s_waitcnt lgkmcnt(1)"); g.mfma(48, 36, PA+4, 48); g.mfma(64, 40, PB)
    e("s_waitcnt lgkmcnt(0)"); g.mfma(64, 44, PB+4, 64)
    rowhalf(g, S_T0)
    e(f"s_lshl_b32 s{S_T0}, s{S_T0}, 1", f"s_and_b32 s{S_T2}, s{S_W}, 1", f"s_add_u32 s{S_T0}, s{S_T0}, s{S_T2}",
      f"s_lshr_b32 s{S_T2}, s{S_W}, 1", f"s_lshl_b32 s{S_T2}, s{S_T2}, 3",
      f"s_lshl_b32 s{S_KX}, s{S_C}, 2", f"s_add_u32 s{S_KX}, s{S_KX}, s{S_T0}", f"s_lshl_b32 s{S_KX}, s{S_KX}, 4", f"s_add_u32 s{S_KX}, s{S_KX}, s{S_T2}",
      f"s_lshl_b32 s{S_B}, s{S_KX}, 4", f"s_add_u32 s{S_B}, s{S_B}, {WS_FLAGS+FL_O}")
    for hd, num, den in ((0, 48, 56), (1, 72, 64)):
        e(f"v_add_f32 v{den}, s{S_T1}, v{den}", f"v_rcp_f32 v{den}, v{den}")
        for i in range(8): e(f"v_mul_f32 v{num+i}, v{num+i}, v{den}")
        g.cvt16(80+4*hd, num, 8)
        g.vmem(f"buffer_store_dwordx4 {vr(80+4*hd,4)}, v{V_L16}, {sr(S_WS,4)}, s{S_OST} offen offset:{1024*hd} sc1", 'ost')
    if OCK:
        e("v_add3_u32 v88, v80, v81, v82", "v_add3_u32 v88, v88, v83, v84", "v_add3_u32 v88, v88, v85, v86", "v_add_u32 v88, v88, v87", f"v_sub_u32 v88, s{S_NON}, v88")
        g.vmem(f"buffer_store_dword v88, v{VL4}, {sr(S_WS,4)}, s{S_OST} offen offset:2048 sc1", 'ost')
    if oh == 2: g.setflag(S_B+1, 34, False)
    g.stamp(11)
    g.prio('t_o')
    if OCK:
        final_preload(g, 34)
        if not o.get('opoll_late'): g.poll_issue(VL4, S_B, '0xff', 104, False)
        for x in wol: g.play(x)
    else:
        for x in wo_issue('o'): g.play(x)
    e(f"s_mul_i32 s{S_KX}, s{S_KX}, {RO}", f"s_add_u32 s{S_KX}, s{S_KX}, {WS_A2O}", f"s_mov_b32 s{S_NN}, s{S_NON}", f"s_mov_b32 s{S_NN+1}, s{S_NON}")
    e("v_lshrrev_b32 v96, 5, v0", "v_bfe_u32 v97, v0, 2, 2", "v_lshl_add_u32 v96, v96, 3, v97", "v_lshlrev_b32 v96, 7, v96", "v_bfe_u32 v97, v0, 3, 1", "v_lshl_add_u32 v96, v97, 6, v96",
      "v_bfe_u32 v97, v0, 4, 1", "v_lshl_add_u32 v96, v97, 5, v96", "v_and_b32 v97, 3, v0", "v_lshl_add_u32 v96, v97, 3, v96",
      f"s_lshr_b32 s{S_T0}, s{S_W}, 1", f"s_lshl_b32 s{S_T0}, s{S_T0}, 15", f"s_add_u32 s{S_T0}, s{S_T0}, {TREG}", f"v_add_u32 v96, s{S_T0}, v96", "v_xor_b32 v97, 64, v96")
    def trreads():
        if not wo_in: g.waitvm('wo'); g.arrive(6, 100); g.rwait(6, 100)
        for ks in range(16):
            for ch in range(2):
                for i in range(2): e(f"ds_read_b64_tr_b16 {vr(X+8*ks+4*ch+2*i,2)}, v{96+ch} offset:{ks*2048+i*512}")
        g.arrive(7, 100)
    if not OCK:
        trd = False
        if wo_in: trreads(); trd = True
        g.waitvm('ost'); g.setflag(S_B+1, 34)
        for x in wol: g.play(x)
        final_preload(g, 34)
        if not trd and o.get('tr_first', 1): trreads(); trd = True
        e(f"s_lshl_b32 s{S_T0}, s{S_W}, 13", f"s_add_u32 s{S_T0}, s{S_T0}, {TREG}"); part_addr(g, 6, 36, S_T0)
        if o.get('o_delay'): e(f"s_sleep {o['o_delay']}")
        g.poll_issue(VL4, S_B, '0xff', 104)
        if not trd: trreads()
        final_setup(g)
        g.stamp(12); g.prio('t_a')
        g.poll_wait(VL4, S_B, '0xff', 104, True, 0x10000)
        g.stamp(13)
        for k4 in range(4):
            if k4: e(f"s_add_u32 s{S_KX}, s{S_KX}, 4096")
            for k in range(4): g.vmem(f"buffer_load_dwordx4 {vr(32+16*k4+4*k,4)}, v{V_L16}, {sr(S_WS,4)}, s{S_KX} offen offset:{1024*k} sc1", f'a{4*k4+k}')
        g.rwait(7, 100)
        for ks in range(16):
            g.waitvm(f'a{ks}')
            for ch in range(2): g.mfma(96+16*ch, X+8*ks+4*ch, 32+4*ks, None if ks == 0 else 96+16*ch)
    else:
        rs = RecStream(g, 4, 4, 32, 8, 30, VL4, lambda i, r: (S_KX, (2*i+r)*RECO), S_KX+1, S_KX+2)
        tr_first = o.get('tr_first', 1)
        keep = None
        if tr_first: trreads()
        if o.get('opoll_late'): g.poll_issue(VL4, S_B, '0xff', 104, False)
        final_setup(g)
        g.stamp(12); g.prio('t_a')
        g.poll_wait(VL4, S_B, '0xff', 104, False, 0x10000, o.get('ohint_lag', 8))
        nl = 4 if tr_first else o.get('a2o_pre', 2)
        for i in range(nl): rs.load(i)
        if not tr_first: trreads()
        for i in range(nl, 4): rs.load(i)
        g.rwait(7, 100)
        g.stamp(13)
        for i in range(4):
            rs.need(i, range(i+1, 4))
            for r in range(2):
                for a in range(2):
                    ks = 4*i+2*r+a
                    for ch in range(2): g.mfma(96+16*ch, X+8*ks+4*ch, rs.frag(i, r, a), None if ks == 0 else 96+16*ch)
            if i == 2:
                e(f"s_lshl_b32 s{S_T0}, s{S_W}, 13", f"s_add_u32 s{S_T0}, s{S_T0}, {TREG}"); part_addr(g, 6, 10, S_T0)
        retry += rs.cold
    g.stamp(14)
    for ch in range(2):
        for q in range(4): e(f"ds_write_b128 v{6+q}, {vr(96+16*ch+4*q,4)} offset:{ch*128}")
    e("s_branch L_final")
    e("L_role_cold:")
    for r in retry: g.play(r)

def roleS_start(g):
    e = g.e; o = g.o
    g.vm = []
    VXA, VBA = 12, 6
    e("L_roleS:", "s_setprio 2")
    if o.get('codepre', 1):
        e(f"s_getpc_b64 {sr(S_KX,2)}", "L_pc:",
          f"s_sub_u32 s{S_KX}, s{S_KX}, L_pc-{KNAME}_kernel", f"s_subb_u32 s{S_KX+1}, s{S_KX+1}, 0",
          f"s_lshr_b32 s{S_T0}, s2, 3", f"s_lshl_b32 s{S_T0}, s{S_T0}, 2", f"s_add_u32 s{S_T0}, s{S_T0}, s{S_W}", f"s_lshl_b32 s{S_T0}, s{S_T0}, 8",
          f"v_lshl_add_u32 v98, v0, 7, s{S_T0}", f"v_min_u32 v98, L_codeend-4-{KNAME}_kernel, v98", "s_mov_b64 exec, 3", f"global_load_dword v99, v98, {sr(S_KX,2)}", "s_mov_b64 exec, -1")
    e("v_and_b32 v96, 19, v0", "v_bfe_u32 v97, v0, 2, 1", "v_lshl_add_u32 v96, v97, 3, v96", "v_bfe_u32 v97, v0, 3, 1", "v_lshl_add_u32 v96, v97, 2, v96",
      f"s_lshl_b32 s{S_T0}, s{S_J}, 5", f"v_add_u32 v96, s{S_T0}, v96", "v_lshlrev_b32 v96, 1, v96")
    e(f"s_lshl_b32 s{S_T0}, s{S_R0}, 3", f"s_bitcmp1_b32 s{S_W}, 0", f"s_cselect_b32 s{S_T0}, 0, s{S_T0}", f"s_cselect_b32 s{S_T1}, {L_WPHI-L_GATE}, 0", f"s_add_u32 m0, s{S_T1}, {L_GATE}",
      f"v_add_u32 v97, s{S_T0}, v0", "v_and_b32 v97, 63, v97", "v_lshlrev_b32 v97, 4, v97", f"s_mov_b32 s{S_X+2}, 1024", f"s_mov_b32 s{S_X+3}, 0x20000", f"s_lshl_b32 s{S_T1}, s{S_J}, 10")
    frag_addr(g, VBA, 104, base_c=L_BSL)
    e(f"s_sub_u32 s{S_T0}, s{S_M}, {L_BSL}")
    for k in range(4): e(f"v_add_u32 v{VXA+k}, s{S_T0}, v{VBA+k}")
    e(f"v_mov_b32 v114, {WS_EPOCH}")
    e("s_waitcnt lgkmcnt(0)")
    e(f"s_add_u32 s{S_X}, s{P_WPHI}, s{S_T1}", f"s_addc_u32 s{S_X+1}, s{P_WPHI+1}, 0", f"s_bitcmp1_b32 s{S_W}, 0", f"s_cselect_b64 {sr(S_X,2)}, {sr(S_X,2)}, {sr(P_GATE,2)}")
    e(f"global_load_ushort v100, v96, {sr(P_LDT,2)}", f"global_load_ushort v101, v96, {sr(P_LRE,2)}", f"global_load_ushort v102, v96, {sr(P_LIM,2)}",
      f"global_load_dword v114, v114, {sr(P_WS,2)} sc1")
    e(f"s_cmp_ge_u32 s{S_W}, 2", "s_cbranch_scc1 L_s1", f"buffer_load_dwordx4 v97, {sr(S_X,4)}, 0 offen lds", "L_s1:")
    if o.get('spre'): scalar_prefetch(g, [(P_WO, 512, 0, 4, 128), (P_WQKV, 1536, 0, 4, 128)] if o['spre'] == 1 else [(P_WO, 512, 0, 4, 128)])
    e("s_branch L_role_Smain")

def roleS(g):
    e = g.e; o = g.o
    g.vm = []
    VXA, VBA = 12, 6
    LR, LI, L16R, L16I, LSR, LSI, W0R, W0I, W1R, W1I, CR, CI = range(16, 28)
    PSR, PSI, ER, EI = 28, 29, 30, 31
    VE0, VE1, VSEGR, VN8 = 32, 33, 34, 35
    VCO = 36
    SEL = 40
    UR, UI, RP = 48, 64, 80
    T = 96
    FB = 128
    e("L_role_Smain:", f"s_setprio {o.get('sprioA', 0)}")
    g.srd(S_WS, P_WS, None, WS_SIZE)
    common_late(g)
    make_sel(g, SEL, 104)
    e(f"s_lshl_b32 s{S_T0}, s{S_W}, 9", f"s_add_u32 s{S_T0}, s{S_T0}, {L_SEGZ}", f"v_lshl_add_u32 v{VSEGR}, v0, 3, s{S_T0}", "v_mov_b32 v104, 0", "v_mov_b32 v105, 0")
    e(f"ds_write_b64 v{VSEGR}, v[104:105]")
    g.arrive(0, 104)
    e(f"v_and_b32 v{VN8}, 31, v0", f"v_lshlrev_b32 v{VN8}, 3, v{VN8}")
    e("v_lshrrev_b32 v106, 5, v0", f"s_lshl_b32 s{S_T0}, s{S_W}, 2", f"v_add_u32 v107, s{S_T0}, v106", "v_add_u32 v108, 2, v107")
    e(f"s_lshl_b32 s{S_T0}, s{S_J}, 13", f"s_add_u32 s{S_T0}, s{S_T0}, {WS_E}", f"v_lshl_add_u32 v109, v{VN8}, 1, s{S_T0}", "v_mov_b32 v110, 0x7ffffff0")
    M0, M1 = S_KW, S_KW+2
    S_EST, S_HST = S_KW+4, S_KW+5
    for i, (cp, m, d) in enumerate(((107, M0, VE0), (108, M1, VE1))):
        e(f"v_cmp_gt_u32 {sr(m,2)}, s{S_C}, v{cp}", f"v_lshl_add_u32 v{d}, v{cp}, 9, v109", f"v_cndmask_b32 v{d}, v110, v{d}, {sr(m,2)}")
        e(f"v_sub_u32 v{cp}, s{S_C}, v{cp}", f"v_add_u32 v{cp}, -1, v{cp}", f"v_max_i32 v{cp}, 0, v{cp}", f"v_lshlrev_b32 v{cp}, 7, v{cp}", f"v_cvt_f32_u32 v{cp}, v{cp}")
    e(f"s_lshl_b32 s{S_T0}, s{S_W}, 1", f"v_add_u32 v106, s{S_T0}, v106", "v_lshlrev_b32 v106, 4, v106", "v_cvt_f32_u32 v106, v106")
    e(f"s_mov_b32 s{S_T2}, {LOG2E}")
    colblk(g, S_T0)
    e(f"s_lshl_b32 s{S_T0}, s{S_T0}, 16", f"s_lshl_b32 s{S_T1}, s{S_W}, 8", f"s_add_u32 s{S_T0}, s{S_T0}, s{S_T1}")
    g.srd(S_A, P_CRE, S_T0, 524288); g.srd(S_B, P_CIM, S_T0, 524288)
    e(f"s_lshl_b32 s{S_M0B}, s{S_W}, 14", f"s_add_u32 s{S_M0B}, s{S_M0B}, {SREG}")
    e(f"v_lshrrev_b32 v{VCO}, 3, v0", f"v_lshlrev_b32 v{VCO}, 10, v{VCO}", f"v_and_b32 v109, 7, v0", f"v_lshrrev_b32 v110, 4, v0", f"v_xor_b32 v109, v109, v110",
      f"v_lshl_add_u32 v{VCO}, v109, 4, v{VCO}", f"v_xor_b32 v{VCO+1}, 64, v{VCO}", f"v_add_u32 v{VCO+2}, {2*7168}, v{VCO}", f"v_add_u32 v{VCO+3}, {3*7168}, v{VCO+1}", f"v_add_u32 v{VCO+1}, 7168, v{VCO+1}")
    e(f"s_lshl_b32 s{S_T0}, s{S_J}, 4", f"s_add_u32 s{S_T0}, s{S_T0}, s{S_C}", f"s_lshl_b32 s{S_T0}, s{S_T0}, 9", f"s_add_u32 s{S_EST}, s{S_T0}, {WS_E}")
    e(f"s_lshl_b32 s{S_T0}, s{S_C}, 2", f"s_add_u32 s{S_T0}, s{S_T0}, s{S_W}", f"s_lshl_b32 s{S_T0}, s{S_T0}, 4", f"s_add_u32 s{S_T0}, s{S_T0}, s{S_J}",
      f"s_mul_i32 s{S_T0}, s{S_T0}, {2*REC}", f"s_add_u32 s{S_HST}, s{S_T0}, {WS_A2H}", "v_lshlrev_b32 v5, 2, v0")
    S_EF, S_EPL, M2 = S_WK, S_WK+1, S_WK+2
    e(f"s_lshl_b32 s{S_T0}, s{S_J}, 9", f"s_add_u32 s{S_T0}, s{S_T0}, {WS_FLAGS+FL_E}", f"s_lshl_b32 s{S_T1}, s{S_W}, 7", f"s_add_u32 s{S_EPL}, s{S_T0}, s{S_T1}",
      f"s_lshr_b32 s{S_T1}, s{S_C}, 2", f"s_lshl_b32 s{S_T1}, s{S_T1}, 7", f"s_add_u32 s{S_T0}, s{S_T0}, s{S_T1}", f"s_and_b32 s{S_T1}, s{S_C}, 3", f"s_lshl_b32 s{S_T1}, s{S_T1}, 2",
      f"s_add_u32 s{S_EF}, s{S_T0}, s{S_T1}", f"s_lshl_b32 s{S_T0}, s{S_W}, 2", f"s_sub_i32 s{S_T0}, s{S_C}, s{S_T0}", f"s_max_i32 s{S_T0}, s{S_T0}, 0", f"s_min_i32 s{S_T0}, s{S_T0}, 4",
      f"s_bfm_b64 {sr(M2,2)}, s{S_T0}, 0")
    if o.get('flagwarm', 1):
        e(f"s_cmp_lg_u32 s{S_W}, 3", "s_cbranch_scc1 L_s7", "s_cmp_ge_u32 s2, 192", "s_cbranch_scc1 L_s7", f"s_lshl_b32 s{S_T0}, s2, 8", f"s_add_u32 s{S_T0}, s{S_T0}, {WS_FLAGS}",
          "v_lshlrev_b32 v109, 7, v0", "v_mov_b32 v110, 0", "s_mov_b64 exec, 3", f"buffer_atomic_add v110, v109, {sr(S_WS,4)}, s{S_T0} offen sc1", "s_mov_b64 exec, -1", "L_s7:")
    def cpow(dr, di, n):
        if n is None: e("v_exp_f32 v111, v103", "v_rndne_f32 v113, v104", "v_sub_f32 v112, v104, v113")
        else: e(f"v_mul_f32 v111, {n}, v103", f"v_mul_f32 v112, {n}, v104", "v_exp_f32 v111, v111", "v_rndne_f32 v113, v112", "v_sub_f32 v112, v112, v113")
        e(f"v_cos_f32 v{dr}, v112", f"v_sin_f32 v{di}, v112", f"v_mul_f32 v{dr}, v111, v{dr}", f"v_mul_f32 v{di}, v111, v{di}")
    def params():
        e("v_lshlrev_b32 v100, 16, v100", "v_lshlrev_b32 v101, 16, v101", "v_lshlrev_b32 v102, 16, v102")
        e(f"v_mul_f32 v100, s{S_T2}, v100", "v_exp_f32 v100, v100", "v_cvt_pk_bf16_f32 v100, v100, v100", "v_lshlrev_b32 v100, 16, v100")
        e("v_mul_f32 v103, v100, v101", f"v_mul_f32 v103, s{S_T2}, v103", "v_mul_f32 v104, v100, v102", "v_mul_f32 v104, 0.15915494, v104")
        cpow(LR, LI, None); cpow(L16R, L16I, "0x41800000"); cpow(LSR, LSI, "v106"); cpow(W0R, W0I, "v107"); cpow(W1R, W1I, "v108")
        e(f"v_add_f32 v111, -1.0, v{LR}", "v_mul_f32 v112, v101, v101", "v_fmac_f32 v112, v102, v102", "v_rcp_f32 v112, v112",
          f"v_mul_f32 v{CR}, v111, v101", f"v_fmac_f32 v{CR}, v{LI}, v102", f"v_mul_f32 v{CI}, v{LI}, v101", f"v_fma_f32 v{CI}, -v111, v102, v{CI}",
          "v_add_f32 v112, v112, v112", f"v_mul_f32 v{CR}, v{CR}, v112", f"v_mul_f32 v{CI}, v{CI}, v112")
        e(f"v_mov_b32 v{T+18}, s{S_NON}", f"v_mov_b32 v{T+19}, s{S_NON+1}", f"v_lshlrev_b32 v{T+20}, 1, v{VN8}")
    par = g.capture(params)
    def touch_c():
        l = g.lab('tc')
        e(f"s_cmp_eq_u32 s{S_W}, 3", f"s_cbranch_scc1 {l}", f"s_lshl_b32 s{S_T0}, s2, 11", f"v_lshl_add_u32 v10, v0, 7, s{S_T0}",
          f"s_cmp_eq_u32 s{S_W}, 1", f"s_cselect_b64 {sr(S_KX,2)}, {sr(P_CIM,2)}, {sr(P_CRE,2)}", f"s_cmp_eq_u32 s{S_W}, 2", f"s_cselect_b64 {sr(S_KX,2)}, {sr(P_WO,2)}, {sr(S_KX,2)}",
          "s_mov_b64 exec, 0xffff", f"global_load_dword v10, v10, {sr(S_KX,2)} ; touch", "s_mov_b64 exec, -1", l+":")
    def touch_w(which):
        l = g.lab('tw')
        e(f"s_cmp_lg_u32 s{S_W}, 3", f"s_cbranch_scc1 {l}", f"s_mul_i32 s{S_T0}, s2, 6144", "v_bfe_u32 v11, v0, 3, 1", "v_mul_u32_u24 v11, 3072, v11", "v_and_b32 v117, 23, v0", "v_lshl_add_u32 v11, v117, 7, v11", f"v_add_u32 v11, s{S_T0}, v11",
          f"s_mov_b32 exec_lo, {hex({1:0xffff0000,2:0xffff,3:0xffffffff}[which])}", "s_mov_b32 exec_hi, 0", f"global_load_dword v11, v11, {sr(P_WQKV,2)} ; touch", "s_mov_b64 exec, -1", l+":")
    def touches(s):
        if o.get('vpre', 3) == s: touch_c()
        if o.get('wpre', (None,))[0] == s: touch_w(o['wpre'][1])
    touches(-1)
    g.stamp(0)
    def mm(s):
        b = FB+48*(s&1); r = []
        for k in range(4):
            first = (s == 0 and k == 0)
            r.append(g.capture(lambda: g.mfma(UR, b+12*k, b+12*k+4, None if first else UR)))
            r.append(g.capture(lambda: g.mfma(UI, b+12*k, b+12*k+8, None if first else UI)))
        return r
    for s in range(8):
        e("s_waitcnt lgkmcnt(0)", "s_barrier")
        if s == 0: g.stamp(1)
        b = FB+48*(s&1)
        rd = []
        for k in range(4):
            rd += [f"ds_read_b128 {vr(b+12*k,4)}, v{VXA+k} offset:{xsl(s)}",
                   f"ds_read_b128 {vr(b+12*k+4,4)}, v{VBA+k} offset:{(s%3)*8192}",
                   f"ds_read_b128 {vr(b+12*k+8,4)}, v{VBA+k} offset:{(s%3)*8192+4096}"]
        if s == 0:
            e(*rd); g.waitvm0(); epoch_use(g, 114)
        else:
            m = mm(s-1)
            for k in range(8):
                g.play(m[k])
                if k < 4: e(*rd[3*k:3*k+3])
                else:
                    g.play(par[:4]); par = par[4:]
        touches(s)
    assert not par
    g.prio('s_b7')
    m = mm(7)
    for k in range(8):
        if k % 2 == 0: e(f"s_waitcnt lgkmcnt({9-3*(k//2)})")
        g.play(m[k])
    e(f"s_sub_u32 s{S_T0}, s{S_M0B}, {L_BSL}")
    for k in range(4): e(f"v_add_u32 v{VBA+k}, s{S_T0}, v{VBA+k}")
    if o.get('ehint_early', 1):
        e(f"s_cmp_lg_u32 s{S_W}, 3", "s_cbranch_scc1 L_s8", "s_mov_b64 exec, 1", f"buffer_store_dword v{T+18}, off, {sr(S_WS,4)}, s{S_EF} sc1", "s_mov_b64 exec, -1", "L_s8:")
    g.stamp(2)
    def c_groups(pc):
        part, kh2 = pc & 1, pc >> 1; r = []
        for q in range(8):
            def f(q=q):
                if q % 4 == 0: e(f"s_add_u32 m0, s{S_M0B}, {(pc&1)*8192 + q*1024}", f"s_mov_b32 s{S_DS}, {kh2*128 + q*8192}")
                g.vmem(f"buffer_load_dwordx4 v{VCO+q%4}, {sr(S_A if part == 0 else S_B,4)}, s{S_DS} offen offset:{1024*(q%4)} lds", f'c{pc}')
            r.append(g.capture(f))
        return r
    def dma_c(pc):
        for x in c_groups(pc): g.play(x)
    def creg(jj, part, a, ch): return FB + 4*(((jj*2+part)*2+a)*2+ch)
    def read_c(pc):
        part, kh2 = pc & 1, pc >> 1
        for ks in range(4):
            for ch in range(2): e(f"ds_read_b128 {vr(creg(2*kh2+(ks>>1), part, ks&1, ch),4)}, v{VBA+ks} offset:{(pc&1)*8192+ch*4096}")
    g.prio('s_p1')
    pr, pi = UR, UI
    for t in range(1, 16):
        nr, ni = (ER, EI) if t & 1 else (T, T+1)
        e(f"v_fma_f32 v{nr}, v{LR}, v{pr}, v{UR+t}", f"v_fma_f32 v{ni}, v{LR}, v{pi}, v{UI+t}", f"v_fma_f32 v{nr}, -v{LI}, v{pi}, v{nr}", f"v_fma_f32 v{ni}, v{LI}, v{pr}, v{ni}")
        pr, pi = nr, ni
    e(f"ds_write_b64 v{VSEGR}, {vr(ER,2)} offset:{L_SEG-L_SEGZ}", "s_waitcnt lgkmcnt(0)", "s_barrier")
    if o.get('onlyT'):
        final_preload(g, 20); final_setup(g); e("s_branch L_final")
    for k in range(7): e(f"ds_read_b64 {vr(T+2*k,2)}, v{VSEGR} offset:{L_SEG-L_SEGZ-(7-k)*256}")
    def cmac(dr, di, ar, ai, br, bi, cr, ci):
        e(f"v_fma_f32 v{dr}, v{ar}, v{br}, v{cr}", f"v_fma_f32 v{di}, v{ar}, v{bi}, v{ci}", f"v_fma_f32 v{dr}, -v{ai}, v{bi}, v{dr}", f"v_fma_f32 v{di}, v{ai}, v{br}, v{di}")
    for k in range(1, 7):
        e(f"s_waitcnt lgkmcnt({6-k})")
        d = (PSR, PSI) if k == 6 else (T+2*k, T+2*k+1)
        cmac(d[0], d[1], L16R, L16I, T+2*k-2, T+2*k-1, T+2*k, T+2*k+1)
    cmac(T+16, T+17, L16R, L16I, PSR, PSI, ER, EI)
    e(f"s_cmp_lg_u32 s{S_W}, 3", "s_cbranch_scc1 L_s4", "s_mov_b32 exec_lo, 0",
      f"buffer_store_dwordx4 {vr(T+16,4)}, v{T+20}, {sr(S_WS,4)}, s{S_EST} offen sc1")
    if not o.get('ehint_early', 1): e("s_mov_b64 exec, 1", f"buffer_store_dword v{T+18}, off, {sr(S_WS,4)}, s{S_EF} sc1")
    e("s_mov_b64 exec, -1", "L_s4:")
    if o.get('ehint_early', 1): g.poll_issue(5, S_EPL, '15', T+8, False)
    g.stamp(3)
    g.prio('s_es')
    def cmult():
        for t in range(16):
            e(f"v_mul_f32 v{RP+t}, v{CR}, v{UR+t}", f"v_fma_f32 v{RP+t}, -v{CI}, v{UI+t}, v{RP+t}", f"v_mul_f32 v{UI+t}, -v{CR}, v{UI+t}", f"v_fma_f32 v{UI+t}, -v{CI}, v{UR+t}, v{UI+t}")
    cq = c_groups(0) + c_groups(1) + c_groups(2) + c_groups(3)
    cdone = [0]
    def c_issue(n):
        for _ in range(n):
            k = 32-len(cq)
            if k in (16, 24):
                while cdone[0] <= (k-16)//8: c_read()
                e("s_waitcnt lgkmcnt(0)")
            g.play(cq.pop(0))
    def c_read():
        pc = cdone[0]; g.waitvm(f'c{pc}'); e("s_waitcnt lgkmcnt(7)"); read_c(pc); cdone[0] += 1
    n_a, n_b, n_c, n_d = o.get('c_sched', (16, 8, 0, 8))
    g.weave(g.capture(cmult), cq[:n_a]); del cq[:n_a]
    if o.get('e_delay'): e(f"s_sleep {o['e_delay']}")
    l = g.lab('ep'); d = g.lab('ed')
    eld = [f"buffer_load_dwordx4 {vr(T,4)}, v{VE0}, {sr(S_WS,4)}, 0 offen sc1", f"buffer_load_dwordx4 {vr(T+4,4)}, v{VE1}, {sr(S_WS,4)}, 0 offen sc1"]
    echk = [f"v_cmp_ne_u64 vcc, {sr(S_NON,2)}, {vr(T+2,2)}", f"v_cmp_ne_u64 {sr(S_M,2)}, {sr(S_NON,2)}, {vr(T+6,2)}",
            f"s_and_b64 vcc, vcc, {sr(M0,2)}", f"s_and_b64 {sr(S_M,2)}, {sr(S_M,2)}, {sr(M1,2)}", f"s_or_b64 vcc, vcc, {sr(S_M,2)}"]
    if o.get('ehint_early', 1): g.poll_wait(5, S_EPL, sr(M2,2), T+8, False, 0x100, o.get('ehint_lag', 8))
    elif o.get('ehint', 1):
        le = g.lab('en')
        e(f"s_cmp_eq_u64 {sr(M2,2)}, 0", f"s_cbranch_scc1 {le}")
        keep = list(g.vm)
        g.poll_issue(5, S_EPL, sr(M2,2), T+8, False); g.poll_wait(5, S_EPL, sr(M2,2), T+8, False, 0x100)
        g.vm = keep
        e(le+":")
    for x in eld: g.vmem(x, 'eld')
    g.prio('s_cb'); c_issue(n_b); g.prio('s_e')
    e(f"s_lshl_b32 s{S_T0}, s{S_C}, 1", f"s_lshr_b32 s{S_T1}, s{S_W}, 1", f"s_add_u32 s{S_T0}, s{S_T0}, s{S_T1}", f"s_lshl_b32 s{S_T0}, s{S_T0}, 2", f"s_lshr_b32 s{S_T1}, s{S_J}, 2",
      f"s_add_u32 s{S_T0}, s{S_T0}, s{S_T1}", f"s_lshl_b32 s{S_T0}, s{S_T0}, 7", f"s_and_b32 s{S_T1}, s{S_J}, 3", f"s_lshl_b32 s{S_T1}, s{S_T1}, 4", f"s_add_u32 s{S_T0}, s{S_T0}, s{S_T1}",
      f"s_and_b32 s{S_T1}, s{S_W}, 1", f"s_lshl_b32 s{S_T1}, s{S_T1}, 3", f"s_add_u32 s{S_T0}, s{S_T0}, s{S_T1}", f"s_add_u32 s{S_EF}, s{S_T0}, {WS_FLAGS+FL_H}")
    e(f"s_mov_b32 s{S_T0}, {o.get('timeout', 200000)}")
    g.waitvm('eld')
    e(*echk); e(f"s_cbranch_scc0 {d}", l+":"); g.count(1); e(*eld)
    e(f"s_sub_u32 s{S_T0}, s{S_T0}, 1", "s_waitcnt vmcnt(0)", f"s_cbranch_scc1 {d}"); e(*echk)
    e(f"s_cbranch_scc0 {d}", f"s_sleep {o.get('psleep',2)}", f"s_branch {l}", d+":")
    g.stamp(4)
    e(f"v_mul_f32 v{T+8}, v{W0R}, v{T}", f"v_mul_f32 v{T+9}, v{W0R}, v{T+1}", f"v_fma_f32 v{T+8}, -v{W0I}, v{T+1}, v{T+8}", f"v_fma_f32 v{T+9}, v{W0I}, v{T}, v{T+9}")
    cmac(T+8, T+9, W1R, W1I, T+4, T+5, T+8, T+9)
    e(f"ds_write_b64 v{VSEGR}, {vr(T+8,2)} offset:{L_HP-L_SEGZ}", f"v_add_u32 v{VN8}, {L_HP}, v{VN8}")
    g.arrive(1, T); g.rwait(1, T)
    c_issue(n_c)
    def pass2():
        for k in range(8): e(f"ds_read_b64 {vr(T+2*k,2)}, v{VN8} offset:{k*256}")
        for k in range(1, 8):
            e(f"s_waitcnt lgkmcnt({7-k})", f"v_add_f32 v{T}, v{T}, v{T+2*k}", f"v_add_f32 v{T+1}, v{T+1}, v{T+2*k+1}")
        cmac(PSR, PSI, LSR, LSI, T, T+1, PSR, PSI)
        e(f"v_mul_f32 v{ER}, v{CR}, v{PSR}", f"v_fma_f32 v{ER}, -v{CI}, v{PSI}, v{ER}", f"v_mul_f32 v{EI}, -v{CR}, v{PSI}", f"v_fma_f32 v{EI}, -v{CI}, v{PSR}, v{EI}")
        pr, pj = ER, EI
        for t in range(16):
            e(f"v_fmac_f32 v{RP+t}, v{LR}, v{pr}", f"v_fmac_f32 v{UI+t}, v{LR}, v{pj}", f"v_fmac_f32 v{RP+t}, v{LI}, v{pj}", f"v_fma_f32 v{UI+t}, -v{LI}, v{pr}, v{UI+t}")
            pr, pj = RP+t, UI+t
            if t == 8:
                g.cvt16(T, RP, 8); g.cvt16(T+8, UI, 8)
                g.mfma(48, T, SEL); g.mfma(112, T+8, SEL)
        g.cvt16(T+4, RP+8, 8); g.mfma(48, T+4, SEL+4, 48)
        g.cvt16(T+12, UI+8, 8); g.mfma(112, T+12, SEL+4, 112)
    g.prio('s_p2')
    pass2()
    HCK = o.get('hck', 0)
    g.prio('s_st')
    if HCK:
        VL4 = 5
        g.cvt16(64, 48); rec_store(g, 64, 80, VL4, S_HST, 'hst')
        e(f"s_add_u32 s{S_HST}, s{S_HST}, {REC}")
        g.cvt16(72, 112); rec_store(g, 72, 81, VL4, S_HST, 'hst')
        g.setflag(S_EF, 16)
    else:
        for f in range(4):
            src = (48, 56, 112, 120)[f]
            g.cvt16(64+4*f, src, 8)
            g.vmem(f"buffer_store_dwordx4 {vr(64+4*f,4)}, v{V_L16}, {sr(S_WS,4)}, s{S_HST} offen offset:{1024*(f&1)+REC*(f>>1)} sc1", 'hst')
    g.stamp(5)
    g.prio('s_h')
    c_issue(min(n_d, len(cq)))
    rowhalf(g, S_T0)
    e(f"s_lshl_b32 s{S_T1}, s{S_C}, 1", f"s_add_u32 s{S_T0}, s{S_T0}, s{S_T1}", f"s_lshl_b32 s{S_EPL}, s{S_T0}, 2", f"s_add_u32 s{S_EPL}, s{S_EPL}, s{S_W}",
      f"s_lshl_b32 s{S_EPL}, s{S_EPL}, 7", f"s_add_u32 s{S_EPL}, s{S_EPL}, {WS_FLAGS+FL_H}",
      f"s_lshl_b32 s{S_KX}, s{S_T0}, 3", f"s_add_u32 s{S_KX}, s{S_KX}, s{S_W}", f"s_mul_i32 s{S_KX}, s{S_KX}, {8*REC}", f"s_add_u32 s{S_KX}, s{S_KX}, {WS_A2H}", "v_lshlrev_b32 v18, 3, v0")
    ACC = 64
    if not HCK:
        for k in range(1, 8): e(f"s_add_u32 s{S_KX+k}, s{S_KX}, {(k>>1)*2*REC + (k&1)*32*REC}")
        g.prio('s_f')
        g.waitvm('hst'); g.setflag(S_EF, 16)
    else: e(f"s_mov_b32 s{S_NN}, s{S_NON}", f"s_mov_b32 s{S_NN+1}, s{S_NON}", "v_mov_b32 v1, v5")
    g.stamp(6)
    g.prio('s_c3')
    c_issue(len(cq))
    if not HCK: final_preload(g, 20)
    while cdone[0] < 3: c_read()
    if o.get('h_delay'): e(f"s_sleep {o['h_delay']}")
    g.stamp(7)
    g.prio('s_a')
    g.poll_issue(18, S_EPL, '0xff', 16)
    c_read()
    g.poll_wait(18, S_EPL, '0xff', 16, True, 0x10000, o.get('hhint_lag', 0))
    g.stamp(8)
    g.prio('s_g')
    g.cold = []
    if HCK:
        rs = RecStream(g, 8, 3, 16, 10, 6, 1, lambda i, r: (S_KX, (i + 32*r)*REC), S_KX+1, S_KX+2)
        dp = o.get('hck_depth', 2)
        for i in range(dp): rs.load(i)
        e("s_waitcnt lgkmcnt(0)")
        for i in range(8):
            rs.need(i, range(i+1, min(8, i+dp)))
            if dp == 2 and i+2 < 8: rs.load(i+2)
            for a in range(2):
                for rh in range(2):
                    for ch in range(2):
                        acc = ACC+16*(2*rh+ch)
                        g.mfma(acc, creg(i >> 1, i & 1, a, ch), rs.frag(i, rh, a), None if (i == 0 and a == 0) else acc)
            if dp == 3 and i+3 < 8: rs.load(i+3)
        final_preload(g, 20)
        part_addr(g, 6, 22, S_M0B)
        g.cold = rs.cold
    else:
        AB, NB = 16, 6
        steps = [(jj, f) for jj in range(4) for f in range(4)]
        def lda(i):
            jj, f = steps[i]
            for rh in range(2):
                g.vmem(f"buffer_load_dwordx4 {vr(AB+8*(i%NB)+4*rh,4)}, v{V_L16}, {sr(S_WS,4)}, s{S_KX+2*jj+rh} offen offset:{1024*(f&1)+REC*(f>>1)} sc1", f'a{i}')
        nb0 = o.get('a2h_depth', 4)
        for i in range(nb0): lda(i)
        e("s_waitcnt lgkmcnt(0)")
        part_addr(g, 6, 64, S_M0B)
        for i in range(16):
            jj, f = steps[i]
            g.waitvm(f'a{i}')
            if i+nb0 < 16 and nb0 < NB: lda(i+nb0)
            for rh in range(2):
                for ch in range(2):
                    acc = ACC+16*(2*rh+ch)
                    g.mfma(acc, creg(jj, f >> 1, f & 1, ch), AB+8*(i%NB)+4*rh, None if i == 0 else acc)
            if i+nb0 < 16 and nb0 == NB: lda(i+nb0)
    g.stamp(9)
    for rh in range(2):
        for ch in range(2):
            for q in range(4): e(f"ds_write_b128 v{6+q}, {vr(ACC+16*(2*rh+ch)+4*q,4)} offset:{rh*8192+ch*128}")
    final_setup(g)

def final_setup(g):
    e = g.e
    g.srd(S_OUT, P_OUT, None, 4194304)
    e("v_lshrrev_b32 v16, 4, v0", "v_and_b32 v17, 15, v0", "v_xor_b32 v17, v17, v16", "v_lshlrev_b32 v17, 4, v17", "v_lshl_add_u32 v17, v16, 8, v17",
      f"s_lshl_b32 s{S_T0}, s{S_WV}, 11", f"v_add_u32 v17, s{S_T0}, v17", "v_xor_b32 v18, 64, v17", f"v_add_u32 v19, {TREG}, v17", f"v_add_u32 v20, {TREG}, v18")
    e(f"s_lshl_b32 s{S_T0}, s{S_WV}, 5", f"s_add_u32 s{S_T0}, s{S_T0}, {L_G}",
      f"v_lshl_add_u32 v16, v16, 2, s{S_T0}", "v_lshlrev_b32 v5, 1, v5")
    g.waitvm('fin')
    for q in range(2):
        e(f"v_lshlrev_b32 v30, 16, v{V_FX+4+q}", f"v_and_b32 v31, 0xffff0000, v{V_FX+4+q}")
        for i in range(2):
            d = 22+4*i+2*q
            e(f"v_lshlrev_b32 v{d}, 16, v{V_FX+2*i+q}", f"v_and_b32 v{d+1}, 0xffff0000, v{V_FX+2*i+q}", f"v_mul_f32 v{d}, v{d}, v30", f"v_mul_f32 v{d+1}, v{d+1}, v31")

def final(g):
    e = g.e; o = g.o
    e("L_final:")
    e("s_waitcnt lgkmcnt(0)", "s_barrier")
    g.stamp(15)
    e("ds_read_b32 v30, v16", "ds_read_b32 v36, v16 offset:16")
    for i in range(2):
        for k in range(4): e(f"ds_read_b128 {vr(40+24*i+4*k,4)}, v{17+i} offset:{SREG+k*16384+i*1024}")
        for k in range(2): e(f"ds_read_b128 {vr(56+24*i+4*k,4)}, v{19+i} offset:{k*16384+i*1024}")
    e(f"s_mov_b32 s{S_T0}, 0x8000")
    for i in range(2):
        b = 40+24*i; gg = 30 if i == 0 else 36
        e(f"s_waitcnt lgkmcnt({6-6*i})")
        for h in (0, 2):
            e(f"v_pk_add_f32 {vr(b+h,2)}, {vr(22+4*i+h,2)}, {vr(b+h,2)}",
              f"v_pk_add_f32 {vr(b+4+h,2)}, {vr(b+4+h,2)}, {vr(b+8+h,2)}",
              f"v_pk_add_f32 {vr(b+16+h,2)}, {vr(b+16+h,2)}, {vr(b+20+h,2)}",
              f"v_pk_add_f32 {vr(b+h,2)}, {vr(b+h,2)}, {vr(b+12+h,2)}",
              f"v_pk_add_f32 {vr(b+4+h,2)}, {vr(b+4+h,2)}, {vr(b+16+h,2)} neg_lo:[0,1] neg_hi:[0,1]",
              f"v_pk_add_f32 {vr(b+h,2)}, {vr(b+h,2)}, {vr(b+4+h,2)}",
              f"v_pk_fma_f32 {vr(b+h,2)}, {vr(b+h,2)}, {vr(gg,2)}, {vr(b+16+h,2)} op_sel_hi:[1,0,1]")
        e(f"buffer_store_dwordx4 {vr(b,4)}, v5, {sr(S_OUT,4)}, {'0' if i == 0 else 's%d' % S_T0} offen {o.get('outmod','sc1')}")
    e(f"s_or_b32 s{S_T0}, s{S_C}, s{S_J}", f"s_or_b32 s{S_T0}, s{S_T0}, s{S_WV}", "s_cbranch_scc1 L_f1",
      f"v_mov_b32 v16, s{S_NON}", "s_mov_b64 exec, 1", f"buffer_store_dword v16, off, {sr(S_WS,4)}, 0 offset:{WS_EPOCH} sc1", "s_mov_b64 exec, -1", "L_f1:")
    if o.get('stamps'):
        e("s_waitcnt vmcnt(0)")
        g.stamp(16)
        e(f"v_writelane_b32 v{V_STAMP}, s{S_FLOFF}, 30")
        e(f"s_lshl_b32 s{S_T0}, s{S_C}, 4", f"s_add_u32 s{S_T0}, s{S_T0}, s{S_J}", f"s_lshl_b32 s{S_T0}, s{S_T0}, 3", f"s_add_u32 s{S_T0}, s{S_T0}, s{S_WV}",
          f"s_lshl_b32 s{S_T0}, s{S_T0}, 8", f"s_add_u32 s{S_T0}, s{S_T0}, {WS_STAMP}", "v_lshlrev_b32 v16, 2, v0",
          f"buffer_store_dword v{V_STAMP}, v16, {sr(S_WS,4)}, s{S_T0} offen")
    if o.get('amp') is not None:
        e("s_waitcnt vmcnt(0)")
        g.stamp(16)
        e(f"s_cmp_lg_u32 s2, {o.get('ampwg',0)}", "s_cbranch_scc1 L_end", f"s_cmp_lg_u32 s{S_WV}, {o.get('ampwave',0)}", "s_cbranch_scc1 L_end",
          "s_sub_u32 s66, s66, s100", "s_mul_i32 s66, s66, 10", "s_memrealtime s[100:101]", "s_waitcnt lgkmcnt(0)", "s_add_u32 s66, s66, s100",
          "L_amp:", "s_memrealtime s[100:101]", "s_waitcnt lgkmcnt(0)", "s_sub_u32 s67, s100, s66", "s_cmp_lt_i32 s67, 0", "s_cbranch_scc1 L_amp")
    e("L_end:", "s_endpgm")
    e("L_role_coldS:")
    for r in g.cold: g.play(r)
    e("s_endpgm", "L_codeend:")

DEFAULTS = {'wq_start':0,'wq_end':18,'rot':(2,1,1,0),'vpre':7,'flagwarm':0,'wo_sched':{'q':8,'o':8},'ock':0,'sig8':1,'c_sched':(0,8,8,8),'timeout':20000,
            'prio':{'s_b7':2,'s_es':0,'t_b8':2,'t_q':0,'s_p2':1,'s_h':0,'t_g':2,'s_g':1,'t_a':0}}
def build(opt):
    opt = {**DEFAULTS, **opt}
    g = G(opt)
    if opt.get('stamps') or opt.get('amp') is not None:
        g.e("s_memrealtime s[100:101]")
    prologue(g)
    if opt.get('stamps'):
        pass
    roleS_start(g); roleT(g); roleS(g); final(g)
    lines = g.L
    if opt.get('stamps') == 1:
        out = []
        for x in lines:
            out.append(x)
            if x in ("L_roleT:", "L_roleS:"):
                out += ["s_waitcnt lgkmcnt(0)", f"v_writelane_b32 v{V_STAMP}, s100, 31"]
        lines = out
    ins, added = fix(lines)
    errs = check_waits(ins)
    for x in errs[:5]: print("WAITCHECK", x, file=sys.stderr)
    ref = open('cdna_kernels/' + KNAME + '.s.ref').read().splitlines() if opt.get('refhdr', True) else []
    hdr = [x for x in ref if x.startswith(';') and '@launch' not in x and 'Override' not in x and 'grid=ceil' not in x]
    txt = "\n".join(hdr) + f"""
; @launch grid=(256,1,1) block=(512,1,1) lds={LDS_BYTES}
.amdgcn_target "amdgcn-amd-amdhsa--gfx950"
.text
.globl {KNAME}_kernel
.p2align 12
.p2align 8
.type {KNAME}_kernel,@function
{KNAME}_kernel:
""" + "\n".join((i.text if i.label else "    " + i.text) for i in ins) + f"""
.section .rodata,"a"
.p2align 6
.amdhsa_kernel {KNAME}_kernel
  .amdhsa_next_free_vgpr 256
  .amdhsa_next_free_sgpr 102
  .amdhsa_accum_offset 256
  .amdhsa_group_segment_fixed_size 0
  .amdhsa_kernarg_size 136
  .amdhsa_user_sgpr_count 2
  .amdhsa_user_sgpr_kernarg_segment_ptr 1
  .amdhsa_system_sgpr_workgroup_id_x 1
.end_amdhsa_kernel
"""
    return txt, len([i for i in ins if i.real]), added, errs

if __name__ == '__main__':
    out = sys.argv[1] if len(sys.argv) > 1 else 'k.s'
    opt = eval(sys.argv[2]) if len(sys.argv) > 2 else {}
    txt, n, added, errs = build(opt)
    open(out, 'w').write(txt)
    print(f"{out}: {n} instructions, {added} nops added, {len(errs)} wait errors")
```

```python
import sys
from asmfix import fix, check_waits
KNAME = 'gated_mix__ssm_conv_s5__linear_kernel_hedgehog__prompt'

WS_EPOCH = 0
WS_FLAGS = 0x1000
FL_E, FL_K, FL_H, FL_O = 0, 0x2000, 0x4000, 0x8000
WS_E     = 0x10000
WS_H2    = 0x40000
WS_KV    = 0x80000
REC = 2304
WS_A2H   = 0x200000
RECO = 2304
WS_A2O   = 0x700000
WS_STAMP = 0xA00000
WS_SIZE  = 0x1000000
SREG = 0x0
XREG = 0x8000
TREG = 0x10000
def xsl(s): return ((s+2) & 3)*16384
SCR  = 0x20000
L_TFL  = SCR + 0x0
L_SFL  = SCR + 0x10
L_G    = SCR + 0x200
L_GATE = SCR + 0x400
L_WPHI = SCR + 0x800
L_SEGZ = SCR + 0xC00
L_SEG  = SCR + 0x1400
L_ZD   = SCR + 0x1C00
L_BSL  = SCR + 0x2000
L_KVR  = SCR + 0x2000
L_ZR   = SCR + 0x6000
L_KVD  = SCR + 0x6400
L_HP   = SCR + 0x6C00
LDS_BYTES = 0x28000
LOG2E = 0x3fb8aa3b

def vr(a, n=1): return f"v{a}" if n == 1 else f"v[{a}:{a+n-1}]"
def sr(a, n=1): return f"s{a}" if n == 1 else f"s[{a}:{a+n-1}]"

class G:
    def __init__(self, opt):
        self.o = opt; self.L = []; self.vm = []; self.nlab = 0; self.cap = None
    def e(self, *xs):
        for x in xs: (self.L if self.cap is None else self.cap).append(x)
    def capture(self, fn):
        old = self.cap; self.cap = []; fn(); r = self.cap; self.cap = old; return r
    def play(self, items):
        for it in items:
            if isinstance(it, str): self.e(it)
            elif it[0] == 'vm': self.vmem(it[1], it[2])
            elif it[0] == 'wait': self.waitvm(*it[1])
            elif it[0] == 'grp': self.play(it[1])
    def weave(self, main, groups, start=0, end=None):
        end = len(main) if end is None else end
        n = len(groups); out = []; k = 0
        for i, it in enumerate(main):
            while k < n and i >= start + (end-start)*k//n and i >= start:
                out += groups[k]; k += 1
            out.append(it)
        while k < n: out += groups[k]; k += 1
        self.play(out)
    def lab(self, p):
        self.nlab += 1; return f"L_{p}{self.nlab}"
    def vmem(self, text, tag=None):
        if self.cap is not None: self.cap.append(('vm', text, tag)); return
        if tag and any(tag.startswith(x) for x in self.o.get('skip', ())): return
        self.e(text); self.vm.append(tag)
    def waitvm(self, *tags):
        if self.cap is not None: self.cap.append(('wait', tags)); return
        last = max((i for i, t in enumerate(self.vm) if t in tags), default=-1)
        if last < 0: return
        n = len(self.vm) - 1 - last
        assert n <= 63
        self.e(f"s_waitcnt vmcnt({n})")
        self.vm = self.vm[last+1:]
    def waitvm0(self):
        self.e("s_waitcnt vmcnt(0)"); self.vm = []
    def srd(self, d, base, off=None, size=0):
        if off is None:
            self.e(f"s_mov_b32 s{d}, s{base}", f"s_mov_b32 s{d+1}, s{base+1}", f"s_mov_b32 s{d+2}, {size}")
        else:
            self.e(f"s_add_u32 s{d}, s{base}, s{off}", f"s_addc_u32 s{d+1}, s{base+1}, 0", f"s_sub_u32 s{d+2}, {size}, s{off}")
        self.e(f"s_mov_b32 s{d+3}, 0x20000")
    def count(self, w):
        if self.o.get('stamps'): self.e(f"s_add_u32 s{S_FLOFF}, s{S_FLOFF}, {w}")
    def prio(self, key):
        p = self.o.get('prio', {}).get(key)
        if p is not None: self.e(f"s_setprio {p}")
    def stamp(self, i):
        if self.o.get('amp') == i: self.e("s_waitcnt lgkmcnt(0)", "s_memrealtime s[66:67]", "s_waitcnt lgkmcnt(0)")
        if not self.o.get('stamps'): return
        if self.o['stamps'] == 2:
            if i == self.o.get('probe'): self.e("s_waitcnt lgkmcnt(0)", "s_memrealtime s[66:67]", "s_waitcnt lgkmcnt(0)")
            if i != 16: return
            self.e(f"v_writelane_b32 v{V_STAMP}, s100, 31", f"v_writelane_b32 v{V_STAMP}, s66, 17")
        if i >= 20: return
        self.e("s_waitcnt lgkmcnt(0)", "s_memrealtime s[100:101]", "s_memtime s[66:67]", "s_waitcnt lgkmcnt(0)", f"v_writelane_b32 v{V_STAMP}, s100, {i}", f"v_writelane_b32 v{V_STAMP}, s66, {i+32}")
    def mfma(self, d, a, b, c=None):
        cc = "0" if c is None else vr(c, 16)
        self.e(f"v_mfma_f32_32x32x16_bf16 {vr(d,16)}, {vr(a,4)}, {vr(b,4)}, {cc}")
    def cvt16(self, dst, src, n=16):
        for q in range(n//2): self.e(f"v_cvt_pk_bf16_f32 v{dst+q}, v{src+2*q}, v{src+2*q+1}")
    def arrive(self, stage, tmp):
        self.e(f"v_mov_b32 v{tmp}, {stage}", "s_mov_b64 exec, 1", f"ds_write_b32 v{V_MYFL}, v{tmp}", "s_mov_b64 exec, -1")
    def rwait(self, stage, tmp):
        l = self.lab('rs')
        self.e(l+":", f"ds_read_b128 {vr(tmp,4)}, v{V_FLB}", "s_waitcnt lgkmcnt(0)",
               f"v_min3_u32 v{tmp}, v{tmp}, v{tmp+1}, v{tmp+2}", f"v_min_u32 v{tmp}, v{tmp}, v{tmp+3}",
               f"v_cmp_gt_u32 vcc, {stage}, v{tmp}", f"s_cbranch_vccnz {l}")
    def setflag(self, soff, tmp, wide=True):
        self.e(f"v_mov_b32 v{tmp}, s{S_NON}")
        if wide: self.e(f"v_mov_b32 v{tmp+1}, s{S_NON+1}")
        self.e("s_mov_b64 exec, 1")
        self.vmem(f"buffer_store_dword{'x2' if wide else ''} {vr(tmp, 2 if wide else 1)}, off, {sr(S_WS,4)}, s{soff} sc1", 'flag')
        self.e("s_mov_b64 exec, -1")
    def poll_issue(self, vaddr, soff, mask, tmp, wide=True, track=True):
        self.e(f"v_mov_b32 v{tmp}, 0")
        if wide: self.e(f"v_mov_b32 v{tmp+1}, 0")
        self.e(f"s_mov_b64 exec, {mask}")
        x = f"buffer_atomic_add{'_x2' if wide else ''} {vr(tmp, 2 if wide else 1)}, v{vaddr}, {sr(S_WS,4)}, s{soff} offen sc0 sc1"
        if track: self.vmem(x, 'poll')
        else: self.e(x)
        self.e("s_mov_b64 exec, -1")
    def poll_wait(self, vaddr, soff, mask, tmp, wide=True, cnt=1, lag=0):
        l = self.lab('pl'); d = self.lab('pd')
        chk = [f"v_cmp_ne_u64 vcc, {sr(S_NON,2)}, {vr(tmp,2)}" if wide else f"v_cmp_ne_u32 vcc, s{S_NON}, v{tmp}", f"s_and_b64 vcc, vcc, {mask}"]
        self.waitvm('poll')
        self.e(*chk); self.e(f"s_cbranch_scc0 {d}", f"s_mov_b32 s{S_T0}, {self.o.get('timeout', 200000)}", l+":")
        self.count(cnt)
        if self.o.get('psleep', 2): self.e(f"s_sleep {self.o.get('psleep', 2)}")
        self.poll_issue(vaddr, soff, mask, tmp, wide, False)
        self.e(f"s_sub_u32 s{S_T0}, s{S_T0}, 1", "s_waitcnt vmcnt(0)", f"s_cbranch_scc1 {d}")
        self.e(*chk); self.e(f"s_cbranch_scc1 {l}")
        if lag: self.e(f"s_sleep {lag}")
        self.e(d+":")

S_WV = 3
S_X, S_A, S_B, S_WK, S_WVv, S_WQ, S_WS, S_OUT = 4, 8, 12, 16, 20, 24, 28, 32
P_X, P_LRE, P_LIM, P_BRE, P_BIM, P_CRE, P_CIM, P_LDT = 36, 38, 40, 42, 44, 46, 48, 50
P_DSK, P_BX, P_WQKV, P_WPHI, P_WO, P_GATE, P_OUT, P_DBG, P_WS = 52, 54, 56, 58, 60, 62, 64, 66, 68
S_KX = 70
S_KW = 78
S_NON = 86
S_C, S_J, S_W, S_R0 = 88, 89, 90, 91
S_FLOFF = 92
S_NN = 84
S_M0B = 93
S_T0, S_T1, S_T2, S_T3 = 94, 95, 96, 97
S_M = 98
S_EP = 54
S_DS = 55
V_LANE = 0
V_MYFL, V_FLB, V_L16, V_STAMP = 1, 2, 3, 4
V_FX = 10

def prologue(g):
    e = g.e; o = g.o
    e("s_cmp_ge_u32 s2, 256", "s_cbranch_scc1 L_end")
    e(f"s_load_dwordx16 s[36:51], s[0:1], 0", f"s_load_dwordx16 s[52:67], s[0:1], 64", f"s_load_dwordx2 s[68:69], s[0:1], 128")
    e("v_lshrrev_b32 v1, 6, v0", "v_and_b32 v0, 63, v0", f"v_readfirstlane_b32 s{S_WV}, v1")
    e(f"s_and_b32 s{S_T0}, s2, 3", f"s_lshl_b32 s{S_T0}, s{S_T0}, 2", f"s_bfe_u32 s{S_C}, s2, 0x20003", f"s_add_u32 s{S_C}, s{S_C}, s{S_T0}")
    e(f"s_and_b32 s{S_T0}, s2, 4", f"s_lshl_b32 s{S_T0}, s{S_T0}, 1", f"s_lshr_b32 s{S_J}, s2, 5", f"s_add_u32 s{S_J}, s{S_J}, s{S_T0}")
    e(f"s_and_b32 s{S_W}, s{S_WV}, 3")
    ra, rb_, rx, ry = o.get('rot', (2, 1, 0, 0))
    e(f"s_mul_i32 s{S_R0}, s{S_J}, {rb_}")
    if ra: e(f"s_mul_i32 s{S_T0}, s{S_C}, {ra}", f"s_add_u32 s{S_R0}, s{S_R0}, s{S_T0}")
    if rx: e(f"s_lshr_b32 s{S_T0}, s{S_C}, 2", f"s_mul_i32 s{S_T0}, s{S_T0}, {rx}", f"s_add_u32 s{S_R0}, s{S_R0}, s{S_T0}")
    if ry: e(f"s_lshr_b32 s{S_T0}, s{S_J}, 3", f"s_mul_i32 s{S_T0}, s{S_T0}, {ry}", f"s_add_u32 s{S_R0}, s{S_R0}, s{S_T0}")
    e(f"s_and_b32 s{S_R0}, s{S_R0}, 7")
    e(f"v_lshlrev_b32 v{V_L16}, 4, v0")
    if o.get('stamps'): e(f"v_mov_b32 v{V_STAMP}, 0", f"s_mov_b32 s{S_FLOFF}, 0")
    e(f"s_lshl_b32 s{S_M}, s{S_W}, 12", f"s_add_u32 s{S_M}, s{S_M}, {XREG}")
    e(f"s_cmp_lt_u32 s{S_WV}, 4", "s_cbranch_scc1 L_roleT")

def common_late(g):
    e = g.e
    e(f"s_lshl_b32 s{S_T0}, s{S_WV}, 2", f"s_add_u32 s{S_T0}, s{S_T0}, {L_TFL}", f"v_mov_b32 v{V_MYFL}, s{S_T0}",
      f"s_and_b32 s{S_T0}, s{S_T0}, 0xfffffff0", f"v_mov_b32 v{V_FLB}, s{S_T0}")

def scalar_prefetch(g, items):
    e = g.e
    e(f"s_lshl_b32 s{S_T0}, s2, 2", f"s_add_u32 s{S_T0}, s{S_T0}, s{S_W}")
    k = 0
    for pp, stride, first, n, ls in items:
        e(f"s_mul_i32 s{S_T1}, s{S_T0}, {stride}", f"s_add_u32 s{S_OUT}, s{pp}, s{S_T1}", f"s_addc_u32 s{S_OUT+1}, s{pp+1}, 0")
        for i in range(n):
            e(f"s_load_dword s{S_DS}, {sr(S_OUT,2)}, {first+ls*i} ; touch")

def nonce(g):
    g.e(f"s_mul_i32 s{S_NON}, s{S_EP}, 1664525", f"s_add_u32 s{S_NON}, s{S_NON}, 1013904223",
        f"s_mul_i32 s{S_NON+1}, s{S_EP}, 22695477", f"s_add_u32 s{S_NON+1}, s{S_NON+1}, 0x9e3779b9")

def frag_addr(g, dst, tmp, base_s=None, base_c=0):
    e = g.e
    e(f"v_and_b32 v{tmp}, 31, v0", f"v_lshlrev_b32 v{dst}, 7, v{tmp}", f"v_bfe_u32 v{tmp}, v0, 1, 3", f"v_lshrrev_b32 v{tmp+1}, 5, v0",
      f"v_xor_b32 v{tmp}, v{tmp}, v{tmp+1}", f"v_lshl_add_u32 v{dst}, v{tmp}, 4, v{dst}")
    if base_s is not None: e(f"v_add_u32 v{dst}, s{base_s}, v{dst}")
    if base_c: e(f"v_add_u32 v{dst}, {base_c}, v{dst}")
    for k in range(1, 4): e(f"v_xor_b32 v{dst+k}, {32*k}, v{dst}")

def make_sel(g, dst, tmp):
    e = g.e
    e(f"v_bfe_u32 v{tmp}, v0, 3, 2", f"v_and_b32 v{tmp+1}, 3, v0", f"v_lshl_add_u32 v{tmp}, v{tmp}, 2, v{tmp+1}",
      f"v_bfe_u32 v{tmp+1}, v0, 2, 1", f"v_lshrrev_b32 v{tmp+2}, 5, v0", f"v_xor_b32 v{tmp+1}, v{tmp+1}, v{tmp+2}",
      f"v_lshl_add_u32 v{tmp}, v{tmp+1}, 4, v{tmp}",
      f"v_and_b32 v{tmp+1}, 1, v0", f"v_lshlrev_b32 v{tmp+1}, 4, v{tmp+1}", f"v_mov_b32 v{tmp+2}, 0x3f80",
      f"v_lshlrev_b32 v{tmp+1}, v{tmp+1}, v{tmp+2}", f"v_lshrrev_b32 v{tmp}, 1, v{tmp}")
    for q in range(8):
        e(f"v_cmp_eq_u32 vcc, {q}, v{tmp}", f"v_cndmask_b32 v{dst+q}, 0, v{tmp+1}, vcc")

def rowhalf(g, d):
    if g.o.get('sig8'): g.e(f"s_lshr_b32 s{d}, s{S_J}, 3")
    else: g.e(f"s_and_b32 s{d}, s{S_J}, 1")
def colblk(g, d):
    if g.o.get('sig8'): g.e(f"s_and_b32 s{d}, s{S_J}, 7")
    else: g.e(f"s_lshr_b32 s{d}, s{S_J}, 1")

def final_preload(g, tmp):
    e = g.e
    rowhalf(g, S_T1)
    e(f"s_lshl_b32 s{S_T0}, s{S_C}, 7", f"s_lshl_b32 s{S_T1}, s{S_T1}, 6", f"s_add_u32 s{S_T0}, s{S_T0}, s{S_T1}",
      f"s_lshr_b32 s{S_T1}, s{S_WV}, 2", f"s_lshl_b32 s{S_T1}, s{S_T1}, 5", f"s_add_u32 s{S_T0}, s{S_T0}, s{S_T1}",
      f"s_lshl_b32 s{S_T1}, s{S_W}, 2", f"s_add_u32 s{S_T0}, s{S_T0}, s{S_T1}", f"s_lshl_b32 s{S_T0}, s{S_T0}, 10")
    colblk(g, S_T1); e(f"s_lshl_b32 s{S_T1}, s{S_T1}, 7")
    e(f"v_and_b32 v{tmp}, 15, v0", f"v_lshlrev_b32 v{tmp}, 3, v{tmp}", f"v_add_u32 v{tmp}, s{S_T1}, v{tmp}",
      f"v_lshrrev_b32 v5, 4, v0", f"v_lshl_add_u32 v5, v5, 10, v{tmp}", f"v_add_u32 v5, s{S_T0}, v5", f"v_add_u32 v{tmp+1}, 0x4000, v5")
    g.vmem(f"global_load_dwordx2 {vr(V_FX,2)}, v5, {sr(P_X,2)}", 'fin')
    g.vmem(f"global_load_dwordx2 {vr(V_FX+2,2)}, v{tmp+1}, {sr(P_X,2)}", 'fin')
    g.vmem(f"global_load_dwordx2 {vr(V_FX+4,2)}, v{tmp}, {sr(P_DSK,2)}", 'fin')

def part_addr(g, dst, tmp, base_s):
    e = g.e
    e(f"v_and_b32 v{tmp}, 31, v0", f"v_lshlrev_b32 v{dst}, 8, v{tmp}", f"v_and_b32 v{tmp}, 7, v0", f"v_lshrrev_b32 v{tmp+1}, 5, v0",
      f"v_xor_b32 v{tmp}, v{tmp}, v{tmp+1}", f"v_lshl_add_u32 v{dst}, v{tmp}, 4, v{dst}", f"v_add_u32 v{dst}, s{base_s}, v{dst}")
    for k in range(1, 4): e(f"v_xor_b32 v{dst+k}, {32*k}, v{dst}")

def softmax(g, p, out, tmp):
    e = g.e
    e(f"v_max3_f32 v{tmp}, v{p}, v{p+1}, v{p+2}")
    for i in range(3, 15, 2): e(f"v_max3_f32 v{tmp}, v{tmp}, v{p+i}, v{p+i+1}")
    e(f"v_max_f32 v{tmp}, v{tmp}, v{p+15}", f"v_mul_f32 v{tmp}, s{S_T3}, v{tmp}")
    for i in range(0, 16, 2):
        e(f"v_pk_fma_f32 {vr(p+i,2)}, {vr(p+i,2)}, {sr(S_T2,2)}, {vr(tmp,2)} op_sel_hi:[1,0,0]")
    for i in range(16): e(f"v_exp_f32 v{p+i}, v{p+i}")
    e(f"v_pk_add_f32 {vr(tmp,2)}, {vr(p,2)}, {vr(p+2,2)}", f"v_pk_add_f32 {vr(tmp+2,2)}, {vr(p+4,2)}, {vr(p+6,2)}")
    e(f"v_pk_add_f32 {vr(tmp,2)}, {vr(tmp,2)}, {vr(p+8,2)}", f"v_pk_add_f32 {vr(tmp+2,2)}, {vr(tmp+2,2)}, {vr(p+10,2)}")
    e(f"v_pk_add_f32 {vr(tmp,2)}, {vr(tmp,2)}, {vr(p+12,2)}", f"v_pk_add_f32 {vr(tmp+2,2)}, {vr(tmp+2,2)}, {vr(p+14,2)}")
    e(f"v_pk_add_f32 {vr(tmp,2)}, {vr(tmp,2)}, {vr(tmp+2,2)}", f"v_add_f32 v{tmp}, v{tmp}, v{tmp+1}", f"v_rcp_f32 v{tmp}, v{tmp}")
    for i in range(0, 16, 2):
        e(f"v_pk_mul_f32 {vr(p+i,2)}, {vr(p+i,2)}, {vr(tmp,2)} op_sel_hi:[1,0]")
    g.cvt16(out, p)

def softmax_np(g, p, out, tmp):
    e = g.e
    e(f"v_max3_f32 v{tmp}, v{p}, v{p+1}, v{p+2}")
    for i in range(3, 15, 2): e(f"v_max3_f32 v{tmp}, v{tmp}, v{p+i}, v{p+i+1}")
    e(f"v_max_f32 v{tmp}, v{tmp}, v{p+15}", f"v_mul_f32 v{tmp}, s{S_T3}, v{tmp}")
    e(f"v_fma_f32 v{p}, v{p}, s{S_T2}, v{tmp}", f"v_fma_f32 v{p+1}, v{p+1}, s{S_T2}, v{tmp}")
    for i in range(16):
        e(f"v_exp_f32 v{p+i}, v{p+i}")
        if i+2 < 16: e(f"v_fma_f32 v{p+i+2}, v{p+i+2}, s{S_T2}, v{tmp}")
        if i == 2: e(f"v_add_f32 v{tmp+1}, v{p}, v{p+1}")
        elif i > 2: e(f"v_add_f32 v{tmp+1}, v{tmp+1}, v{p+i-1}")
    e(f"v_add_f32 v{tmp+1}, v{tmp+1}, v{p+15}", f"v_rcp_f32 v{tmp+1}, v{tmp+1}")
    for i in range(0, 16, 2):
        e(f"v_mul_f32 v{p+i}, v{p+i}, v{tmp+1}", f"v_mul_f32 v{p+i+1}, v{p+i+1}, v{tmp+1}", f"v_cvt_pk_bf16_f32 v{out+i//2}, v{p+i}, v{p+i+1}")

def sum16(g, p, tmp):
    e = g.e
    e(f"v_pk_add_f32 {vr(tmp,2)}, {vr(p,2)}, {vr(p+2,2)}", f"v_pk_add_f32 {vr(tmp+2,2)}, {vr(p+4,2)}, {vr(p+6,2)}")
    e(f"v_pk_add_f32 {vr(tmp,2)}, {vr(tmp,2)}, {vr(p+8,2)}", f"v_pk_add_f32 {vr(tmp+2,2)}, {vr(tmp+2,2)}, {vr(p+10,2)}")
    e(f"v_pk_add_f32 {vr(tmp,2)}, {vr(tmp,2)}, {vr(p+12,2)}", f"v_pk_add_f32 {vr(tmp+2,2)}, {vr(tmp+2,2)}, {vr(p+14,2)}")
    e(f"v_pk_add_f32 {vr(tmp,2)}, {vr(tmp,2)}, {vr(tmp+2,2)}", f"v_add_f32 v{tmp}, v{tmp}, v{tmp+1}")

def rec_store(g, data, ck, vl4, soff, tag):
    e = g.e
    for a in range(2): g.vmem(f"buffer_store_dwordx4 {vr(data+4*a,4)}, v{V_L16}, {sr(S_WS,4)}, s{soff} offen offset:{1024*a} sc1", tag)
    e(f"v_add3_u32 v{ck}, v{data}, v{data+1}, v{data+2}", f"v_add3_u32 v{ck}, v{ck}, v{data+3}, v{data+4}", f"v_add3_u32 v{ck}, v{ck}, v{data+5}, v{data+6}",
      f"v_add_u32 v{ck}, v{ck}, v{data+7}", f"v_sub_u32 v{ck}, s{S_NON}, v{ck}")
    g.vmem(f"buffer_store_dword v{ck}, v{vl4}, {sr(S_WS,4)}, s{soff} offen offset:2048 sc1", tag)

class RecStream:
    def __init__(s, g, n, depth, buf, ck, tmp, vl4, offs, sA, sB):
        s.g, s.n, s.D, s.buf, s.ck, s.tmp, s.vl4, s.offs, s.sA, s.sB = g, n, depth, buf, ck, tmp, vl4, offs, sA, sB
        s.cold = []
    def frag(s, i, r, a): return s.buf + 16*(i % s.D) + 8*r + 4*a
    def load(s, i, track=True):
        g = s.g
        for r, sd in ((0, s.sA), (1, s.sB)):
            base, c = s.offs(i, r)
            g.e(f"s_add_u32 s{sd}, s{base}, {c}")
            ld = [f"buffer_load_dwordx4 {vr(s.frag(i,r,a),4)}, v{V_L16}, {sr(S_WS,4)}, s{sd} offen offset:{1024*a} sc1" for a in range(2)]
            ld.append(f"buffer_load_dword v{s.ck+2*(i % s.D)+r}, v{s.vl4}, {sr(S_WS,4)}, s{sd} offen offset:2048 sc1")
            for x in ld:
                if track: g.vmem(x, f'a{i}')
                else: g.e(x)
    def check(s, i):
        g = s.g; b = s.frag(i, 0, 0); c = s.ck+2*(i % s.D); t = s.tmp
        g.e(f"v_add3_u32 v{t}, v{c}, v{b}, v{b+1}", f"v_add3_u32 v{t+1}, v{c+1}, v{b+8}, v{b+9}")
        for k in range(2, 8, 2): g.e(f"v_add3_u32 v{t}, v{t}, v{b+k}, v{b+k+1}", f"v_add3_u32 v{t+1}, v{t+1}, v{b+8+k}, v{b+9+k}")
        g.e(f"v_cmp_ne_u64 vcc, {sr(S_NN,2)}, {vr(t,2)}")
    def need(s, i, inflight):
        g = s.g; lr = g.lab('rr'); lo = g.lab('ro'); l2 = g.lab('rq')
        g.waitvm(f'a{i}'); s.check(i)
        g.e(f"s_cbranch_vccnz {lr}" if not g.o.get('noval') else "s_nop 0", lo+":")
        def rt():
            g.e(lr+":", f"s_mov_b32 s{S_T0}, {g.o.get('timeout', 200000)}", l2+":", f"s_sleep {g.o.get('rsleep', 2)}"); g.count(0x1000000); s.load(i, False)
            g.e(f"s_sub_u32 s{S_T0}, s{S_T0}, 1", "s_waitcnt vmcnt(0)", f"s_cbranch_scc1 {lo}"); s.check(i)
            g.e(f"s_cbranch_vccnz {l2}")
            for k in inflight: s.load(k, False)
            g.e(f"s_branch {lo}", g.lab('role_c')+":")
        s.cold.append(g.capture(rt))

def epoch_load(g, v):
    g.e(f"v_mov_b32 v{v}, {WS_EPOCH}")
    g.vmem(f"global_load_dword v{v}, v{v}, {sr(P_WS,2)} sc1", 'ep')
def epoch_use(g, v):
    g.e(f"v_readfirstlane_b32 s{S_EP}, v{v}"); nonce(g)

def roleT(g):
    e = g.e; o = g.o
    g.vm = []
    X = 128
    VXO = 6
    VBO = 5
    VWO = 10
    VXA = 12
    VTR = 11
    WPA, WPB, SEL = 16, 20, 24
    ACC, RING, KP, DA, DB, PA, PB = 32, 48, 72, 80, 96, 112, 120
    e("L_roleT:")
    def slice_offs(s):
        e(f"s_add_u32 s{S_T0}, s{S_R0}, {s}", f"s_and_b32 s{S_T0}, s{S_T0}, 7", f"s_lshl_b32 s{S_KX+s}, s{S_T0}, 7", f"s_mul_i32 s{S_KW+s}, s{S_T0}, {64*3072}")
    for s in range(2): slice_offs(s)
    e("v_lshrrev_b32 v32, 5, v0", "v_bfe_u32 v33, v0, 3, 2", "v_and_b32 v34, 7, v0", "v_lshrrev_b32 v35, 4, v0", "v_xor_b32 v34, v34, v35", "v_lshlrev_b32 v34, 4, v34")
    e("v_lshl_add_u32 v36, v32, 4, v33", f"v_lshl_add_u32 v{VXO}, v36, 10, v34")
    e(f"v_xor_b32 v{VXO+1}, 64, v{VXO}", f"v_add_u32 v{VXO+2}, {2*3072}, v{VXO}", f"v_add_u32 v{VXO+3}, {3*3072}, v{VXO+1}", f"v_add_u32 v{VXO+1}, 3072, v{VXO+1}")
    e("v_lshl_add_u32 v36, v32, 3, v33", f"v_lshl_add_u32 v{VBO}, v36, 10, v34")
    e(f"s_and_b32 s{S_T0}, s{S_W}, 1", f"s_lshl_b32 s{S_T1}, s{S_T0}, 6", f"v_xor_b32 v{VBO}, s{S_T1}, v{VBO}",
      f"s_lshl_b32 s{S_T0}, s{S_T0}, 12", f"s_lshr_b32 s{S_T1}, s{S_W}, 1", f"s_lshl_b32 s{S_T1}, s{S_T1}, 14", f"s_add_u32 s{S_T0}, s{S_T0}, s{S_T1}",
      f"s_lshl_b32 s{S_T1}, s{S_J}, 15", f"s_add_u32 s{S_T2}, s{S_T0}, s{S_T1}")
    e(f"s_lshl_b32 s{S_T0}, s{S_C}, 17", f"s_lshl_b32 s{S_T1}, s{S_W}, 15", f"s_add_u32 s{S_T3}, s{S_T0}, s{S_T1}")
    e(f"s_lshl_b32 s{S_M0B}, s{S_W}, 10")
    e(f"v_lshrrev_b32 v36, 2, v0", f"v_mul_u32_u24 v36, 3072, v36", f"v_and_b32 v37, 3, v0", f"v_lshl_add_u32 v{VWO}, v37, 4, v36")
    e(f"s_mul_i32 s{S_T0}, s{S_W}, {16*3072}", f"s_lshl_b32 s{S_T1}, s{S_J}, 6", f"s_add_u32 s{S_T0}, s{S_T0}, s{S_T1}", f"s_add_u32 s{S_M+1}, s{S_T0}, 1024")
    for d, sz in ((S_X, 2097152), (S_A, 524288), (S_B, 524288), (S_WK, 1572864)):
        off = {S_X: S_T3, S_A: S_T2, S_B: S_T2, S_WK: S_M+1}[d]
        e(f"s_sub_u32 s{d+2}, {sz}, s{off}", f"s_mov_b32 s{d+3}, 0x20000")
    e(f"s_add_u32 m0, s{S_M}, {xsl(0)}")
    e("s_waitcnt lgkmcnt(0)")
    g.stamp(20)
    def base(d, p, off): e(f"s_add_u32 s{d}, s{p}, s{off}", f"s_addc_u32 s{d+1}, s{p+1}, 0")
    def dma_x(s, rng=range(4), setm0=True):
        if setm0: e(f"s_add_u32 m0, s{S_M}, {xsl(s)}")
        for gg in rng:
            g.vmem(f"buffer_load_dwordx4 v{VXO+gg}, {sr(S_X,4)}, s{S_KX+s} offen offset:{1024*gg} lds", f'x{s}')
    def dma_b(s):
        for part in range(2):
            e(f"s_add_u32 m0, s{S_M0B}, {L_BSL + (s%3)*8192 + part*4096}")
            g.vmem(f"buffer_load_dwordx4 v{VBO}, {sr(S_A if part==0 else S_B,4)}, s{S_KX+s} offen lds", f'x{s}')
    def dma_w(srd, slot, s, tag):
        e(f"s_add_u32 m0, s{S_M0B}, {TREG + slot*32768 + s*4096}")
        g.vmem(f"buffer_load_dwordx4 v{VWO}, {sr(srd,4)}, s{S_KW+s} offen lds", tag)
    def wgroups(srd, slot, tag, rng): return [g.capture(lambda s=s: dma_w(srd, slot, s, tag)) for s in rng]
    base(S_X, P_X, S_T3); dma_x(0, setm0=False)
    base(S_A, P_BRE, S_T2); base(S_B, P_BIM, S_T2); dma_b(0)
    base(S_WK, P_WQKV, S_M+1); dma_w(S_WK, -2, 0, 'x0')
    g.stamp(21)
    n1 = o.get('x1_pre', 2)
    dma_x(1, range(n1))
    if o.get('spre'): scalar_prefetch(g, [(P_CRE, 512, 0, 4, 128), (P_CIM, 512, 0, 4, 128)])
    for s in range(2, 8): slice_offs(s)
    e(f"v_add_u32 v113, {L_GATE}, v34")
    frag_addr(g, VXA, 32, base_s=S_M)
    e("v_lshrrev_b32 v32, 5, v0", "v_bfe_u32 v33, v0, 2, 2", "v_lshl_add_u32 v32, v32, 3, v33", "v_bfe_u32 v34, v0, 4, 1",
      f"v_lshlrev_b32 v{VTR}, 6, v32", f"v_lshl_add_u32 v{VTR}, v34, 5, v{VTR}", "v_and_b32 v35, 1, v0", f"v_lshl_add_u32 v{VTR}, v35, 4, v{VTR}",
      "v_bfe_u32 v35, v0, 1, 1", f"v_lshl_add_u32 v{VTR}, v35, 3, v{VTR}")
    e("v_lshlrev_b32 v112, 5, v32", "v_lshl_add_u32 v112, v34, 4, v112", "v_lshl_add_u32 v112, v35, 3, v112", f"v_add_u32 v112, {L_WPHI}, v112")
    rowhalf(g, S_T0)
    e(f"s_lshl_b32 s{S_T0}, s{S_T0}, 13", f"s_lshl_b32 s{S_T1}, s{S_W}, 11", f"s_add_u32 s{S_T0}, s{S_T0}, s{S_T1}", f"s_add_u32 s{S_T0}, s{S_T0}, {XREG}",
      f"v_add_u32 v115, s{S_T0}, v{V_L16}", "v_xor_b32 v116, 64, v115", "v_mov_b32 v118, 0", "v_mov_b32 v119, 0")
    e(f"s_sub_u32 s{S_T0}, s{S_M+1}, 1024"); g.srd(S_WQ, P_WQKV, S_T0, 1572864)
    e(f"s_add_u32 s{S_T0}, s{S_M+1}, 1024"); g.srd(S_WVv, P_WQKV, S_T0, 1572864)
    g.srd(S_WS, P_WS, None, WS_SIZE)
    common_late(g)
    make_sel(g, SEL, 32)
    g.arrive(0, 32)
    e(f"s_mov_b32 s{S_T2}, {LOG2E}", f"s_mov_b32 s{S_T3}, {LOG2E | 0x80000000}")
    g.stamp(0)
    dma_x(1, range(n1, 4), setm0=False); dma_b(1); dma_w(S_WK, -2, 1, 'x1')
    GB = 48
    WB = 80
    def gate_rd(s):
        b = GB+12*(s & 1)
        e(f"ds_read_b128 {vr(b,4)}, v115 offset:{xsl(s)}", f"ds_read_b128 {vr(b+4,4)}, v116 offset:{xsl(s)+1024}", f"ds_read_b128 {vr(b+8,4)}, v113 offset:{s*128}")
    def gate_dot(s):
        b = GB+12*(s & 1)
        for q in range(4): e(f"v_dot2c_f32_bf16 v118, v{b+q}, v{b+8+q}", f"v_dot2c_f32_bf16 v119, v{b+4+q}, v{b+8+q}")
    def kmm(s, k): g.mfma(ACC, WB+16*(s & 1)+4*k, X+16*s+4*k, None if (s == 0 and k == 0) else ACC)
    wv = wgroups(S_WVv, 1, 'wv', range(8))
    for s in range(8):
        g.waitvm(f'x{s}')
        e("s_waitcnt lgkmcnt(0)", "s_barrier")
        if s == 0: g.stamp(1)
        g.stamp(30+s)
        if s == 7: g.prio('t_b7')
        def issue():
            if s+2 < 8: dma_x(s+2); dma_b(s+2); dma_w(S_WK, -2, s+2, f'x{s+2}')
            if s == 0: epoch_load(g, 114)
            for _ in range(o.get('wv_sched', {6: 4, 7: 4}).get(s, 0)): g.play(wv.pop(0))
        if not o.get('dma_late'): issue()
        for k in range(4):
            if s > 0: kmm(s-1, k)
            e(f"ds_read_b128 {vr(X+16*s+4*k,4)}, v{VXA+k} offset:{xsl(s)}")
            for i in range(2): e(f"ds_read_b64_tr_b16 {vr(WB+16*(s&1)+4*k+2*i,2)}, v{VTR} offset:{(4*s+k)*1024+i*256}")
        if s >= 1: gate_rd(s-1)
        if o.get('dma_late'): issue()
        if s >= 2: gate_dot(s-2)
        if s == 2:
            for hd, dst in ((0, WPA), (1, WPB)):
                for i in range(2): e(f"ds_read_b64_tr_b16 {vr(dst+2*i,2)}, v112 offset:{hd*512+i*128}")
        if s == 3:
            epoch_use(g, 114)
            e("v_bfe_u32 v112, v0, 2, 1", "v_mul_u32_u24 v112, 0x8000, v112", "v_lshl_or_b32 v112, v112, 16, v112")
            for q in range(8): e(f"v_xor_b32 v{WPA+q}, v{WPA+q}, v112")
    e("s_waitcnt lgkmcnt(0)")
    for k in range(4): kmm(7, k)
    gate_rd(7); gate_dot(6)
    while wv: g.play(wv.pop(0))
    wq = wgroups(S_WQ, 0, 'wq', range(8))
    qa, qb, qc = o.get('wq_pre', (0, 0, 0))
    for _ in range(qa): g.play(wq.pop(0))
    e(f"v_add_u32 v{VTR}, {TREG}, v{VTR}")
    g.stamp(2)
    g.cvt16(KP, ACC, 8); g.mfma(DA, WPA, KP); g.cvt16(KP+4, ACC+8, 8); g.mfma(DB, WPB, KP+4)
    e("s_waitcnt lgkmcnt(0)"); gate_dot(7)
    def gate_fin():
        e(f"v_lshrrev_b32 v{GA}, 3, v0", f"s_lshl_b32 s{S_T0}, s{S_W}, 6", f"s_add_u32 s{S_T0}, s{S_T0}, {L_G}", f"v_lshl_add_u32 v{GA}, v{GA}, 2, s{S_T0}")
        for md in ("quad_perm:[1,0,3,2]", "quad_perm:[2,3,0,1]", "row_half_mirror"):
            e(f"v_add_f32_dpp v{G0}, v{G0}, v{G0} {md} row_mask:0xf bank_mask:0xf", f"v_add_f32_dpp v{G1_}, v{G1_}, v{G1_} {md} row_mask:0xf bank_mask:0xf")
        e(f"v_mul_f32 v{G0}, s{S_T3}, v{G0}", f"v_mul_f32 v{G1_}, s{S_T3}, v{G1_}", f"v_exp_f32 v{G0}, v{G0}", f"v_exp_f32 v{G1_}, v{G1_}", f"v_add_f32 v{G0}, 1.0, v{G0}", f"v_add_f32 v{G1_}, 1.0, v{G1_}",
          f"v_rcp_f32 v{G0}, v{G0}", f"v_rcp_f32 v{G1_}, v{G1_}", f"ds_write_b32 v{GA}, v{G0}", f"ds_write_b32 v{GA}, v{G1_} offset:32")
    if o.get('gate_late'):
        G0, G1_, GA = 8, 9, 7
        e(f"v_mov_b32 v{G0}, v118", f"v_mov_b32 v{G1_}, v119")
    else:
        G0, G1_, GA = 118, 119, 113
        gate_fin()
    def wgemm(slot, transposed, groups=(), k0=0, k1=32, fill=(), hooks={}):
        D = 6
        groups = list(groups); n = len(groups); k = 0; fill = list(fill); nf = len(fill); kf = 0
        def rd(ks):
            for i in range(2): e(f"ds_read_b64_tr_b16 {vr(RING+4*(ks%D)+2*i,2)}, v{VTR} offset:{slot*32768+ks*1024+i*256}")
        for ks in range(D-1): rd(ks)
        for ks in range(32):
            if ks+D-1 < 32: rd(ks+D-1)
            upto = nf*(ks+1)//32
            if ks == 0:
                g.play(fill[:upto]); kf = upto
            e(f"s_waitcnt lgkmcnt({2*min(D-1, 31-ks)})")
            w = RING+4*(ks%D); x = X+4*ks
            if transposed: g.mfma(ACC, w, x, None if ks == 0 else ACC)
            else: g.mfma(ACC, x, w, None if ks == 0 else ACC)
            if ks in hooks: hooks[ks]()
            while k < n and ks >= k0 + (k1-k0)*k//n: g.play(groups[k]); k += 1
            upto = min(nf, nf*(ks+2)//32)
            g.play(fill[kf:upto]); kf = max(kf, upto)
    S_KVG, S_ZG, S_KVP, S_ZP, S_WOM, S_OST, S_NM = S_KX, S_KX+1, S_KX+2, S_KX+3, S_KX+4, S_KX+5, S_KX+6
    VKW, VKR, VZR, VZ8 = 12, 13, 14, 15
    VA, VB, ZT = 80, 88, 76
    H2 = o.get('hops', 1) == 2
    OCK = o.get('ock', 1)
    oh = o.get('ohint_at', 0) if OCK else None
    RO = RECO if OCK else 2048
    def su1():
        e(f"s_mov_b32 s{S_M}, 0xffff", f"s_mov_b32 s{S_M+1}, 0xffff", f"s_mov_b32 s{S_NM}, 0xffff0000", f"s_mov_b32 s{S_NM+1}, 0xffff0000")
        e(f"s_add_u32 s{S_T0}, s{S_M0B}, {L_KVR}", f"v_add_u32 v{VKW}, s{S_T0}, v{V_L16}")
    def su2():
        e(f"s_lshl_b32 s{S_T0}, s{S_W}, 12", f"s_add_u32 s{S_T0}, s{S_T0}, {L_KVR}", f"v_add_u32 v{VKR}, s{S_T0}, v{V_L16}")
    def su3():
        e(f"s_lshl_b32 s{S_T0}, s{S_W}, 6", f"s_add_u32 s{S_T0}, s{S_T0}, {L_ZR}", f"v_and_b32 v{VZ8}, 60, v0", f"v_add_u32 v{VZR}, s{S_T0}, v{VZ8}")
        if H2: e(f"v_lshlrev_b32 v{VZ8}, 8, v{VZ8}", f"v_and_or_b32 v{VZ8}, v{V_L16}, 48, v{VZ8}")
    def su4():
        e(f"s_lshl_b32 s{S_T0}, s{S_J}, 2", f"s_add_u32 s{S_T0}, s{S_T0}, s{S_W}", f"s_lshl_b32 s{S_KVG}, s{S_T0}, 14", f"s_add_u32 s{S_KVG}, s{S_KVG}, {WS_KV}")
        if H2: e(f"s_lshl_b32 s{S_ZG}, s{S_T0}, 10", f"s_add_u32 s{S_ZG}, s{S_ZG}, {WS_H2}")
    def su5():
        if H2: e(f"s_lshl_b32 s{S_T0}, s{S_C}, 6", f"s_add_u32 s{S_KVP}, s{S_KVG}, s{S_T0}", f"s_add_u32 s{S_ZP}, s{S_ZG}, s{S_T0}",
                 f"s_lshl_b32 s{S_T0}, s{S_C}, 10", f"s_add_u32 s{S_KVG}, s{S_KVG}, s{S_T0}")
        else: e(f"s_lshl_b32 s{S_T0}, s{S_C}, 10", f"s_add_u32 s{S_KVP}, s{S_KVG}, s{S_T0}")
    def su5b():
        e(f"s_lshl_b32 s{S_T0}, s{S_J}, 2", f"s_add_u32 s{S_T0}, s{S_T0}, s{S_W}", f"s_lshl_b32 s{S_T0}, s{S_T0}, 7", f"s_add_u32 s{S_B}, s{S_T0}, {WS_FLAGS+FL_K}",
          f"s_lshl_b32 s{S_T0}, s{S_C}, 2", f"s_add_u32 s{S_B+1}, s{S_B}, s{S_T0}")
    def su6():
        colblk(g, S_T1)
        e(f"s_lshl_b32 s{S_T0}, s{S_W}, 16", f"s_lshl_b32 s{S_T1}, s{S_T1}, 7", f"s_add_u32 s{S_T0}, s{S_T0}, s{S_T1}")
        g.srd(S_A, P_WO, S_T0, 524288)
    def su7():
        e(f"v_lshrrev_b32 v{VXO}, 3, v0", f"v_lshlrev_b32 v{VXO}, 10, v{VXO}", f"v_and_b32 v{VXO+1}, 7, v0", f"v_bfe_u32 v{VXO+2}, v0, 4, 1")
        e(f"v_lshlrev_b32 v{VXO+2}, 2, v{VXO+2}", f"v_xor_b32 v{VXO+1}, v{VXO+1}, v{VXO+2}", f"v_lshl_add_u32 v{VXO}, v{VXO+1}, 4, v{VXO}")
        for k in range(1, 4): e(f"v_add_u32 v{VXO+k}, {7168*k}, v{VXO}")
        e(f"s_lshl_b32 s{S_WOM}, s{S_W}, 13")
    def su10():
        e(f"s_lshl_b32 s{S_T0}, s{S_C}, 2", f"s_add_u32 s{S_T0}, s{S_T0}, s{S_W}", f"s_lshl_b32 s{S_T0}, s{S_T0}, 4", f"s_add_u32 s{S_T0}, s{S_T0}, s{S_J}",
          f"s_mul_i32 s{S_T0}, s{S_T0}, {RO}", f"s_add_u32 s{S_OST}, s{S_T0}, {WS_A2O}")
    for f in (su1, su2, su3, su4, su5, su5b): f()
    e(f"s_mov_b32 s{S_DS}, 0x3f803f80", f"s_lshl_b32 s{S_T0}, s{S_W}, 8", f"s_add_u32 s{S_T0}, s{S_T0}, {L_ZR}", f"v_lshl_add_u32 v{VBO}, v0, 2, s{S_T0}")
    def phik():
        softmax_np(g, DA, PA, KP)
        g.mfma(DA, PA, SEL); g.mfma(DA, PA+4, SEL+4, DA)
        softmax_np(g, DB, PB, KP)
        g.mfma(DB, PB, SEL); g.mfma(DB, PB+4, SEL+4, DB)
        e(f"v_mov_b32 v{ZT}, 0", f"v_mov_b32 v{ZT+1}, 0")
        g.cvt16(PA, DA)
        for q in range(16): e(f"v_mov_b32 v{VA+q}, 0")
        g.cvt16(PB, DB)
        for q in range(8): e(f"v_dot2c_f32_bf16 v{ZT}, s{S_DS}, v{PA+q}", f"v_dot2c_f32_bf16 v{ZT+1}, s{S_DS}, v{PB+q}")
    fill = g.capture(phik)
    npre = o.get('sm_pre', 30)
    g.weave(fill[:npre], wq[:qb]); fill = fill[npre:]; del wq[:qb]
    g.waitvm('wv'); e("s_barrier"); g.prio('t_b8')
    for _ in range(qc): g.play(wq.pop(0))
    g.stamp(3)
    if o.get('onlyS'):
        final_preload(g, 34); final_setup(g); e("s_branch L_final")
    wgemm(1, False, wq, o.get('wq_start', 8), o.get('wq_end', 26), fill)
    g.stamp(5)
    if o.get('khint_early', 1) == 1: g.setflag(S_B+1, KP, False)
    e(f"v_permlane32_swap_b32 v{ZT}, v{ZT+1}", f"v_add_f32 v{ZT}, v{ZT}, v{ZT+1}", f"ds_write_b32 v{VBO}, v{ZT}")
    for a in range(2):
        e(f"s_mov_b64 exec, {sr(S_M,2)}"); g.cvt16(VA+4*a, ACC+8*a, 8)
        e(f"s_mov_b64 exec, {sr(S_NM,2)}"); g.cvt16(VB+4*a, ACC+8*a, 8)
        e("s_mov_b64 exec, -1")
        g.mfma(DB, PA+4*a, VA+4*a, None if a == 0 else DB); g.mfma(DB, PB+4*a, VB+4*a, DB)
    su6(); su10()
    g.waitvm('wq')
    for q in range(4): e(f"ds_write_b128 v{VKW}, {vr(DB+4*q,4)} offset:{q*4096}")
    g.arrive(3, RING)
    if o.get('khint_early', 1) == 2: g.setflag(S_B+1, KP, False)
    if o.get('gate_late'): gate_fin()
    su7(); e(f"v_lshlrev_b32 v{VBO}, 2, v0"); g.rwait(3, RING)
    if o.get('kpoll_at', 2) < 0: g.poll_issue(VBO, S_B, '0xffff', VKW, False)
    for q in range(4): e(f"ds_read_b32 v{KP+q}, v{VZR} offset:{q*256}")
    for q in range(4): e(f"ds_read_b128 {vr(DB+4*q,4)}, v{VKR} offset:{q*1024}")
    e(f"v_mov_b32 v{KP+7}, s{S_NON}", "s_waitcnt lgkmcnt(4)",
      f"v_pk_add_f32 {vr(KP,2)}, {vr(KP,2)}, {vr(KP+2,2)}", "s_waitcnt lgkmcnt(2)")
    e(f"v_pk_add_f32 {vr(DB,2)}, {vr(DB,2)}, {vr(DB+4,2)}", f"v_pk_add_f32 {vr(DB+2,2)}, {vr(DB+2,2)}, {vr(DB+6,2)}", f"v_add_f32 v{KP+6}, v{KP}, v{KP+1}", "s_waitcnt lgkmcnt(0)",
      f"v_pk_add_f32 {vr(DB+8,2)}, {vr(DB+8,2)}, {vr(DB+12,2)}", f"v_pk_add_f32 {vr(DB+10,2)}, {vr(DB+10,2)}, {vr(DB+14,2)}",
      f"v_pk_add_f32 {vr(DB,2)}, {vr(DB,2)}, {vr(DB+8,2)}", f"v_pk_add_f32 {vr(DB+2,2)}, {vr(DB+2,2)}, {vr(DB+10,2)}",
      f"v_cvt_pk_bf16_f32 v{KP+4}, v{DB}, v{DB+1}", f"v_cvt_pk_bf16_f32 v{KP+5}, v{DB+2}, v{DB+3}")
    g.vmem(f"buffer_store_dwordx4 {vr(KP+4,4)}, v{VZ8 if H2 else V_L16}, {sr(S_WS,4)}, s{S_KVP} offen sc1", 'kvst')
    if not o.get('khint_early', 1): g.setflag(S_B+1, KP, False)
    g.stamp(6)
    def wo_groups(kh):
        r = []
        for q in range(8):
            def f(q=q):
                if q % 4 == 0: e(f"s_add_u32 m0, s{S_WOM}, {TREG + kh*32768 + q*1024}", f"s_mov_b32 s{S_DS}, {kh*262144 + q*8192}")
                g.vmem(f"buffer_load_dwordx4 v{VXO+q%4}, {sr(S_A,4)}, s{S_DS} offen offset:{1024*(q%4)} lds", f'wo')
            r.append(g.capture(f))
        return r
    g.prio('t_q')
    wol = wo_groups(1) + wo_groups(0)
    def wo_issue(key):
        n = o.get('wo_sched', {}).get(key, 0); r = wol[:n]; del wol[:n]; return r
    KG, TT = X, 32
    retry = []
    def validated(load, check, tag, cnt):
        lr = g.lab('gr'); lo = g.lab('go'); l2 = g.lab('gq')
        g.waitvm(tag); check()
        e(f"s_cbranch_vccnz {lr}" if not o.get('noval') else "s_nop 0", lo+":")
        def rt():
            e(lr+":", f"s_mov_b32 s{S_T0}, {o.get('timeout', 200000)}", l2+":", f"s_sleep {o.get('rsleep', 4)}"); g.count(cnt); load(False)
            e(f"s_sub_u32 s{S_T0}, s{S_T0}, 1", "s_waitcnt vmcnt(0)", f"s_cbranch_scc1 {lo}"); check()
            e(f"s_cbranch_vccnz {l2}", f"s_branch {lo}", g.lab('role_c')+":")
        retry.append(g.capture(rt))
    def gload(i, track=True):
        e(f"s_add_u32 s{S_T1}, s{S_KVG}, {4096*i}")
        for k in range(4):
            x = f"buffer_load_dwordx4 {vr(KG+16*i+4*k,4)}, v{V_L16}, {sr(S_WS,4)}, s{S_T1} offen offset:{1024*k} sc1"
            g.vmem(x, f'kg{i}') if track else e(x)
    def gcheck(i):
        e(f"v_xor_b32 v{TT+6}, s{S_NON}, v{KG+16*i+3}")
        for k in range(1, 4): e(f"v_bitop3_b32 v{TT+6}, v{TT+6}, s{S_NON}, v{KG+16*i+4*k+3} bitop3:0xf6")
        e(f"v_cmp_ne_u32 vcc, 0, v{TT+6}")
    G1, G2 = X, 68
    def load1(track=True):
        for i in range(4):
            x = f"buffer_load_dwordx4 {vr(G1+4*i,4)}, v{V_L16}, {sr(S_WS,4)}, s{S_KVG} offen offset:{256*i} sc1"
            g.vmem(x, 'kg1') if track else e(x)
    def check1():
        e(f"v_xor_b32 v{TT+6}, s{S_NON}, v{G1+3}")
        for i in range(1, 4): e(f"v_bitop3_b32 v{TT+6}, v{TT+6}, s{S_NON}, v{G1+4*i+3} bitop3:0xf6")
        e(f"v_cmp_ne_u32 vcc, 0, v{TT+6}")
    def load2(track=True):
        x = f"buffer_load_dwordx4 {vr(G2,4)}, v{V_L16}, {sr(S_WS,4)}, s{S_ZG} offen sc1"
        g.vmem(x, 'kg2') if track else e(x)
    def check2(): e(f"v_cmp_ne_u32 vcc, s{S_NON}, v{G2+3}")
    ggr = [] if H2 else [g.capture(lambda i=i: gload(i)) for i in range(4)]
    def first():
        g.prio('t_m')
        g.poll_wait(VBO, S_B, '0xffff', VKW, False, 0x100, o.get('hint_lag', 8))
        if H2:
            e("s_mov_b64 exec, 0xffff"); load1(); e("s_mov_b64 exec, -1")
            e(f"s_add_u32 s{S_B}, s{S_B}, 64", f"s_add_u32 s{S_B+1}, s{S_B+1}, 64")
            if o.get('hint2_at', 0) == 0: g.setflag(S_B+1, VKR, False)
        else:
            for _ in range(o.get('g_pre', 2)): g.play(ggr.pop(0))
        g.prio('t_m2')
    hooks = {}
    if o.get('kpoll_at', 2) >= 0: hooks[o.get('kpoll_at', 2)] = lambda: g.poll_issue(VBO, S_B, '0xffff', VKW, False)
    mid = o.get('mid_at')
    if mid is not None:
        assert mid >= 16
        hooks[mid] = first
    wgemm(0, True, wo_issue('q'), o.get('wo1_start', 4), o.get('wo1_end', 20), hooks=hooks)
    assert len(wol) >= 8
    g.arrive(4, RING); g.prio('t_g')
    g.stamp(7)
    if mid is None: first()
    else:
        for _ in range(min(len(ggr), o.get('g_post', 2))): g.play(ggr.pop(0))
    ng = 0
    g.cvt16(KP, ACC, 8); g.mfma(DA, WPA, KP); g.cvt16(KP+4, ACC+8, 8); g.mfma(DB, WPB, KP+4)
    sm = softmax_np if o.get('smq_np') else softmax
    def hop1():
        e(f"s_mov_b32 s{S_NM}, 0x3f80", f"s_mov_b32 s{S_NM+1}, 0x3f800000", f"v_mov_b32 v{TT+11}, s{S_NON}", "s_mov_b64 exec, 0xffff")
        validated(load1, check1, 'kg1', 1)
        e(f"v_lshlrev_b32 v{TT}, 16, v{G1}", f"v_and_b32 v{TT+1}, 0xffff0000, v{G1}", f"v_lshlrev_b32 v{TT+2}, 16, v{G1+1}", f"v_and_b32 v{TT+3}, 0xffff0000, v{G1+1}",
          f"v_add_f32 v{TT+4}, v{G1+2}, v{G1+6}")
        for i in range(1, 4):
            r = G1+4*i
            e(f"v_dot2c_f32_bf16 v{TT}, s{S_NM}, v{r}", f"v_dot2c_f32_bf16 v{TT+1}, s{S_NM+1}, v{r}", f"v_dot2c_f32_bf16 v{TT+2}, s{S_NM}, v{r+1}", f"v_dot2c_f32_bf16 v{TT+3}, s{S_NM+1}, v{r+1}")
            if i > 1: e(f"v_add_f32 v{TT+4}, v{TT+4}, v{r+2}")
        for md in ("row_ror:4", "row_ror:8"):
            for k in (4, 0, 1, 2, 3): e(f"v_add_f32_dpp v{TT+k}, v{TT+k}, v{TT+k} {md} row_mask:0xf bank_mask:0xf")
        e(f"v_cvt_pk_bf16_f32 v{TT+10}, v{TT+4}, v{TT+4}", f"v_cvt_pk_bf16_f32 v{TT+8}, v{TT}, v{TT+1}", f"v_cvt_pk_bf16_f32 v{TT+9}, v{TT+2}, v{TT+3}", "s_mov_b64 exec, 15")
        g.vmem(f"buffer_store_dwordx4 {vr(TT+8,4)}, v{V_L16}, {sr(S_WS,4)}, s{S_ZP} offen sc1", 'kvst2')
        e("s_mov_b64 exec, -1")
        if o.get('hint2_at', 0) == 1: g.setflag(S_B+1, VKR, False)
        if not o.get('p2_sm'): g.poll_issue(VBO, S_B, '0xffff', VKW, False)
    l2done = False
    if H2 and o.get('hop1_mid', 1) == 2:
        both = g.capture(lambda: (sm(g, DA, PA, RING), sm(g, DB, PB, RING)))
        n1, n2 = o.get('h1_sm', 0), o.get('h2_sm', len(both))
        g.play(both[:n1]); hop1()
        if o.get('p2_sm'):
            g.play(both[n1:o['p2_sm']]); g.poll_issue(VBO, S_B, '0xffff', VKW, False); n1 = o['p2_sm']
        g.play(both[n1:n2])
        if n2 < len(both):
            g.poll_wait(VBO, S_B, '0xffff', VKW, False, 0x100, o.get('hint_lag', 8)); load2(); l2done = True
            g.play(both[n2:])
    elif H2 and o.get('hop1_mid', 1):
        sm(g, DA, PA, RING); hop1(); sm(g, DB, PB, RING)
    else:
        g.weave(g.capture(lambda: (sm(g, DA, PA, RING), sm(g, DB, PB, RING))), ggr[ng:], o.get('g_start', 40), o.get('g_end', 120))
        if H2: hop1()
    g.rwait(4, TT)
    for x in wo_issue('g'): g.play(x)
    e(f"s_lshl_b32 s{S_T0}, s{S_W}, 3", f"s_add_u32 s{S_T0}, s{S_T0}, {L_KVD}", f"v_lshlrev_b32 v106, 5, v0", f"v_add_u32 v102, s{S_T0}, v106", f"v_add_u32 v106, {L_KVD}, v106")
    e("v_bfe_u32 v103, v0, 4, 1", "v_lshlrev_b32 v103, 5, v103", "v_lshrrev_b32 v107, 5, v0", "v_lshl_add_u32 v103, v107, 3, v103", "v_bfe_u32 v107, v0, 2, 2", "v_lshl_add_u32 v103, v107, 1, v103",
      f"s_lshr_b32 s{S_T0}, s{S_W}, 1", f"s_lshl_b32 s{S_T0}, s{S_T0}, 6", f"s_and_b32 s{S_T1}, s{S_W}, 1", f"s_lshl_b32 s{S_T1}, s{S_T1}, 4", f"s_add_u32 s{S_T0}, s{S_T0}, s{S_T1}",
      f"s_add_u32 s{S_T0}, s{S_T0}, {L_ZD}", f"v_add_u32 v103, s{S_T0}, v103")
    e("v_and_b32 v107, 32, v0", f"v_add_u32 v107, {L_ZD}, v107", f"v_cndmask_b32 v104, v107, v106, {sr(S_M,2)}", "v_add_u32 v107, 64, v107", f"v_cndmask_b32 v105, v106, v107, {sr(S_M,2)}")
    e(f"s_lshl_b32 s{S_T0}, s{S_C}, 2", f"s_add_u32 s{S_T0}, s{S_T0}, s{S_W}", f"s_lshl_b32 s{S_T0}, s{S_T0}, 8", f"s_lshr_b32 s{S_T1}, s{S_J}, 3", f"s_lshl_b32 s{S_T1}, s{S_T1}, 7",
      f"s_add_u32 s{S_T0}, s{S_T0}, s{S_T1}", f"s_and_b32 s{S_T1}, s{S_J}, 7", f"s_lshl_b32 s{S_T1}, s{S_T1}, {2 if OCK else 3}", f"s_add_u32 s{S_T0}, s{S_T0}, s{S_T1}", f"s_add_u32 s{S_B+1}, s{S_T0}, {WS_FLAGS+FL_O}")
    e(f"s_mov_b32 s{S_T2}, 0x3f80", f"s_mov_b32 s{S_T3}, 0x3f800000")
    g.stamp(8)
    if H2:
        if not l2done:
            g.poll_wait(VBO, S_B, '0xffff', VKW, False, 0x100, o.get('hint_lag', 8))
            load2()
        if oh == -1: g.setflag(S_B+1, TT+6, False)
        for x in wo_issue('l'): g.play(x)
        validated(load2, check2, 'kg2', 1)
        if oh == 0: g.setflag(S_B+1, TT+6, False)
        g.stamp(9)
        e(f"ds_write_b64 v102, {vr(G2,2)}", f"ds_write_b16 v103, v{G2+2}")
    else:
        for i in range(4):
            validated(lambda t, i=i: gload(i, t), lambda i=i: gcheck(i), f'kg{i}', 1)
            if i == 3 and oh == 0: g.setflag(S_B+1, TT+6, False)
            for k in range(4):
                r = KG+16*i+4*k
                if i == 0 and k == 0:
                    e(f"v_lshlrev_b32 v{TT}, 16, v{r}", f"v_and_b32 v{TT+1}, 0xffff0000, v{r}", f"v_lshlrev_b32 v{TT+2}, 16, v{r+1}", f"v_and_b32 v{TT+3}, 0xffff0000, v{r+1}")
                    continue
                e(f"v_dot2c_f32_bf16 v{TT}, s{S_T2}, v{r}", f"v_dot2c_f32_bf16 v{TT+1}, s{S_T3}, v{r}", f"v_dot2c_f32_bf16 v{TT+2}, s{S_T2}, v{r+1}", f"v_dot2c_f32_bf16 v{TT+3}, s{S_T3}, v{r+1}",
                  f"v_add_f32 v{TT+4}, v{KG+2 if (i == 0 and k == 1) else TT+4}, v{r+2}")
        g.stamp(9)
        e(f"v_cvt_pk_bf16_f32 v{TT+4}, v{TT+4}, v{TT+4}", f"ds_write_b16 v103, v{TT+4}", f"v_cvt_pk_bf16_f32 v{TT}, v{TT}, v{TT+1}", f"v_cvt_pk_bf16_f32 v{TT+1}, v{TT+2}, v{TT+3}", f"ds_write_b64 v102, {vr(TT,2)}")
    wo_in = not wol and o.get('wo_sync5', 1)
    if wo_in: g.waitvm('wo')
    g.arrive(5, 36)
    for x in wo_issue('s'): g.play(x)
    g.rwait(5, 36)
    if oh == 1: g.setflag(S_B+1, TT+6, False)
    g.stamp(10)
    for a in range(2): e(f"ds_read_b128 {vr(32+4*a,4)}, v104 offset:{16*a}", f"ds_read_b128 {vr(40+4*a,4)}, v105 offset:{16*a}")
    VL4 = 21
    e(f"s_mov_b32 s{S_T1}, 0x358637bd", f"v_lshlrev_b32 v{VL4}, {2 if OCK else 3}, v0")
    e("s_waitcnt lgkmcnt(3)"); g.mfma(48, 32, PA)
    e("s_waitcnt lgkmcnt(1)"); g.mfma(48, 36, PA+4, 48); g.mfma(64, 40, PB)
    e("s_waitcnt lgkmcnt(0)"); g.mfma(64, 44, PB+4, 64)
    rowhalf(g, S_T0)
    e(f"s_lshl_b32 s{S_T0}, s{S_T0}, 1", f"s_and_b32 s{S_T2}, s{S_W}, 1", f"s_add_u32 s{S_T0}, s{S_T0}, s{S_T2}",
      f"s_lshr_b32 s{S_T2}, s{S_W}, 1", f"s_lshl_b32 s{S_T2}, s{S_T2}, 3",
      f"s_lshl_b32 s{S_KX}, s{S_C}, 2", f"s_add_u32 s{S_KX}, s{S_KX}, s{S_T0}", f"s_lshl_b32 s{S_KX}, s{S_KX}, 4", f"s_add_u32 s{S_KX}, s{S_KX}, s{S_T2}",
      f"s_lshl_b32 s{S_B}, s{S_KX}, 4", f"s_add_u32 s{S_B}, s{S_B}, {WS_FLAGS+FL_O}")
    for hd, num, den in ((0, 48, 56), (1, 72, 64)):
        e(f"v_add_f32 v{den}, s{S_T1}, v{den}", f"v_rcp_f32 v{den}, v{den}")
        for i in range(8): e(f"v_mul_f32 v{num+i}, v{num+i}, v{den}")
        g.cvt16(80+4*hd, num, 8)
        g.vmem(f"buffer_store_dwordx4 {vr(80+4*hd,4)}, v{V_L16}, {sr(S_WS,4)}, s{S_OST} offen offset:{1024*hd} sc1", 'ost')
    if OCK:
        e("v_add3_u32 v88, v80, v81, v82", "v_add3_u32 v88, v88, v83, v84", "v_add3_u32 v88, v88, v85, v86", "v_add_u32 v88, v88, v87", f"v_sub_u32 v88, s{S_NON}, v88")
        g.vmem(f"buffer_store_dword v88, v{VL4}, {sr(S_WS,4)}, s{S_OST} offen offset:2048 sc1", 'ost')
    if oh == 2: g.setflag(S_B+1, 34, False)
    g.stamp(11)
    g.prio('t_o')
    if OCK:
        final_preload(g, 34)
        if not o.get('opoll_late'): g.poll_issue(VL4, S_B, '0xff', 104, False)
        for x in wol: g.play(x)
    else:
        for x in wo_issue('o'): g.play(x)
    e(f"s_mul_i32 s{S_KX}, s{S_KX}, {RO}", f"s_add_u32 s{S_KX}, s{S_KX}, {WS_A2O}", f"s_mov_b32 s{S_NN}, s{S_NON}", f"s_mov_b32 s{S_NN+1}, s{S_NON}")
    e("v_lshrrev_b32 v96, 5, v0", "v_bfe_u32 v97, v0, 2, 2", "v_lshl_add_u32 v96, v96, 3, v97", "v_lshlrev_b32 v96, 7, v96", "v_bfe_u32 v97, v0, 3, 1", "v_lshl_add_u32 v96, v97, 6, v96",
      "v_bfe_u32 v97, v0, 4, 1", "v_lshl_add_u32 v96, v97, 5, v96", "v_and_b32 v97, 3, v0", "v_lshl_add_u32 v96, v97, 3, v96",
      f"s_lshr_b32 s{S_T0}, s{S_W}, 1", f"s_lshl_b32 s{S_T0}, s{S_T0}, 15", f"s_add_u32 s{S_T0}, s{S_T0}, {TREG}", f"v_add_u32 v96, s{S_T0}, v96", "v_xor_b32 v97, 64, v96")
    def trreads():
        if not wo_in: g.waitvm('wo'); g.arrive(6, 100); g.rwait(6, 100)
        for ks in range(16):
            for ch in range(2):
                for i in range(2): e(f"ds_read_b64_tr_b16 {vr(X+8*ks+4*ch+2*i,2)}, v{96+ch} offset:{ks*2048+i*512}")
        g.arrive(7, 100)
    if not OCK:
        trd = False
        if wo_in: trreads(); trd = True
        g.waitvm('ost'); g.setflag(S_B+1, 34)
        for x in wol: g.play(x)
        final_preload(g, 34)
        if not trd and o.get('tr_first', 1): trreads(); trd = True
        e(f"s_lshl_b32 s{S_T0}, s{S_W}, 13", f"s_add_u32 s{S_T0}, s{S_T0}, {TREG}"); part_addr(g, 6, 36, S_T0)
        if o.get('o_delay'): e(f"s_sleep {o['o_delay']}")
        g.poll_issue(VL4, S_B, '0xff', 104)
        if not trd: trreads()
        final_setup(g)
        g.stamp(12); g.prio('t_a')
        g.poll_wait(VL4, S_B, '0xff', 104, True, 0x10000)
        g.stamp(13)
        for k4 in range(4):
            if k4: e(f"s_add_u32 s{S_KX}, s{S_KX}, 4096")
            for k in range(4): g.vmem(f"buffer_load_dwordx4 {vr(32+16*k4+4*k,4)}, v{V_L16}, {sr(S_WS,4)}, s{S_KX} offen offset:{1024*k} sc1", f'a{4*k4+k}')
        g.rwait(7, 100)
        for ks in range(16):
            g.waitvm(f'a{ks}')
            for ch in range(2): g.mfma(96+16*ch, X+8*ks+4*ch, 32+4*ks, None if ks == 0 else 96+16*ch)
    else:
        rs = RecStream(g, 4, 4, 32, 8, 30, VL4, lambda i, r: (S_KX, (2*i+r)*RECO), S_KX+1, S_KX+2)
        tr_first = o.get('tr_first', 1)
        keep = None
        if tr_first: trreads()
        if o.get('opoll_late'): g.poll_issue(VL4, S_B, '0xff', 104, False)
        final_setup(g)
        g.stamp(12); g.prio('t_a')
        g.poll_wait(VL4, S_B, '0xff', 104, False, 0x10000, o.get('ohint_lag', 8))
        nl = 4 if tr_first else o.get('a2o_pre', 2)
        for i in range(nl): rs.load(i)
        if not tr_first: trreads()
        for i in range(nl, 4): rs.load(i)
        g.rwait(7, 100)
        g.stamp(13)
        for i in range(4):
            rs.need(i, range(i+1, 4))
            for r in range(2):
                for a in range(2):
                    ks = 4*i+2*r+a
                    for ch in range(2): g.mfma(96+16*ch, X+8*ks+4*ch, rs.frag(i, r, a), None if ks == 0 else 96+16*ch)
            if i == 2:
                e(f"s_lshl_b32 s{S_T0}, s{S_W}, 13", f"s_add_u32 s{S_T0}, s{S_T0}, {TREG}"); part_addr(g, 6, 10, S_T0)
        retry += rs.cold
    g.stamp(14)
    for ch in range(2):
        for q in range(4): e(f"ds_write_b128 v{6+q}, {vr(96+16*ch+4*q,4)} offset:{ch*128}")
    e("s_branch L_final")
    e("L_role_cold:")
    for r in retry: g.play(r)

def roleS_start(g):
    e = g.e; o = g.o
    g.vm = []
    VXA, VBA = 12, 6
    e("L_roleS:", "s_setprio 2")
    if o.get('codepre', 1):
        e(f"s_getpc_b64 {sr(S_KX,2)}", "L_pc:",
          f"s_sub_u32 s{S_KX}, s{S_KX}, L_pc-{KNAME}_kernel", f"s_subb_u32 s{S_KX+1}, s{S_KX+1}, 0",
          f"s_lshr_b32 s{S_T0}, s2, 3", f"s_lshl_b32 s{S_T0}, s{S_T0}, 2", f"s_add_u32 s{S_T0}, s{S_T0}, s{S_W}", f"s_lshl_b32 s{S_T0}, s{S_T0}, 8",
          f"v_lshl_add_u32 v98, v0, 7, s{S_T0}", f"v_min_u32 v98, L_codeend-4-{KNAME}_kernel, v98", "s_mov_b64 exec, 3", f"global_load_dword v99, v98, {sr(S_KX,2)}", "s_mov_b64 exec, -1")
    e("v_and_b32 v96, 19, v0", "v_bfe_u32 v97, v0, 2, 1", "v_lshl_add_u32 v96, v97, 3, v96", "v_bfe_u32 v97, v0, 3, 1", "v_lshl_add_u32 v96, v97, 2, v96",
      f"s_lshl_b32 s{S_T0}, s{S_J}, 5", f"v_add_u32 v96, s{S_T0}, v96", "v_lshlrev_b32 v96, 1, v96")
    e(f"s_lshl_b32 s{S_T0}, s{S_R0}, 3", f"s_bitcmp1_b32 s{S_W}, 0", f"s_cselect_b32 s{S_T0}, 0, s{S_T0}", f"s_cselect_b32 s{S_T1}, {L_WPHI-L_GATE}, 0", f"s_add_u32 m0, s{S_T1}, {L_GATE}",
      f"v_add_u32 v97, s{S_T0}, v0", "v_and_b32 v97, 63, v97", "v_lshlrev_b32 v97, 4, v97", f"s_mov_b32 s{S_X+2}, 1024", f"s_mov_b32 s{S_X+3}, 0x20000", f"s_lshl_b32 s{S_T1}, s{S_J}, 10")
    frag_addr(g, VBA, 104, base_c=L_BSL)
    e(f"s_sub_u32 s{S_T0}, s{S_M}, {L_BSL}")
    for k in range(4): e(f"v_add_u32 v{VXA+k}, s{S_T0}, v{VBA+k}")
    e(f"v_mov_b32 v114, {WS_EPOCH}")
    e("s_waitcnt lgkmcnt(0)")
    e(f"s_add_u32 s{S_X}, s{P_WPHI}, s{S_T1}", f"s_addc_u32 s{S_X+1}, s{P_WPHI+1}, 0", f"s_bitcmp1_b32 s{S_W}, 0", f"s_cselect_b64 {sr(S_X,2)}, {sr(S_X,2)}, {sr(P_GATE,2)}")
    e(f"global_load_ushort v100, v96, {sr(P_LDT,2)}", f"global_load_ushort v101, v96, {sr(P_LRE,2)}", f"global_load_ushort v102, v96, {sr(P_LIM,2)}",
      f"global_load_dword v114, v114, {sr(P_WS,2)} sc1")
    e(f"s_cmp_ge_u32 s{S_W}, 2", "s_cbranch_scc1 L_s1", f"buffer_load_dwordx4 v97, {sr(S_X,4)}, 0 offen lds", "L_s1:")
    if o.get('spre'): scalar_prefetch(g, [(P_WO, 512, 0, 4, 128), (P_WQKV, 1536, 0, 4, 128)] if o['spre'] == 1 else [(P_WO, 512, 0, 4, 128)])
    e("s_branch L_role_Smain")

def roleS(g):
    e = g.e; o = g.o
    g.vm = []
    VXA, VBA = 12, 6
    LR, LI, L16R, L16I, LSR, LSI, W0R, W0I, W1R, W1I, CR, CI = range(16, 28)
    PSR, PSI, ER, EI = 28, 29, 30, 31
    VE0, VE1, VSEGR, VN8 = 32, 33, 34, 35
    VCO = 36
    SEL = 40
    UR, UI, RP = 48, 64, 80
    T = 96
    FB = 128
    e("L_role_Smain:", f"s_setprio {o.get('sprioA', 0)}")
    g.srd(S_WS, P_WS, None, WS_SIZE)
    common_late(g)
    make_sel(g, SEL, 104)
    e(f"s_lshl_b32 s{S_T0}, s{S_W}, 9", f"s_add_u32 s{S_T0}, s{S_T0}, {L_SEGZ}", f"v_lshl_add_u32 v{VSEGR}, v0, 3, s{S_T0}", "v_mov_b32 v104, 0", "v_mov_b32 v105, 0")
    e(f"ds_write_b64 v{VSEGR}, v[104:105]")
    g.arrive(0, 104)
    e(f"v_and_b32 v{VN8}, 31, v0", f"v_lshlrev_b32 v{VN8}, 3, v{VN8}")
    e("v_lshrrev_b32 v106, 5, v0", f"s_lshl_b32 s{S_T0}, s{S_W}, 2", f"v_add_u32 v107, s{S_T0}, v106", "v_add_u32 v108, 2, v107")
    e(f"s_lshl_b32 s{S_T0}, s{S_J}, 13", f"s_add_u32 s{S_T0}, s{S_T0}, {WS_E}", f"v_lshl_add_u32 v109, v{VN8}, 1, s{S_T0}", "v_mov_b32 v110, 0x7ffffff0")
    M0, M1 = S_KW, S_KW+2
    S_EST, S_HST = S_KW+4, S_KW+5
    for i, (cp, m, d) in enumerate(((107, M0, VE0), (108, M1, VE1))):
        e(f"v_cmp_gt_u32 {sr(m,2)}, s{S_C}, v{cp}", f"v_lshl_add_u32 v{d}, v{cp}, 9, v109", f"v_cndmask_b32 v{d}, v110, v{d}, {sr(m,2)}")
        e(f"v_sub_u32 v{cp}, s{S_C}, v{cp}", f"v_add_u32 v{cp}, -1, v{cp}", f"v_max_i32 v{cp}, 0, v{cp}", f"v_lshlrev_b32 v{cp}, 7, v{cp}", f"v_cvt_f32_u32 v{cp}, v{cp}")
    e(f"s_lshl_b32 s{S_T0}, s{S_W}, 1", f"v_add_u32 v106, s{S_T0}, v106", "v_lshlrev_b32 v106, 4, v106", "v_cvt_f32_u32 v106, v106")
    e(f"s_mov_b32 s{S_T2}, {LOG2E}")
    colblk(g, S_T0)
    e(f"s_lshl_b32 s{S_T0}, s{S_T0}, 16", f"s_lshl_b32 s{S_T1}, s{S_W}, 8", f"s_add_u32 s{S_T0}, s{S_T0}, s{S_T1}")
    g.srd(S_A, P_CRE, S_T0, 524288); g.srd(S_B, P_CIM, S_T0, 524288)
    e(f"s_lshl_b32 s{S_M0B}, s{S_W}, 14", f"s_add_u32 s{S_M0B}, s{S_M0B}, {SREG}")
    e(f"v_lshrrev_b32 v{VCO}, 3, v0", f"v_lshlrev_b32 v{VCO}, 10, v{VCO}", f"v_and_b32 v109, 7, v0", f"v_lshrrev_b32 v110, 4, v0", f"v_xor_b32 v109, v109, v110",
      f"v_lshl_add_u32 v{VCO}, v109, 4, v{VCO}", f"v_xor_b32 v{VCO+1}, 64, v{VCO}", f"v_add_u32 v{VCO+2}, {2*7168}, v{VCO}", f"v_add_u32 v{VCO+3}, {3*7168}, v{VCO+1}", f"v_add_u32 v{VCO+1}, 7168, v{VCO+1}")
    e(f"s_lshl_b32 s{S_T0}, s{S_J}, 4", f"s_add_u32 s{S_T0}, s{S_T0}, s{S_C}", f"s_lshl_b32 s{S_T0}, s{S_T0}, 9", f"s_add_u32 s{S_EST}, s{S_T0}, {WS_E}")
    e(f"s_lshl_b32 s{S_T0}, s{S_C}, 2", f"s_add_u32 s{S_T0}, s{S_T0}, s{S_W}", f"s_lshl_b32 s{S_T0}, s{S_T0}, 4", f"s_add_u32 s{S_T0}, s{S_T0}, s{S_J}",
      f"s_mul_i32 s{S_T0}, s{S_T0}, {2*REC}", f"s_add_u32 s{S_HST}, s{S_T0}, {WS_A2H}", "v_lshlrev_b32 v5, 2, v0")
    S_EF, S_EPL, M2 = S_WK, S_WK+1, S_WK+2
    e(f"s_lshl_b32 s{S_T0}, s{S_J}, 9", f"s_add_u32 s{S_T0}, s{S_T0}, {WS_FLAGS+FL_E}", f"s_lshl_b32 s{S_T1}, s{S_W}, 7", f"s_add_u32 s{S_EPL}, s{S_T0}, s{S_T1}",
      f"s_lshr_b32 s{S_T1}, s{S_C}, 2", f"s_lshl_b32 s{S_T1}, s{S_T1}, 7", f"s_add_u32 s{S_T0}, s{S_T0}, s{S_T1}", f"s_and_b32 s{S_T1}, s{S_C}, 3", f"s_lshl_b32 s{S_T1}, s{S_T1}, 2",
      f"s_add_u32 s{S_EF}, s{S_T0}, s{S_T1}", f"s_lshl_b32 s{S_T0}, s{S_W}, 2", f"s_sub_i32 s{S_T0}, s{S_C}, s{S_T0}", f"s_max_i32 s{S_T0}, s{S_T0}, 0", f"s_min_i32 s{S_T0}, s{S_T0}, 4",
      f"s_bfm_b64 {sr(M2,2)}, s{S_T0}, 0")
    if o.get('flagwarm', 1):
        e(f"s_cmp_lg_u32 s{S_W}, 3", "s_cbranch_scc1 L_s7", "s_cmp_ge_u32 s2, 192", "s_cbranch_scc1 L_s7", f"s_lshl_b32 s{S_T0}, s2, 8", f"s_add_u32 s{S_T0}, s{S_T0}, {WS_FLAGS}",
          "v_lshlrev_b32 v109, 7, v0", "v_mov_b32 v110, 0", "s_mov_b64 exec, 3", f"buffer_atomic_add v110, v109, {sr(S_WS,4)}, s{S_T0} offen sc1", "s_mov_b64 exec, -1", "L_s7:")
    def cpow(dr, di, n):
        if n is None: e("v_exp_f32 v111, v103", "v_rndne_f32 v113, v104", "v_sub_f32 v112, v104, v113")
        else: e(f"v_mul_f32 v111, {n}, v103", f"v_mul_f32 v112, {n}, v104", "v_exp_f32 v111, v111", "v_rndne_f32 v113, v112", "v_sub_f32 v112, v112, v113")
        e(f"v_cos_f32 v{dr}, v112", f"v_sin_f32 v{di}, v112", f"v_mul_f32 v{dr}, v111, v{dr}", f"v_mul_f32 v{di}, v111, v{di}")
    def params():
        e("v_lshlrev_b32 v100, 16, v100", "v_lshlrev_b32 v101, 16, v101", "v_lshlrev_b32 v102, 16, v102")
        e(f"v_mul_f32 v100, s{S_T2}, v100", "v_exp_f32 v100, v100", "v_cvt_pk_bf16_f32 v100, v100, v100", "v_lshlrev_b32 v100, 16, v100")
        e("v_mul_f32 v103, v100, v101", f"v_mul_f32 v103, s{S_T2}, v103", "v_mul_f32 v104, v100, v102", "v_mul_f32 v104, 0.15915494, v104")
        cpow(LR, LI, None); cpow(L16R, L16I, "0x41800000"); cpow(LSR, LSI, "v106"); cpow(W0R, W0I, "v107"); cpow(W1R, W1I, "v108")
        e(f"v_add_f32 v111, -1.0, v{LR}", "v_mul_f32 v112, v101, v101", "v_fmac_f32 v112, v102, v102", "v_rcp_f32 v112, v112",
          f"v_mul_f32 v{CR}, v111, v101", f"v_fmac_f32 v{CR}, v{LI}, v102", f"v_mul_f32 v{CI}, v{LI}, v101", f"v_fma_f32 v{CI}, -v111, v102, v{CI}",
          "v_add_f32 v112, v112, v112", f"v_mul_f32 v{CR}, v{CR}, v112", f"v_mul_f32 v{CI}, v{CI}, v112")
        e(f"v_mov_b32 v{T+18}, s{S_NON}", f"v_mov_b32 v{T+19}, s{S_NON+1}", f"v_lshlrev_b32 v{T+20}, 1, v{VN8}")
    par = g.capture(params)
    def touch_c():
        l = g.lab('tc')
        e(f"s_cmp_eq_u32 s{S_W}, 3", f"s_cbranch_scc1 {l}", f"s_lshl_b32 s{S_T0}, s2, 11", f"v_lshl_add_u32 v10, v0, 7, s{S_T0}",
          f"s_cmp_eq_u32 s{S_W}, 1", f"s_cselect_b64 {sr(S_KX,2)}, {sr(P_CIM,2)}, {sr(P_CRE,2)}", f"s_cmp_eq_u32 s{S_W}, 2", f"s_cselect_b64 {sr(S_KX,2)}, {sr(P_WO,2)}, {sr(S_KX,2)}",
          "s_mov_b64 exec, 0xffff", f"global_load_dword v10, v10, {sr(S_KX,2)} ; touch", "s_mov_b64 exec, -1", l+":")
    def touch_w(which):
        l = g.lab('tw')
        e(f"s_cmp_lg_u32 s{S_W}, 3", f"s_cbranch_scc1 {l}", f"s_mul_i32 s{S_T0}, s2, 6144", "v_bfe_u32 v11, v0, 3, 1", "v_mul_u32_u24 v11, 3072, v11", "v_and_b32 v117, 23, v0", "v_lshl_add_u32 v11, v117, 7, v11", f"v_add_u32 v11, s{S_T0}, v11",
          f"s_mov_b32 exec_lo, {hex({1:0xffff0000,2:0xffff,3:0xffffffff}[which])}", "s_mov_b32 exec_hi, 0", f"global_load_dword v11, v11, {sr(P_WQKV,2)} ; touch", "s_mov_b64 exec, -1", l+":")
    def touch_x(ptrs, glob):
        l = g.lab('tx')
        if len(ptrs) == 1: e(f"s_cmp_ge_u32 s{S_W}, 2", f"s_cbranch_scc1 {l}")
        e(f"s_lshr_b32 s{S_T0}, s2, {0 if glob else 3}", f"s_lshl_b32 s{S_T0}, s{S_T0}, 1", f"s_and_b32 s{S_T1}, s{S_W}, 1", f"s_add_u32 s{S_T0}, s{S_T0}, s{S_T1}", f"s_lshl_b32 s{S_T0}, s{S_T0}, 13")
        if glob: e(f"s_add_u32 s{S_T0}, s{S_T0}, {32<<20}")
        e(f"v_lshl_add_u32 v118, v0, 7, s{S_T0}", f"s_cmp_ge_u32 s{S_W}, 2", f"s_cselect_b64 {sr(S_KX+2,2)}, {sr(ptrs[-1],2)}, {sr(ptrs[0],2)}",
          f"global_load_dword v118, v118, {sr(S_KX+2,2)} ; touch", l+":")
    def touches(s):
        if o.get('xpre', (None,))[0] == s: touch_x(*o['xpre'][1:])
        if o.get('vpre', 3) == s: touch_c()
        if o.get('wpre', (None,))[0] == s: touch_w(o['wpre'][1])
    touches(-1)
    g.stamp(0)
    def mm(s):
        b = FB+48*(s&1); r = []
        for k in range(4):
            first = (s == 0 and k == 0)
            r.append(g.capture(lambda: g.mfma(UR, b+12*k, b+12*k+4, None if first else UR)))
            r.append(g.capture(lambda: g.mfma(UI, b+12*k, b+12*k+8, None if first else UI)) if (k >= o.get('drop', 0) or first) else [])
            if k < o.get('burn', 0): r[-1] = r[-1] + g.capture(lambda: g.mfma(RP, b+12*k+4, b+12*k+8, None))
        return r
    for s in range(8):
        e("s_waitcnt lgkmcnt(0)", "s_barrier")
        if s == 0: g.stamp(1)
        b = FB+48*(s&1)
        rd = []
        for k in range(4):
            rd += [f"ds_read_b128 {vr(b+12*k,4)}, v{VXA+k} offset:{xsl(s)}",
                   f"ds_read_b128 {vr(b+12*k+4,4)}, v{VBA+k} offset:{(s%3)*8192}",
                   f"ds_read_b128 {vr(b+12*k+8,4)}, v{VBA+k} offset:{(s%3)*8192+4096}"]
        if s == 0:
            e(*rd); g.waitvm0(); epoch_use(g, 114)
        else:
            m = mm(s-1)
            for k in range(8):
                g.play(m[k])
                if k < 4: e(*rd[3*k:3*k+3])
                else:
                    g.play(par[:4]); par = par[4:]
        touches(s)
    assert not par
    g.prio('s_b7')
    m = mm(7)
    for k in range(8):
        if k % 2 == 0: e(f"s_waitcnt lgkmcnt({9-3*(k//2)})")
        g.play(m[k])
    e(f"s_sub_u32 s{S_T0}, s{S_M0B}, {L_BSL}")
    for k in range(4): e(f"v_add_u32 v{VBA+k}, s{S_T0}, v{VBA+k}")
    if o.get('ehint_early', 1):
        e(f"s_cmp_lg_u32 s{S_W}, 3", "s_cbranch_scc1 L_s8", "s_mov_b64 exec, 1", f"buffer_store_dword v{T+18}, off, {sr(S_WS,4)}, s{S_EF} sc1", "s_mov_b64 exec, -1", "L_s8:")
    g.stamp(2)
    def c_groups(pc):
        part, kh2 = pc & 1, pc >> 1; r = []
        for q in range(8):
            def f(q=q):
                if q % 4 == 0: e(f"s_add_u32 m0, s{S_M0B}, {(pc&1)*8192 + q*1024}", f"s_mov_b32 s{S_DS}, {kh2*128 + q*8192}")
                g.vmem(f"buffer_load_dwordx4 v{VCO+q%4}, {sr(S_A if part == 0 else S_B,4)}, s{S_DS} offen offset:{1024*(q%4)} lds", f'c{pc}')
            r.append(g.capture(f))
        return r
    def dma_c(pc):
        for x in c_groups(pc): g.play(x)
    def creg(jj, part, a, ch): return FB + 4*(((jj*2+part)*2+a)*2+ch)
    def read_c(pc):
        part, kh2 = pc & 1, pc >> 1
        for ks in range(4):
            for ch in range(2): e(f"ds_read_b128 {vr(creg(2*kh2+(ks>>1), part, ks&1, ch),4)}, v{VBA+ks} offset:{(pc&1)*8192+ch*4096}")
    g.prio('s_p1')
    pr, pi = UR, UI
    for t in range(1, 16):
        nr, ni = (ER, EI) if t & 1 else (T, T+1)
        e(f"v_fma_f32 v{nr}, v{LR}, v{pr}, v{UR+t}", f"v_fma_f32 v{ni}, v{LR}, v{pi}, v{UI+t}", f"v_fma_f32 v{nr}, -v{LI}, v{pi}, v{nr}", f"v_fma_f32 v{ni}, v{LI}, v{pr}, v{ni}")
        pr, pi = nr, ni
    e(f"ds_write_b64 v{VSEGR}, {vr(ER,2)} offset:{L_SEG-L_SEGZ}", "s_waitcnt lgkmcnt(0)", "s_barrier")
    if o.get('onlyT'):
        final_preload(g, 20); final_setup(g); e("s_branch L_final")
    for k in range(7): e(f"ds_read_b64 {vr(T+2*k,2)}, v{VSEGR} offset:{L_SEG-L_SEGZ-(7-k)*256}")
    def cmac(dr, di, ar, ai, br, bi, cr, ci):
        e(f"v_fma_f32 v{dr}, v{ar}, v{br}, v{cr}", f"v_fma_f32 v{di}, v{ar}, v{bi}, v{ci}", f"v_fma_f32 v{dr}, -v{ai}, v{bi}, v{dr}", f"v_fma_f32 v{di}, v{ai}, v{br}, v{di}")
    for k in range(1, 7):
        e(f"s_waitcnt lgkmcnt({6-k})")
        d = (PSR, PSI) if k == 6 else (T+2*k, T+2*k+1)
        cmac(d[0], d[1], L16R, L16I, T+2*k-2, T+2*k-1, T+2*k, T+2*k+1)
    cmac(T+16, T+17, L16R, L16I, PSR, PSI, ER, EI)
    e(f"s_cmp_lg_u32 s{S_W}, 3", "s_cbranch_scc1 L_s4", "s_mov_b32 exec_lo, 0",
      f"buffer_store_dwordx4 {vr(T+16,4)}, v{T+20}, {sr(S_WS,4)}, s{S_EST} offen sc1")
    if not o.get('ehint_early', 1): e("s_mov_b64 exec, 1", f"buffer_store_dword v{T+18}, off, {sr(S_WS,4)}, s{S_EF} sc1")
    e("s_mov_b64 exec, -1", "L_s4:")
    if o.get('ehint_early', 1): g.poll_issue(5, S_EPL, '15', T+8, False)
    g.stamp(3)
    g.prio('s_es')
    def cmult():
        for t in range(16):
            e(f"v_mul_f32 v{RP+t}, v{CR}, v{UR+t}", f"v_fma_f32 v{RP+t}, -v{CI}, v{UI+t}, v{RP+t}", f"v_mul_f32 v{UI+t}, -v{CR}, v{UI+t}", f"v_fma_f32 v{UI+t}, -v{CI}, v{UR+t}, v{UI+t}")
    cq = c_groups(0) + c_groups(1) + c_groups(2) + c_groups(3)
    cdone = [0]
    def c_issue(n):
        for _ in range(n):
            k = 32-len(cq)
            if k in (16, 24):
                while cdone[0] <= (k-16)//8: c_read()
                e("s_waitcnt lgkmcnt(0)")
            g.play(cq.pop(0))
    def c_read():
        pc = cdone[0]; g.waitvm(f'c{pc}'); e("s_waitcnt lgkmcnt(7)"); read_c(pc); cdone[0] += 1
    n_a, n_b, n_c, n_d = o.get('c_sched', (16, 8, 0, 8))
    g.weave(g.capture(cmult), cq[:n_a]); del cq[:n_a]
    if o.get('e_delay'): e(f"s_sleep {o['e_delay']}")
    l = g.lab('ep'); d = g.lab('ed')
    eld = [f"buffer_load_dwordx4 {vr(T,4)}, v{VE0}, {sr(S_WS,4)}, 0 offen sc1", f"buffer_load_dwordx4 {vr(T+4,4)}, v{VE1}, {sr(S_WS,4)}, 0 offen sc1"]
    echk = [f"v_cmp_ne_u64 vcc, {sr(S_NON,2)}, {vr(T+2,2)}", f"v_cmp_ne_u64 {sr(S_M,2)}, {sr(S_NON,2)}, {vr(T+6,2)}",
            f"s_and_b64 vcc, vcc, {sr(M0,2)}", f"s_and_b64 {sr(S_M,2)}, {sr(S_M,2)}, {sr(M1,2)}", f"s_or_b64 vcc, vcc, {sr(S_M,2)}"]
    if o.get('ehint_early', 1): g.poll_wait(5, S_EPL, sr(M2,2), T+8, False, 0x100, o.get('ehint_lag', 8))
    elif o.get('ehint', 1):
        le = g.lab('en')
        e(f"s_cmp_eq_u64 {sr(M2,2)}, 0", f"s_cbranch_scc1 {le}")
        keep = list(g.vm)
        g.poll_issue(5, S_EPL, sr(M2,2), T+8, False); g.poll_wait(5, S_EPL, sr(M2,2), T+8, False, 0x100)
        g.vm = keep
        e(le+":")
    for x in eld: g.vmem(x, 'eld')
    g.prio('s_cb'); c_issue(n_b); g.prio('s_e')
    e(f"s_lshl_b32 s{S_T0}, s{S_C}, 1", f"s_lshr_b32 s{S_T1}, s{S_W}, 1", f"s_add_u32 s{S_T0}, s{S_T0}, s{S_T1}", f"s_lshl_b32 s{S_T0}, s{S_T0}, 2", f"s_lshr_b32 s{S_T1}, s{S_J}, 2",
      f"s_add_u32 s{S_T0}, s{S_T0}, s{S_T1}", f"s_lshl_b32 s{S_T0}, s{S_T0}, 7", f"s_and_b32 s{S_T1}, s{S_J}, 3", f"s_lshl_b32 s{S_T1}, s{S_T1}, 4", f"s_add_u32 s{S_T0}, s{S_T0}, s{S_T1}",
      f"s_and_b32 s{S_T1}, s{S_W}, 1", f"s_lshl_b32 s{S_T1}, s{S_T1}, 3", f"s_add_u32 s{S_T0}, s{S_T0}, s{S_T1}", f"s_add_u32 s{S_EF}, s{S_T0}, {WS_FLAGS+FL_H}")
    e(f"s_mov_b32 s{S_T0}, {o.get('timeout', 200000)}")
    g.waitvm('eld')
    e(*echk); e(f"s_cbranch_scc0 {d}", l+":"); g.count(1); e(*eld)
    e(f"s_sub_u32 s{S_T0}, s{S_T0}, 1", "s_waitcnt vmcnt(0)", f"s_cbranch_scc1 {d}"); e(*echk)
    e(f"s_cbranch_scc0 {d}", f"s_sleep {o.get('psleep',2)}", f"s_branch {l}", d+":")
    g.stamp(4)
    e(f"v_mul_f32 v{T+8}, v{W0R}, v{T}", f"v_mul_f32 v{T+9}, v{W0R}, v{T+1}", f"v_fma_f32 v{T+8}, -v{W0I}, v{T+1}, v{T+8}", f"v_fma_f32 v{T+9}, v{W0I}, v{T}, v{T+9}")
    cmac(T+8, T+9, W1R, W1I, T+4, T+5, T+8, T+9)
    e(f"ds_write_b64 v{VSEGR}, {vr(T+8,2)} offset:{L_HP-L_SEGZ}", f"v_add_u32 v{VN8}, {L_HP}, v{VN8}")
    g.arrive(1, T); g.rwait(1, T)
    c_issue(n_c)
    def pass2():
        for k in range(8): e(f"ds_read_b64 {vr(T+2*k,2)}, v{VN8} offset:{k*256}")
        for k in range(1, 8):
            e(f"s_waitcnt lgkmcnt({7-k})", f"v_add_f32 v{T}, v{T}, v{T+2*k}", f"v_add_f32 v{T+1}, v{T+1}, v{T+2*k+1}")
        cmac(PSR, PSI, LSR, LSI, T, T+1, PSR, PSI)
        e(f"v_mul_f32 v{ER}, v{CR}, v{PSR}", f"v_fma_f32 v{ER}, -v{CI}, v{PSI}, v{ER}", f"v_mul_f32 v{EI}, -v{CR}, v{PSI}", f"v_fma_f32 v{EI}, -v{CI}, v{PSR}, v{EI}")
        pr, pj = ER, EI
        for t in range(16):
            e(f"v_fmac_f32 v{RP+t}, v{LR}, v{pr}", f"v_fmac_f32 v{UI+t}, v{LR}, v{pj}", f"v_fmac_f32 v{RP+t}, v{LI}, v{pj}", f"v_fma_f32 v{UI+t}, -v{LI}, v{pr}, v{UI+t}")
            pr, pj = RP+t, UI+t
            if t == 8:
                g.cvt16(T, RP, 8); g.cvt16(T+8, UI, 8)
                g.mfma(48, T, SEL); g.mfma(112, T+8, SEL)
        g.cvt16(T+4, RP+8, 8); g.mfma(48, T+4, SEL+4, 48)
        g.cvt16(T+12, UI+8, 8); g.mfma(112, T+12, SEL+4, 112)
    g.prio('s_p2')
    pass2()
    HCK = o.get('hck', 0)
    g.prio('s_st')
    if HCK:
        VL4 = 5
        g.cvt16(64, 48); rec_store(g, 64, 80, VL4, S_HST, 'hst')
        e(f"s_add_u32 s{S_HST}, s{S_HST}, {REC}")
        g.cvt16(72, 112); rec_store(g, 72, 81, VL4, S_HST, 'hst')
        g.setflag(S_EF, 16)
    else:
        for f in range(4):
            src = (48, 56, 112, 120)[f]
            g.cvt16(64+4*f, src, 8)
            g.vmem(f"buffer_store_dwordx4 {vr(64+4*f,4)}, v{V_L16}, {sr(S_WS,4)}, s{S_HST} offen offset:{1024*(f&1)+REC*(f>>1)} sc1", 'hst')
    g.stamp(5)
    g.prio('s_h')
    c_issue(min(n_d, len(cq)))
    rowhalf(g, S_T0)
    e(f"s_lshl_b32 s{S_T1}, s{S_C}, 1", f"s_add_u32 s{S_T0}, s{S_T0}, s{S_T1}", f"s_lshl_b32 s{S_EPL}, s{S_T0}, 2", f"s_add_u32 s{S_EPL}, s{S_EPL}, s{S_W}",
      f"s_lshl_b32 s{S_EPL}, s{S_EPL}, 7", f"s_add_u32 s{S_EPL}, s{S_EPL}, {WS_FLAGS+FL_H}",
      f"s_lshl_b32 s{S_KX}, s{S_T0}, 3", f"s_add_u32 s{S_KX}, s{S_KX}, s{S_W}", f"s_mul_i32 s{S_KX}, s{S_KX}, {8*REC}", f"s_add_u32 s{S_KX}, s{S_KX}, {WS_A2H}", "v_lshlrev_b32 v18, 3, v0")
    ACC = 64
    if not HCK:
        for k in range(1, 8): e(f"s_add_u32 s{S_KX+k}, s{S_KX}, {(k>>1)*2*REC + (k&1)*32*REC}")
        g.prio('s_f')
        g.waitvm('hst'); g.setflag(S_EF, 16)
    else: e(f"s_mov_b32 s{S_NN}, s{S_NON}", f"s_mov_b32 s{S_NN+1}, s{S_NON}", "v_mov_b32 v1, v5")
    g.stamp(6)
    g.prio('s_c3')
    c_issue(len(cq))
    if not HCK: final_preload(g, 20)
    while cdone[0] < 3: c_read()
    if o.get('h_delay'): e(f"s_sleep {o['h_delay']}")
    g.stamp(7)
    g.prio('s_a')
    g.poll_issue(18, S_EPL, '0xff', 16)
    c_read()
    g.poll_wait(18, S_EPL, '0xff', 16, True, 0x10000, o.get('hhint_lag', 0))
    g.stamp(8)
    g.prio('s_g')
    g.cold = []
    if HCK:
        rs = RecStream(g, 8, 3, 16, 10, 6, 1, lambda i, r: (S_KX, (i + 32*r)*REC), S_KX+1, S_KX+2)
        dp = o.get('hck_depth', 2)
        for i in range(dp): rs.load(i)
        e("s_waitcnt lgkmcnt(0)")
        for i in range(8):
            rs.need(i, range(i+1, min(8, i+dp)))
            if dp == 2 and i+2 < 8: rs.load(i+2)
            for a in range(2):
                for rh in range(2):
                    for ch in range(2):
                        acc = ACC+16*(2*rh+ch)
                        g.mfma(acc, creg(i >> 1, i & 1, a, ch), rs.frag(i, rh, a), None if (i == 0 and a == 0) else acc)
            if dp == 3 and i+3 < 8: rs.load(i+3)
        final_preload(g, 20)
        part_addr(g, 6, 22, S_M0B)
        g.cold = rs.cold
    else:
        AB, NB = 16, 6
        steps = [(jj, f) for jj in range(4) for f in range(4)]
        def lda(i):
            jj, f = steps[i]
            for rh in range(2):
                g.vmem(f"buffer_load_dwordx4 {vr(AB+8*(i%NB)+4*rh,4)}, v{V_L16}, {sr(S_WS,4)}, s{S_KX+2*jj+rh} offen offset:{1024*(f&1)+REC*(f>>1)} sc1", f'a{i}')
        nb0 = o.get('a2h_depth', 4)
        for i in range(nb0): lda(i)
        e("s_waitcnt lgkmcnt(0)")
        part_addr(g, 6, 64, S_M0B)
        for i in range(16):
            jj, f = steps[i]
            g.waitvm(f'a{i}')
            if i+nb0 < 16 and nb0 < NB: lda(i+nb0)
            for rh in range(2):
                for ch in range(2):
                    acc = ACC+16*(2*rh+ch)
                    g.mfma(acc, creg(jj, f >> 1, f & 1, ch), AB+8*(i%NB)+4*rh, None if i == 0 else acc)
            if i+nb0 < 16 and nb0 == NB: lda(i+nb0)
    g.stamp(9)
    for rh in range(2):
        for ch in range(2):
            for q in range(4): e(f"ds_write_b128 v{6+q}, {vr(ACC+16*(2*rh+ch)+4*q,4)} offset:{rh*8192+ch*128}")
    final_setup(g)

def final_setup(g):
    e = g.e
    g.srd(S_OUT, P_OUT, None, 4194304)
    e("v_lshrrev_b32 v16, 4, v0", "v_and_b32 v17, 15, v0", "v_xor_b32 v17, v17, v16", "v_lshlrev_b32 v17, 4, v17", "v_lshl_add_u32 v17, v16, 8, v17",
      f"s_lshl_b32 s{S_T0}, s{S_WV}, 11", f"v_add_u32 v17, s{S_T0}, v17", "v_xor_b32 v18, 64, v17", f"v_add_u32 v19, {TREG}, v17", f"v_add_u32 v20, {TREG}, v18")
    e(f"s_lshl_b32 s{S_T0}, s{S_WV}, 5", f"s_add_u32 s{S_T0}, s{S_T0}, {L_G}",
      f"v_lshl_add_u32 v16, v16, 2, s{S_T0}", "v_lshlrev_b32 v5, 1, v5")
    g.waitvm('fin')
    for q in range(2):
        e(f"v_lshlrev_b32 v30, 16, v{V_FX+4+q}", f"v_and_b32 v31, 0xffff0000, v{V_FX+4+q}")
        for i in range(2):
            d = 22+4*i+2*q
            e(f"v_lshlrev_b32 v{d}, 16, v{V_FX+2*i+q}", f"v_and_b32 v{d+1}, 0xffff0000, v{V_FX+2*i+q}", f"v_mul_f32 v{d}, v{d}, v30", f"v_mul_f32 v{d+1}, v{d+1}, v31")

def final(g):
    e = g.e; o = g.o
    e("L_final:")
    e("s_waitcnt lgkmcnt(0)", "s_barrier")
    g.stamp(15)
    e("ds_read_b32 v30, v16", "ds_read_b32 v36, v16 offset:16")
    for i in range(2):
        for k in range(4): e(f"ds_read_b128 {vr(40+24*i+4*k,4)}, v{17+i} offset:{SREG+k*16384+i*1024}")
        for k in range(2): e(f"ds_read_b128 {vr(56+24*i+4*k,4)}, v{19+i} offset:{k*16384+i*1024}")
    e(f"s_mov_b32 s{S_T0}, 0x8000")
    for i in range(2):
        b = 40+24*i; gg = 30 if i == 0 else 36
        e(f"s_waitcnt lgkmcnt({6-6*i})")
        for h in (0, 2):
            e(f"v_pk_add_f32 {vr(b+h,2)}, {vr(22+4*i+h,2)}, {vr(b+h,2)}",
              f"v_pk_add_f32 {vr(b+4+h,2)}, {vr(b+4+h,2)}, {vr(b+8+h,2)}",
              f"v_pk_add_f32 {vr(b+16+h,2)}, {vr(b+16+h,2)}, {vr(b+20+h,2)}",
              f"v_pk_add_f32 {vr(b+h,2)}, {vr(b+h,2)}, {vr(b+12+h,2)}",
              f"v_pk_add_f32 {vr(b+4+h,2)}, {vr(b+4+h,2)}, {vr(b+16+h,2)} neg_lo:[0,1] neg_hi:[0,1]",
              f"v_pk_add_f32 {vr(b+h,2)}, {vr(b+h,2)}, {vr(b+4+h,2)}",
              f"v_pk_fma_f32 {vr(b+h,2)}, {vr(b+h,2)}, {vr(gg,2)}, {vr(b+16+h,2)} op_sel_hi:[1,0,1]")
        e(f"buffer_store_dwordx4 {vr(b,4)}, v5, {sr(S_OUT,4)}, {'0' if i == 0 else 's%d' % S_T0} offen {o.get('outmod','sc1')}")
    e(f"s_or_b32 s{S_T0}, s{S_C}, s{S_J}", f"s_or_b32 s{S_T0}, s{S_T0}, s{S_WV}", "s_cbranch_scc1 L_f1",
      f"v_mov_b32 v16, s{S_NON}", "s_mov_b64 exec, 1", f"buffer_store_dword v16, off, {sr(S_WS,4)}, 0 offset:{WS_EPOCH} sc1", "s_mov_b64 exec, -1", "L_f1:")
    if o.get('stamps'):
        e("s_waitcnt vmcnt(0)")
        g.stamp(16)
        e(f"v_writelane_b32 v{V_STAMP}, s{S_FLOFF}, 30")
        e(f"s_lshl_b32 s{S_T0}, s{S_C}, 4", f"s_add_u32 s{S_T0}, s{S_T0}, s{S_J}", f"s_lshl_b32 s{S_T0}, s{S_T0}, 3", f"s_add_u32 s{S_T0}, s{S_T0}, s{S_WV}",
          f"s_lshl_b32 s{S_T0}, s{S_T0}, 8", f"s_add_u32 s{S_T0}, s{S_T0}, {WS_STAMP}", "v_lshlrev_b32 v16, 2, v0",
          f"buffer_store_dword v{V_STAMP}, v16, {sr(S_WS,4)}, s{S_T0} offen")
    if o.get('amp') is not None:
        e("s_waitcnt vmcnt(0)")
        g.stamp(16)
        e(f"s_cmp_lg_u32 s2, {o.get('ampwg',0)}", "s_cbranch_scc1 L_end", f"s_cmp_lg_u32 s{S_WV}, {o.get('ampwave',0)}", "s_cbranch_scc1 L_end",
          "s_sub_u32 s66, s66, s100", "s_mul_i32 s66, s66, 10", "s_memrealtime s[100:101]", "s_waitcnt lgkmcnt(0)", "s_add_u32 s66, s66, s100",
          "L_amp:", "s_memrealtime s[100:101]", "s_waitcnt lgkmcnt(0)", "s_sub_u32 s67, s100, s66", "s_cmp_lt_i32 s67, 0", "s_cbranch_scc1 L_amp")
    e("L_end:", "s_endpgm")
    e("L_role_coldS:")
    for r in g.cold: g.play(r)
    e("s_endpgm", "L_codeend:")

DEFAULTS = {'wq_start':0,'wq_end':18,'rot':(2,1,1,0),'vpre':7,'flagwarm':0,'wo_sched':{'q':8,'o':8},'ock':0,'sig8':1,'c_sched':(0,8,8,8),'timeout':20000,
            'prio':{'s_b7':2,'s_es':0,'t_b8':2,'t_q':0,'s_p2':1,'s_h':0,'t_g':2,'s_g':1,'t_a':0}}
def build(opt):
    opt = {**DEFAULTS, **opt}
    g = G(opt)
    if opt.get('stamps') or opt.get('amp') is not None:
        g.e("s_memrealtime s[100:101]")
    prologue(g)
    if opt.get('stamps'):
        pass
    roleS_start(g); roleT(g); roleS(g); final(g)
    lines = g.L
    if opt.get('stamps') == 1:
        out = []
        for x in lines:
            out.append(x)
            if x in ("L_roleT:", "L_roleS:"):
                out += ["s_waitcnt lgkmcnt(0)", f"v_writelane_b32 v{V_STAMP}, s100, 31"]
        lines = out
    ins, added = fix(lines)
    errs = check_waits(ins)
    for x in errs[:5]: print("WAITCHECK", x, file=sys.stderr)
    ref = open('cdna_kernels/' + KNAME + '.s.ref').read().splitlines() if opt.get('refhdr', True) else []
    hdr = [x for x in ref if x.startswith(';') and '@launch' not in x and 'Override' not in x and 'grid=ceil' not in x]
    txt = "\n".join(hdr) + f"""
; @launch grid=(256,1,1) block=(512,1,1) lds={LDS_BYTES}
.amdgcn_target "amdgcn-amd-amdhsa--gfx950"
.text
.globl {KNAME}_kernel
.p2align 12
.p2align 8
.type {KNAME}_kernel,@function
{KNAME}_kernel:
""" + "\n".join((i.text if i.label else "    " + i.text) for i in ins) + f"""
.section .rodata,"a"
.p2align 6
.amdhsa_kernel {KNAME}_kernel
  .amdhsa_next_free_vgpr 256
  .amdhsa_next_free_sgpr 102
  .amdhsa_accum_offset 256
  .amdhsa_group_segment_fixed_size 0
  .amdhsa_kernarg_size 136
  .amdhsa_user_sgpr_count 2
  .amdhsa_user_sgpr_kernarg_segment_ptr 1
  .amdhsa_system_sgpr_workgroup_id_x 1
.end_amdhsa_kernel
"""
    return txt, len([i for i in ins if i.real]), added, errs

if __name__ == '__main__':
    out = sys.argv[1] if len(sys.argv) > 1 else 'k.s'
    opt = eval(sys.argv[2]) if len(sys.argv) > 2 else {}
    txt, n, added, errs = build(opt)
    open(out, 'w').write(txt)
    print(f"{out}: {n} instructions, {added} nops added, {len(errs)} wait errors")
```

```python
import sys
from asmfix import fix, check_waits
KNAME = 'gated_mix__ssm_conv_s5__linear_kernel_hedgehog__prompt'

WS_EPOCH = 0
WS_FLAGS = 0x1000
FL_E, FL_K, FL_H, FL_O = 0, 0x2000, 0x4000, 0x8000
WS_E     = 0x10000
WS_H2    = 0x40000
WS_KV    = 0x80000
REC = 2304
WS_A2H   = 0x200000
RECO = 2304
WS_A2O   = 0x700000
WS_STAMP = 0xA00000
WS_SIZE  = 0x1000000
SREG = 0x0
XREG = 0x8000
TREG = 0x10000
def xsl(s): return ((s+2) & 3)*16384
SCR  = 0x20000
L_TFL  = SCR + 0x0
L_SFL  = SCR + 0x10
L_G    = SCR + 0x200
L_GATE = SCR + 0x400
L_WPHI = SCR + 0x800
L_SEGZ = SCR + 0xC00
L_SEG  = SCR + 0x1400
L_ZD   = SCR + 0x1C00
L_BSL  = SCR + 0x2000
L_KVR  = SCR + 0x2000
L_ZR   = SCR + 0x6000
L_KVD  = SCR + 0x6400
L_HP   = SCR + 0x6C00
LDS_BYTES = 0x28000
LOG2E = 0x3fb8aa3b

def vr(a, n=1): return f"v{a}" if n == 1 else f"v[{a}:{a+n-1}]"
def sr(a, n=1): return f"s{a}" if n == 1 else f"s[{a}:{a+n-1}]"

class G:
    def __init__(self, opt):
        self.o = opt; self.L = []; self.vm = []; self.nlab = 0; self.cap = None
    def e(self, *xs):
        for x in xs: (self.L if self.cap is None else self.cap).append(x)
    def capture(self, fn):
        old = self.cap; self.cap = []; fn(); r = self.cap; self.cap = old; return r
    def play(self, items):
        for it in items:
            if isinstance(it, str): self.e(it)
            elif it[0] == 'vm': self.vmem(it[1], it[2])
            elif it[0] == 'wait': self.waitvm(*it[1])
            elif it[0] == 'grp': self.play(it[1])
    def weave(self, main, groups, start=0, end=None):
        end = len(main) if end is None else end
        n = len(groups); out = []; k = 0
        for i, it in enumerate(main):
            while k < n and i >= start + (end-start)*k//n and i >= start:
                out += groups[k]; k += 1
            out.append(it)
        while k < n: out += groups[k]; k += 1
        self.play(out)
    def lab(self, p):
        self.nlab += 1; return f"L_{p}{self.nlab}"
    def vmem(self, text, tag=None):
        if self.cap is not None: self.cap.append(('vm', text, tag)); return
        if tag and any(tag.startswith(x) for x in self.o.get('skip', ())): return
        self.e(text); self.vm.append(tag)
    def waitvm(self, *tags):
        if self.cap is not None: self.cap.append(('wait', tags)); return
        last = max((i for i, t in enumerate(self.vm) if t in tags), default=-1)
        if last < 0: return
        n = len(self.vm) - 1 - last
        assert n <= 63
        self.e(f"s_waitcnt vmcnt({n})")
        self.vm = self.vm[last+1:]
    def waitvm0(self):
        self.e("s_waitcnt vmcnt(0)"); self.vm = []
    def srd(self, d, base, off=None, size=0):
        if off is None:
            self.e(f"s_mov_b32 s{d}, s{base}", f"s_mov_b32 s{d+1}, s{base+1}", f"s_mov_b32 s{d+2}, {size}")
        else:
            self.e(f"s_add_u32 s{d}, s{base}, s{off}", f"s_addc_u32 s{d+1}, s{base+1}, 0", f"s_sub_u32 s{d+2}, {size}, s{off}")
        self.e(f"s_mov_b32 s{d+3}, 0x20000")
    def count(self, w):
        if self.o.get('stamps'): self.e(f"s_add_u32 s{S_FLOFF}, s{S_FLOFF}, {w}")
    def prio(self, key):
        p = self.o.get('prio', {}).get(key)
        if p is not None: self.e(f"s_setprio {p}")
    def stamp(self, i):
        if self.o.get('amp') == i: self.e("s_waitcnt lgkmcnt(0)", "s_memrealtime s[66:67]", "s_waitcnt lgkmcnt(0)")
        if not self.o.get('stamps'): return
        if self.o['stamps'] == 2:
            if i == self.o.get('probe'): self.e("s_waitcnt lgkmcnt(0)", "s_memrealtime s[66:67]", "s_waitcnt lgkmcnt(0)")
            if i != 16: return
            self.e(f"v_writelane_b32 v{V_STAMP}, s100, 31", f"v_writelane_b32 v{V_STAMP}, s66, 17")
        if i >= 20: return
        self.e("s_waitcnt lgkmcnt(0)", "s_memrealtime s[100:101]", "s_memtime s[66:67]", "s_waitcnt lgkmcnt(0)", f"v_writelane_b32 v{V_STAMP}, s100, {i}", f"v_writelane_b32 v{V_STAMP}, s66, {i+32}")
    def mfma(self, d, a, b, c=None):
        cc = "0" if c is None else vr(c, 16)
        self.e(f"v_mfma_f32_32x32x16_bf16 {vr(d,16)}, {vr(a,4)}, {vr(b,4)}, {cc}")
    def cvt16(self, dst, src, n=16):
        for q in range(n//2): self.e(f"v_cvt_pk_bf16_f32 v{dst+q}, v{src+2*q}, v{src+2*q+1}")
    def arrive(self, stage, tmp):
        self.e(f"v_mov_b32 v{tmp}, {stage}", "s_mov_b64 exec, 1", f"ds_write_b32 v{V_MYFL}, v{tmp}", "s_mov_b64 exec, -1")
    def rwait(self, stage, tmp):
        l = self.lab('rs')
        self.e(l+":", f"ds_read_b128 {vr(tmp,4)}, v{V_FLB}", "s_waitcnt lgkmcnt(0)",
               f"v_min3_u32 v{tmp}, v{tmp}, v{tmp+1}, v{tmp+2}", f"v_min_u32 v{tmp}, v{tmp}, v{tmp+3}",
               f"v_cmp_gt_u32 vcc, {stage}, v{tmp}", f"s_cbranch_vccnz {l}")
    def setflag(self, soff, tmp, wide=True):
        self.e(f"v_mov_b32 v{tmp}, s{S_NON}")
        if wide: self.e(f"v_mov_b32 v{tmp+1}, s{S_NON+1}")
        self.e("s_mov_b64 exec, 1")
        self.vmem(f"buffer_store_dword{'x2' if wide else ''} {vr(tmp, 2 if wide else 1)}, off, {sr(S_WS,4)}, s{soff} sc1", 'flag')
        self.e("s_mov_b64 exec, -1")
    def poll_issue(self, vaddr, soff, mask, tmp, wide=True, track=True):
        self.e(f"v_mov_b32 v{tmp}, 0")
        if wide: self.e(f"v_mov_b32 v{tmp+1}, 0")
        self.e(f"s_mov_b64 exec, {mask}")
        x = f"buffer_atomic_add{'_x2' if wide else ''} {vr(tmp, 2 if wide else 1)}, v{vaddr}, {sr(S_WS,4)}, s{soff} offen sc0 sc1"
        if track: self.vmem(x, 'poll')
        else: self.e(x)
        self.e("s_mov_b64 exec, -1")
    def poll_wait(self, vaddr, soff, mask, tmp, wide=True, cnt=1, lag=0):
        l = self.lab('pl'); d = self.lab('pd')
        chk = [f"v_cmp_ne_u64 vcc, {sr(S_NON,2)}, {vr(tmp,2)}" if wide else f"v_cmp_ne_u32 vcc, s{S_NON}, v{tmp}", f"s_and_b64 vcc, vcc, {mask}"]
        self.waitvm('poll')
        self.e(*chk); self.e(f"s_cbranch_scc0 {d}", f"s_mov_b32 s{S_T0}, {self.o.get('timeout', 200000)}", l+":")
        self.count(cnt)
        if self.o.get('psleep', 2): self.e(f"s_sleep {self.o.get('psleep', 2)}")
        self.poll_issue(vaddr, soff, mask, tmp, wide, False)
        self.e(f"s_sub_u32 s{S_T0}, s{S_T0}, 1", "s_waitcnt vmcnt(0)", f"s_cbranch_scc1 {d}")
        self.e(*chk); self.e(f"s_cbranch_scc1 {l}")
        if lag: self.e(f"s_sleep {lag}")
        self.e(d+":")

S_WV = 3
S_X, S_A, S_B, S_WK, S_WVv, S_WQ, S_WS, S_OUT = 4, 8, 12, 16, 20, 24, 28, 32
P_X, P_LRE, P_LIM, P_BRE, P_BIM, P_CRE, P_CIM, P_LDT = 36, 38, 40, 42, 44, 46, 48, 50
P_DSK, P_BX, P_WQKV, P_WPHI, P_WO, P_GATE, P_OUT, P_DBG, P_WS = 52, 54, 56, 58, 60, 62, 64, 66, 68
S_KX = 70
S_KW = 78
S_NON = 86
S_C, S_J, S_W, S_R0 = 88, 89, 90, 91
S_FLOFF = 92
S_NN = 84
S_M0B = 93
S_T0, S_T1, S_T2, S_T3 = 94, 95, 96, 97
S_M = 98
S_EP = 54
S_DS = 55
V_LANE = 0
V_MYFL, V_FLB, V_L16, V_STAMP = 1, 2, 3, 4
V_FX = 10

def prologue(g):
    e = g.e; o = g.o
    e("s_cmp_ge_u32 s2, 256", "s_cbranch_scc1 L_end")
    e(f"s_load_dwordx16 s[36:51], s[0:1], 0", f"s_load_dwordx16 s[52:67], s[0:1], 64", f"s_load_dwordx2 s[68:69], s[0:1], 128")
    e("v_lshrrev_b32 v1, 6, v0", "v_and_b32 v0, 63, v0", f"v_readfirstlane_b32 s{S_WV}, v1")
    e(f"s_and_b32 s{S_T0}, s2, 3", f"s_lshl_b32 s{S_T0}, s{S_T0}, 2", f"s_bfe_u32 s{S_C}, s2, 0x20003", f"s_add_u32 s{S_C}, s{S_C}, s{S_T0}")
    e(f"s_and_b32 s{S_T0}, s2, 4", f"s_lshl_b32 s{S_T0}, s{S_T0}, 1", f"s_lshr_b32 s{S_J}, s2, 5", f"s_add_u32 s{S_J}, s{S_J}, s{S_T0}")
    e(f"s_and_b32 s{S_W}, s{S_WV}, 3")
    ra, rb_, rx, ry = o.get('rot', (2, 1, 0, 0))
    e(f"s_mul_i32 s{S_R0}, s{S_J}, {rb_}")
    if ra: e(f"s_mul_i32 s{S_T0}, s{S_C}, {ra}", f"s_add_u32 s{S_R0}, s{S_R0}, s{S_T0}")
    if rx: e(f"s_lshr_b32 s{S_T0}, s{S_C}, 2", f"s_mul_i32 s{S_T0}, s{S_T0}, {rx}", f"s_add_u32 s{S_R0}, s{S_R0}, s{S_T0}")
    if ry: e(f"s_lshr_b32 s{S_T0}, s{S_J}, 3", f"s_mul_i32 s{S_T0}, s{S_T0}, {ry}", f"s_add_u32 s{S_R0}, s{S_R0}, s{S_T0}")
    e(f"s_and_b32 s{S_R0}, s{S_R0}, 7")
    e(f"v_lshlrev_b32 v{V_L16}, 4, v0")
    if o.get('stamps'): e(f"v_mov_b32 v{V_STAMP}, 0", f"s_mov_b32 s{S_FLOFF}, 0")
    e(f"s_lshl_b32 s{S_M}, s{S_W}, 12", f"s_add_u32 s{S_M}, s{S_M}, {XREG}")
    e(f"s_cmp_lt_u32 s{S_WV}, 4", "s_cbranch_scc1 L_roleT")

def common_late(g):
    e = g.e
    e(f"s_lshl_b32 s{S_T0}, s{S_WV}, 2", f"s_add_u32 s{S_T0}, s{S_T0}, {L_TFL}", f"v_mov_b32 v{V_MYFL}, s{S_T0}",
      f"s_and_b32 s{S_T0}, s{S_T0}, 0xfffffff0", f"v_mov_b32 v{V_FLB}, s{S_T0}")

def scalar_prefetch(g, items):
    e = g.e
    e(f"s_lshl_b32 s{S_T0}, s2, 2", f"s_add_u32 s{S_T0}, s{S_T0}, s{S_W}")
    k = 0
    for pp, stride, first, n, ls in items:
        e(f"s_mul_i32 s{S_T1}, s{S_T0}, {stride}", f"s_add_u32 s{S_OUT}, s{pp}, s{S_T1}", f"s_addc_u32 s{S_OUT+1}, s{pp+1}, 0")
        for i in range(n):
            e(f"s_load_dword s{S_DS}, {sr(S_OUT,2)}, {first+ls*i} ; touch")

def nonce(g):
    g.e(f"s_mul_i32 s{S_NON}, s{S_EP}, 1664525", f"s_add_u32 s{S_NON}, s{S_NON}, 1013904223",
        f"s_mul_i32 s{S_NON+1}, s{S_EP}, 22695477", f"s_add_u32 s{S_NON+1}, s{S_NON+1}, 0x9e3779b9")

def frag_addr(g, dst, tmp, base_s=None, base_c=0):
    e = g.e
    e(f"v_and_b32 v{tmp}, 31, v0", f"v_lshlrev_b32 v{dst}, 7, v{tmp}", f"v_bfe_u32 v{tmp}, v0, 1, 3", f"v_lshrrev_b32 v{tmp+1}, 5, v0",
      f"v_xor_b32 v{tmp}, v{tmp}, v{tmp+1}", f"v_lshl_add_u32 v{dst}, v{tmp}, 4, v{dst}")
    if base_s is not None: e(f"v_add_u32 v{dst}, s{base_s}, v{dst}")
    if base_c: e(f"v_add_u32 v{dst}, {base_c}, v{dst}")
    for k in range(1, 4): e(f"v_xor_b32 v{dst+k}, {32*k}, v{dst}")

def make_sel(g, dst, tmp):
    e = g.e
    e(f"v_bfe_u32 v{tmp}, v0, 3, 2", f"v_and_b32 v{tmp+1}, 3, v0", f"v_lshl_add_u32 v{tmp}, v{tmp}, 2, v{tmp+1}",
      f"v_bfe_u32 v{tmp+1}, v0, 2, 1", f"v_lshrrev_b32 v{tmp+2}, 5, v0", f"v_xor_b32 v{tmp+1}, v{tmp+1}, v{tmp+2}",
      f"v_lshl_add_u32 v{tmp}, v{tmp+1}, 4, v{tmp}",
      f"v_and_b32 v{tmp+1}, 1, v0", f"v_lshlrev_b32 v{tmp+1}, 4, v{tmp+1}", f"v_mov_b32 v{tmp+2}, 0x3f80",
      f"v_lshlrev_b32 v{tmp+1}, v{tmp+1}, v{tmp+2}", f"v_lshrrev_b32 v{tmp}, 1, v{tmp}")
    for q in range(8):
        e(f"v_cmp_eq_u32 vcc, {q}, v{tmp}", f"v_cndmask_b32 v{dst+q}, 0, v{tmp+1}, vcc")

def rowhalf(g, d):
    if g.o.get('sig8'): g.e(f"s_lshr_b32 s{d}, s{S_J}, 3")
    else: g.e(f"s_and_b32 s{d}, s{S_J}, 1")
def colblk(g, d):
    if g.o.get('sig8'): g.e(f"s_and_b32 s{d}, s{S_J}, 7")
    else: g.e(f"s_lshr_b32 s{d}, s{S_J}, 1")

def final_preload(g, tmp):
    e = g.e
    rowhalf(g, S_T1)
    e(f"s_lshl_b32 s{S_T0}, s{S_C}, 7", f"s_lshl_b32 s{S_T1}, s{S_T1}, 6", f"s_add_u32 s{S_T0}, s{S_T0}, s{S_T1}",
      f"s_lshr_b32 s{S_T1}, s{S_WV}, 2", f"s_lshl_b32 s{S_T1}, s{S_T1}, 5", f"s_add_u32 s{S_T0}, s{S_T0}, s{S_T1}",
      f"s_lshl_b32 s{S_T1}, s{S_W}, 2", f"s_add_u32 s{S_T0}, s{S_T0}, s{S_T1}", f"s_lshl_b32 s{S_T0}, s{S_T0}, 10")
    colblk(g, S_T1); e(f"s_lshl_b32 s{S_T1}, s{S_T1}, 7")
    e(f"v_and_b32 v{tmp}, 15, v0", f"v_lshlrev_b32 v{tmp}, 3, v{tmp}", f"v_add_u32 v{tmp}, s{S_T1}, v{tmp}",
      f"v_lshrrev_b32 v5, 4, v0", f"v_lshl_add_u32 v5, v5, 10, v{tmp}", f"v_add_u32 v5, s{S_T0}, v5", f"v_add_u32 v{tmp+1}, 0x4000, v5")
    g.vmem(f"global_load_dwordx2 {vr(V_FX,2)}, v5, {sr(P_X,2)}", 'fin')
    g.vmem(f"global_load_dwordx2 {vr(V_FX+2,2)}, v{tmp+1}, {sr(P_X,2)}", 'fin')
    g.vmem(f"global_load_dwordx2 {vr(V_FX+4,2)}, v{tmp}, {sr(P_DSK,2)}", 'fin')

def part_addr(g, dst, tmp, base_s):
    e = g.e
    e(f"v_and_b32 v{tmp}, 31, v0", f"v_lshlrev_b32 v{dst}, 8, v{tmp}", f"v_and_b32 v{tmp}, 7, v0", f"v_lshrrev_b32 v{tmp+1}, 5, v0",
      f"v_xor_b32 v{tmp}, v{tmp}, v{tmp+1}", f"v_lshl_add_u32 v{dst}, v{tmp}, 4, v{dst}", f"v_add_u32 v{dst}, s{base_s}, v{dst}")
    for k in range(1, 4): e(f"v_xor_b32 v{dst+k}, {32*k}, v{dst}")

def softmax(g, p, out, tmp):
    e = g.e
    e(f"v_max3_f32 v{tmp}, v{p}, v{p+1}, v{p+2}")
    for i in range(3, 15, 2): e(f"v_max3_f32 v{tmp}, v{tmp}, v{p+i}, v{p+i+1}")
    e(f"v_max_f32 v{tmp}, v{tmp}, v{p+15}", f"v_mul_f32 v{tmp}, s{S_T3}, v{tmp}")
    for i in range(0, 16, 2):
        e(f"v_pk_fma_f32 {vr(p+i,2)}, {vr(p+i,2)}, {sr(S_T2,2)}, {vr(tmp,2)} op_sel_hi:[1,0,0]")
    for i in range(16): e(f"v_exp_f32 v{p+i}, v{p+i}")
    e(f"v_pk_add_f32 {vr(tmp,2)}, {vr(p,2)}, {vr(p+2,2)}", f"v_pk_add_f32 {vr(tmp+2,2)}, {vr(p+4,2)}, {vr(p+6,2)}")
    e(f"v_pk_add_f32 {vr(tmp,2)}, {vr(tmp,2)}, {vr(p+8,2)}", f"v_pk_add_f32 {vr(tmp+2,2)}, {vr(tmp+2,2)}, {vr(p+10,2)}")
    e(f"v_pk_add_f32 {vr(tmp,2)}, {vr(tmp,2)}, {vr(p+12,2)}", f"v_pk_add_f32 {vr(tmp+2,2)}, {vr(tmp+2,2)}, {vr(p+14,2)}")
    e(f"v_pk_add_f32 {vr(tmp,2)}, {vr(tmp,2)}, {vr(tmp+2,2)}", f"v_add_f32 v{tmp}, v{tmp}, v{tmp+1}", f"v_rcp_f32 v{tmp}, v{tmp}")
    for i in range(0, 16, 2):
        e(f"v_pk_mul_f32 {vr(p+i,2)}, {vr(p+i,2)}, {vr(tmp,2)} op_sel_hi:[1,0]")
    g.cvt16(out, p)

def softmax_np(g, p, out, tmp):
    e = g.e
    e(f"v_max3_f32 v{tmp}, v{p}, v{p+1}, v{p+2}")
    for i in range(3, 15, 2): e(f"v_max3_f32 v{tmp}, v{tmp}, v{p+i}, v{p+i+1}")
    e(f"v_max_f32 v{tmp}, v{tmp}, v{p+15}", f"v_mul_f32 v{tmp}, s{S_T3}, v{tmp}")
    e(f"v_fma_f32 v{p}, v{p}, s{S_T2}, v{tmp}", f"v_fma_f32 v{p+1}, v{p+1}, s{S_T2}, v{tmp}")
    for i in range(16):
        e(f"v_exp_f32 v{p+i}, v{p+i}")
        if i+2 < 16: e(f"v_fma_f32 v{p+i+2}, v{p+i+2}, s{S_T2}, v{tmp}")
        if i == 2: e(f"v_add_f32 v{tmp+1}, v{p}, v{p+1}")
        elif i > 2: e(f"v_add_f32 v{tmp+1}, v{tmp+1}, v{p+i-1}")
    e(f"v_add_f32 v{tmp+1}, v{tmp+1}, v{p+15}", f"v_rcp_f32 v{tmp+1}, v{tmp+1}")
    for i in range(0, 16, 2):
        e(f"v_mul_f32 v{p+i}, v{p+i}, v{tmp+1}", f"v_mul_f32 v{p+i+1}, v{p+i+1}, v{tmp+1}", f"v_cvt_pk_bf16_f32 v{out+i//2}, v{p+i}, v{p+i+1}")

def sum16(g, p, tmp):
    e = g.e
    e(f"v_pk_add_f32 {vr(tmp,2)}, {vr(p,2)}, {vr(p+2,2)}", f"v_pk_add_f32 {vr(tmp+2,2)}, {vr(p+4,2)}, {vr(p+6,2)}")
    e(f"v_pk_add_f32 {vr(tmp,2)}, {vr(tmp,2)}, {vr(p+8,2)}", f"v_pk_add_f32 {vr(tmp+2,2)}, {vr(tmp+2,2)}, {vr(p+10,2)}")
    e(f"v_pk_add_f32 {vr(tmp,2)}, {vr(tmp,2)}, {vr(p+12,2)}", f"v_pk_add_f32 {vr(tmp+2,2)}, {vr(tmp+2,2)}, {vr(p+14,2)}")
    e(f"v_pk_add_f32 {vr(tmp,2)}, {vr(tmp,2)}, {vr(tmp+2,2)}", f"v_add_f32 v{tmp}, v{tmp}, v{tmp+1}")

def rec_store(g, data, ck, vl4, soff, tag):
    e = g.e
    for a in range(2): g.vmem(f"buffer_store_dwordx4 {vr(data+4*a,4)}, v{V_L16}, {sr(S_WS,4)}, s{soff} offen offset:{1024*a} sc1", tag)
    e(f"v_add3_u32 v{ck}, v{data}, v{data+1}, v{data+2}", f"v_add3_u32 v{ck}, v{ck}, v{data+3}, v{data+4}", f"v_add3_u32 v{ck}, v{ck}, v{data+5}, v{data+6}",
      f"v_add_u32 v{ck}, v{ck}, v{data+7}", f"v_sub_u32 v{ck}, s{S_NON}, v{ck}")
    g.vmem(f"buffer_store_dword v{ck}, v{vl4}, {sr(S_WS,4)}, s{soff} offen offset:2048 sc1", tag)

class RecStream:
    def __init__(s, g, n, depth, buf, ck, tmp, vl4, offs, sA, sB):
        s.g, s.n, s.D, s.buf, s.ck, s.tmp, s.vl4, s.offs, s.sA, s.sB = g, n, depth, buf, ck, tmp, vl4, offs, sA, sB
        s.cold = []
    def frag(s, i, r, a): return s.buf + 16*(i % s.D) + 8*r + 4*a
    def load(s, i, track=True):
        g = s.g
        for r, sd in ((0, s.sA), (1, s.sB)):
            base, c = s.offs(i, r)
            g.e(f"s_add_u32 s{sd}, s{base}, {c}")
            ld = [f"buffer_load_dwordx4 {vr(s.frag(i,r,a),4)}, v{V_L16}, {sr(S_WS,4)}, s{sd} offen offset:{1024*a} sc1" for a in range(2)]
            ld.append(f"buffer_load_dword v{s.ck+2*(i % s.D)+r}, v{s.vl4}, {sr(S_WS,4)}, s{sd} offen offset:2048 sc1")
            for x in ld:
                if track: g.vmem(x, f'a{i}')
                else: g.e(x)
    def check(s, i):
        g = s.g; b = s.frag(i, 0, 0); c = s.ck+2*(i % s.D); t = s.tmp
        g.e(f"v_add3_u32 v{t}, v{c}, v{b}, v{b+1}", f"v_add3_u32 v{t+1}, v{c+1}, v{b+8}, v{b+9}")
        for k in range(2, 8, 2): g.e(f"v_add3_u32 v{t}, v{t}, v{b+k}, v{b+k+1}", f"v_add3_u32 v{t+1}, v{t+1}, v{b+8+k}, v{b+9+k}")
        g.e(f"v_cmp_ne_u64 vcc, {sr(S_NN,2)}, {vr(t,2)}")
    def need(s, i, inflight):
        g = s.g; lr = g.lab('rr'); lo = g.lab('ro'); l2 = g.lab('rq')
        g.waitvm(f'a{i}'); s.check(i)
        g.e(f"s_cbranch_vccnz {lr}" if not g.o.get('noval') else "s_nop 0", lo+":")
        def rt():
            g.e(lr+":", f"s_mov_b32 s{S_T0}, {g.o.get('timeout', 200000)}", l2+":", f"s_sleep {g.o.get('rsleep', 2)}"); g.count(0x1000000); s.load(i, False)
            g.e(f"s_sub_u32 s{S_T0}, s{S_T0}, 1", "s_waitcnt vmcnt(0)", f"s_cbranch_scc1 {lo}"); s.check(i)
            g.e(f"s_cbranch_vccnz {l2}")
            for k in inflight: s.load(k, False)
            g.e(f"s_branch {lo}", g.lab('role_c')+":")
        s.cold.append(g.capture(rt))

def epoch_load(g, v):
    g.e(f"v_mov_b32 v{v}, {WS_EPOCH}")
    g.vmem(f"global_load_dword v{v}, v{v}, {sr(P_WS,2)} sc1", 'ep')
def epoch_use(g, v):
    g.e(f"v_readfirstlane_b32 s{S_EP}, v{v}"); nonce(g)

def roleT(g):
    e = g.e; o = g.o
    g.vm = []
    X = 128
    VXO = 6
    VBO = 5
    VWO = 10
    VXA = 12
    VTR = 11
    WPA, WPB, SEL = 16, 20, 24
    ACC, RING, KP, DA, DB, PA, PB = 32, 48, 72, 80, 96, 112, 120
    e("L_roleT:")
    def slice_offs(s):
        e(f"s_add_u32 s{S_T0}, s{S_R0}, {s}", f"s_and_b32 s{S_T0}, s{S_T0}, 7", f"s_lshl_b32 s{S_KX+s}, s{S_T0}, 7", f"s_mul_i32 s{S_KW+s}, s{S_T0}, {64*3072}")
    for s in range(2): slice_offs(s)
    e("v_lshrrev_b32 v32, 5, v0", "v_bfe_u32 v33, v0, 3, 2", "v_and_b32 v34, 7, v0", "v_lshrrev_b32 v35, 4, v0", "v_xor_b32 v34, v34, v35", "v_lshlrev_b32 v34, 4, v34")
    e("v_lshl_add_u32 v36, v32, 4, v33", f"v_lshl_add_u32 v{VXO}, v36, 10, v34")
    e(f"v_xor_b32 v{VXO+1}, 64, v{VXO}", f"v_add_u32 v{VXO+2}, {2*3072}, v{VXO}", f"v_add_u32 v{VXO+3}, {3*3072}, v{VXO+1}", f"v_add_u32 v{VXO+1}, 3072, v{VXO+1}")
    e("v_lshl_add_u32 v36, v32, 3, v33", f"v_lshl_add_u32 v{VBO}, v36, 10, v34")
    e(f"s_and_b32 s{S_T0}, s{S_W}, 1", f"s_lshl_b32 s{S_T1}, s{S_T0}, 6", f"v_xor_b32 v{VBO}, s{S_T1}, v{VBO}",
      f"s_lshl_b32 s{S_T0}, s{S_T0}, 12", f"s_lshr_b32 s{S_T1}, s{S_W}, 1", f"s_lshl_b32 s{S_T1}, s{S_T1}, 14", f"s_add_u32 s{S_T0}, s{S_T0}, s{S_T1}",
      f"s_lshl_b32 s{S_T1}, s{S_J}, 15", f"s_add_u32 s{S_T2}, s{S_T0}, s{S_T1}")
    e(f"s_lshl_b32 s{S_T0}, s{S_C}, 17", f"s_lshl_b32 s{S_T1}, s{S_W}, 15", f"s_add_u32 s{S_T3}, s{S_T0}, s{S_T1}")
    e(f"s_lshl_b32 s{S_M0B}, s{S_W}, 10")
    e(f"v_lshrrev_b32 v36, 2, v0", f"v_mul_u32_u24 v36, 3072, v36", f"v_and_b32 v37, 3, v0", f"v_lshl_add_u32 v{VWO}, v37, 4, v36")
    e(f"s_mul_i32 s{S_T0}, s{S_W}, {16*3072}", f"s_lshl_b32 s{S_T1}, s{S_J}, 6", f"s_add_u32 s{S_T0}, s{S_T0}, s{S_T1}", f"s_add_u32 s{S_M+1}, s{S_T0}, 1024")
    for d, sz in ((S_X, 2097152), (S_A, 524288), (S_B, 524288), (S_WK, 1572864)):
        off = {S_X: S_T3, S_A: S_T2, S_B: S_T2, S_WK: S_M+1}[d]
        e(f"s_sub_u32 s{d+2}, {sz}, s{off}", f"s_mov_b32 s{d+3}, 0x20000")
    e(f"s_add_u32 m0, s{S_M}, {xsl(0)}")
    e("s_waitcnt lgkmcnt(0)")
    g.stamp(20)
    def base(d, p, off): e(f"s_add_u32 s{d}, s{p}, s{off}", f"s_addc_u32 s{d+1}, s{p+1}, 0")
    def dma_x(s, rng=range(4), setm0=True):
        if setm0: e(f"s_add_u32 m0, s{S_M}, {xsl(s)}")
        for gg in rng:
            g.vmem(f"buffer_load_dwordx4 v{VXO+gg}, {sr(S_X,4)}, s{S_KX+s} offen offset:{1024*gg} lds", f'x{s}')
    def dma_b(s):
        for part in range(2):
            e(f"s_add_u32 m0, s{S_M0B}, {L_BSL + (s%3)*8192 + part*4096}")
            g.vmem(f"buffer_load_dwordx4 v{VBO}, {sr(S_A if part==0 else S_B,4)}, s{S_KX+s} offen lds", f'x{s}')
    def dma_w(srd, slot, s, tag):
        e(f"s_add_u32 m0, s{S_M0B}, {TREG + slot*32768 + s*4096}")
        g.vmem(f"buffer_load_dwordx4 v{VWO}, {sr(srd,4)}, s{S_KW+s} offen lds", tag)
    def wgroups(srd, slot, tag, rng): return [g.capture(lambda s=s: dma_w(srd, slot, s, tag)) for s in rng]
    base(S_X, P_X, S_T3); dma_x(0, setm0=False)
    base(S_A, P_BRE, S_T2); base(S_B, P_BIM, S_T2); dma_b(0)
    base(S_WK, P_WQKV, S_M+1); dma_w(S_WK, -2, 0, 'x0')
    g.stamp(21)
    n1 = o.get('x1_pre', 2)
    dma_x(1, range(n1))
    if o.get('spre'): scalar_prefetch(g, [(P_CRE, 512, 0, 4, 128), (P_CIM, 512, 0, 4, 128)])
    for s in range(2, 8): slice_offs(s)
    e(f"v_add_u32 v113, {L_GATE}, v34")
    frag_addr(g, VXA, 32, base_s=S_M)
    e("v_lshrrev_b32 v32, 5, v0", "v_bfe_u32 v33, v0, 2, 2", "v_lshl_add_u32 v32, v32, 3, v33", "v_bfe_u32 v34, v0, 4, 1",
      f"v_lshlrev_b32 v{VTR}, 6, v32", f"v_lshl_add_u32 v{VTR}, v34, 5, v{VTR}", "v_and_b32 v35, 1, v0", f"v_lshl_add_u32 v{VTR}, v35, 4, v{VTR}",
      "v_bfe_u32 v35, v0, 1, 1", f"v_lshl_add_u32 v{VTR}, v35, 3, v{VTR}")
    e("v_lshlrev_b32 v112, 5, v32", "v_lshl_add_u32 v112, v34, 4, v112", "v_lshl_add_u32 v112, v35, 3, v112", f"v_add_u32 v112, {L_WPHI}, v112")
    rowhalf(g, S_T0)
    e(f"s_lshl_b32 s{S_T0}, s{S_T0}, 13", f"s_lshl_b32 s{S_T1}, s{S_W}, 11", f"s_add_u32 s{S_T0}, s{S_T0}, s{S_T1}", f"s_add_u32 s{S_T0}, s{S_T0}, {XREG}",
      f"v_add_u32 v115, s{S_T0}, v{V_L16}", "v_xor_b32 v116, 64, v115", "v_mov_b32 v118, 0", "v_mov_b32 v119, 0")
    e(f"s_sub_u32 s{S_T0}, s{S_M+1}, 1024"); g.srd(S_WQ, P_WQKV, S_T0, 1572864)
    e(f"s_add_u32 s{S_T0}, s{S_M+1}, 1024"); g.srd(S_WVv, P_WQKV, S_T0, 1572864)
    g.srd(S_WS, P_WS, None, WS_SIZE)
    common_late(g)
    make_sel(g, SEL, 32)
    g.arrive(0, 32)
    e(f"s_mov_b32 s{S_T2}, {LOG2E}", f"s_mov_b32 s{S_T3}, {LOG2E | 0x80000000}")
    g.stamp(0)
    dma_x(1, range(n1, 4), setm0=False); dma_b(1); dma_w(S_WK, -2, 1, 'x1')
    GB = 48
    WB = 80
    def gate_rd(s):
        b = GB+12*(s & 1)
        e(f"ds_read_b128 {vr(b,4)}, v115 offset:{xsl(s)}", f"ds_read_b128 {vr(b+4,4)}, v116 offset:{xsl(s)+1024}", f"ds_read_b128 {vr(b+8,4)}, v113 offset:{s*128}")
    def gate_dot(s):
        b = GB+12*(s & 1)
        for q in range(4): e(f"v_dot2c_f32_bf16 v118, v{b+q}, v{b+8+q}", f"v_dot2c_f32_bf16 v119, v{b+4+q}, v{b+8+q}")
    def kmm(s, k): g.mfma(ACC, WB+16*(s & 1)+4*k, X+16*s+4*k, None if (s == 0 and k == 0) else ACC)
    wv = wgroups(S_WVv, 1, 'wv', range(8))
    for s in range(8):
        g.waitvm(f'x{s}')
        e("s_waitcnt lgkmcnt(0)", "s_barrier")
        if s == 0: g.stamp(1)
        g.stamp(30+s)
        if s == 7: g.prio('t_b7')
        def issue():
            if s+2 < 8: dma_x(s+2); dma_b(s+2); dma_w(S_WK, -2, s+2, f'x{s+2}')
            if s == 0: epoch_load(g, 114)
            for _ in range(o.get('wv_sched', {6: 4, 7: 4}).get(s, 0)): g.play(wv.pop(0))
        if not o.get('dma_late'): issue()
        for k in range(4):
            if s > 0: kmm(s-1, k)
            e(f"ds_read_b128 {vr(X+16*s+4*k,4)}, v{VXA+k} offset:{xsl(s)}")
            for i in range(2): e(f"ds_read_b64_tr_b16 {vr(WB+16*(s&1)+4*k+2*i,2)}, v{VTR} offset:{(4*s+k)*1024+i*256}")
        if s >= 1: gate_rd(s-1)
        if o.get('dma_late'): issue()
        if s >= 2: gate_dot(s-2)
        if s == 2:
            for hd, dst in ((0, WPA), (1, WPB)):
                for i in range(2): e(f"ds_read_b64_tr_b16 {vr(dst+2*i,2)}, v112 offset:{hd*512+i*128}")
        if s == 3:
            epoch_use(g, 114)
            e("v_bfe_u32 v112, v0, 2, 1", "v_mul_u32_u24 v112, 0x8000, v112", "v_lshl_or_b32 v112, v112, 16, v112")
            for q in range(8): e(f"v_xor_b32 v{WPA+q}, v{WPA+q}, v112")
    e("s_waitcnt lgkmcnt(0)")
    for k in range(4): kmm(7, k)
    gate_rd(7); gate_dot(6)
    while wv: g.play(wv.pop(0))
    wq = wgroups(S_WQ, 0, 'wq', range(8))
    qa, qb, qc = o.get('wq_pre', (0, 0, 0))
    for _ in range(qa): g.play(wq.pop(0))
    e(f"v_add_u32 v{VTR}, {TREG}, v{VTR}")
    g.stamp(2)
    g.cvt16(KP, ACC, 8); g.mfma(DA, WPA, KP); g.cvt16(KP+4, ACC+8, 8); g.mfma(DB, WPB, KP+4)
    e("s_waitcnt lgkmcnt(0)"); gate_dot(7)
    def gate_fin():
        e(f"v_lshrrev_b32 v{GA}, 3, v0", f"s_lshl_b32 s{S_T0}, s{S_W}, 6", f"s_add_u32 s{S_T0}, s{S_T0}, {L_G}", f"v_lshl_add_u32 v{GA}, v{GA}, 2, s{S_T0}")
        for md in ("quad_perm:[1,0,3,2]", "quad_perm:[2,3,0,1]", "row_half_mirror"):
            e(f"v_add_f32_dpp v{G0}, v{G0}, v{G0} {md} row_mask:0xf bank_mask:0xf", f"v_add_f32_dpp v{G1_}, v{G1_}, v{G1_} {md} row_mask:0xf bank_mask:0xf")
        e(f"v_mul_f32 v{G0}, s{S_T3}, v{G0}", f"v_mul_f32 v{G1_}, s{S_T3}, v{G1_}", f"v_exp_f32 v{G0}, v{G0}", f"v_exp_f32 v{G1_}, v{G1_}", f"v_add_f32 v{G0}, 1.0, v{G0}", f"v_add_f32 v{G1_}, 1.0, v{G1_}",
          f"v_rcp_f32 v{G0}, v{G0}", f"v_rcp_f32 v{G1_}, v{G1_}", f"ds_write_b32 v{GA}, v{G0}", f"ds_write_b32 v{GA}, v{G1_} offset:32")
    if o.get('gate_late'):
        G0, G1_, GA = 8, 9, 7
        e(f"v_mov_b32 v{G0}, v118", f"v_mov_b32 v{G1_}, v119")
    else:
        G0, G1_, GA = 118, 119, 113
        gate_fin()
    def wgemm(slot, transposed, groups=(), k0=0, k1=32, fill=(), hooks={}):
        D = 6
        groups = list(groups); n = len(groups); k = 0; fill = list(fill); nf = len(fill); kf = 0
        def rd(ks):
            for i in range(2): e(f"ds_read_b64_tr_b16 {vr(RING+4*(ks%D)+2*i,2)}, v{VTR} offset:{slot*32768+ks*1024+i*256}")
        for ks in range(D-1): rd(ks)
        for ks in range(32):
            if ks+D-1 < 32: rd(ks+D-1)
            upto = nf*(ks+1)//32
            if ks == 0:
                g.play(fill[:upto]); kf = upto
            e(f"s_waitcnt lgkmcnt({2*min(D-1, 31-ks)})")
            w = RING+4*(ks%D); x = X+4*ks
            if transposed: g.mfma(ACC, w, x, None if ks == 0 else ACC)
            else: g.mfma(ACC, x, w, None if ks == 0 else ACC)
            if ks in hooks: hooks[ks]()
            while k < n and ks >= k0 + (k1-k0)*k//n: g.play(groups[k]); k += 1
            upto = min(nf, nf*(ks+2)//32)
            g.play(fill[kf:upto]); kf = max(kf, upto)
    S_KVG, S_ZG, S_KVP, S_ZP, S_WOM, S_OST, S_NM = S_KX, S_KX+1, S_KX+2, S_KX+3, S_KX+4, S_KX+5, S_KX+6
    VKW, VKR, VZR, VZ8 = 12, 13, 14, 15
    VA, VB, ZT = 80, 88, 76
    H2 = o.get('hops', 1) == 2
    OCK = o.get('ock', 1)
    oh = o.get('ohint_at', 0) if OCK else None
    RO = RECO if OCK else 2048
    def su1():
        e(f"s_mov_b32 s{S_M}, 0xffff", f"s_mov_b32 s{S_M+1}, 0xffff", f"s_mov_b32 s{S_NM}, 0xffff0000", f"s_mov_b32 s{S_NM+1}, 0xffff0000")
        e(f"s_add_u32 s{S_T0}, s{S_M0B}, {L_KVR}", f"v_add_u32 v{VKW}, s{S_T0}, v{V_L16}")
    def su2():
        e(f"s_lshl_b32 s{S_T0}, s{S_W}, 12", f"s_add_u32 s{S_T0}, s{S_T0}, {L_KVR}", f"v_add_u32 v{VKR}, s{S_T0}, v{V_L16}")
    def su3():
        e(f"s_lshl_b32 s{S_T0}, s{S_W}, 6", f"s_add_u32 s{S_T0}, s{S_T0}, {L_ZR}", f"v_and_b32 v{VZ8}, 60, v0", f"v_add_u32 v{VZR}, s{S_T0}, v{VZ8}")
        if H2: e(f"v_lshlrev_b32 v{VZ8}, 8, v{VZ8}", f"v_and_or_b32 v{VZ8}, v{V_L16}, 48, v{VZ8}")
    def su4():
        e(f"s_lshl_b32 s{S_T0}, s{S_J}, 2", f"s_add_u32 s{S_T0}, s{S_T0}, s{S_W}", f"s_lshl_b32 s{S_KVG}, s{S_T0}, 14", f"s_add_u32 s{S_KVG}, s{S_KVG}, {WS_KV}")
        if H2: e(f"s_lshl_b32 s{S_ZG}, s{S_T0}, 10", f"s_add_u32 s{S_ZG}, s{S_ZG}, {WS_H2}")
    def su5():
        if H2: e(f"s_lshl_b32 s{S_T0}, s{S_C}, 6", f"s_add_u32 s{S_KVP}, s{S_KVG}, s{S_T0}", f"s_add_u32 s{S_ZP}, s{S_ZG}, s{S_T0}",
                 f"s_lshl_b32 s{S_T0}, s{S_C}, 10", f"s_add_u32 s{S_KVG}, s{S_KVG}, s{S_T0}")
        else: e(f"s_lshl_b32 s{S_T0}, s{S_C}, 10", f"s_add_u32 s{S_KVP}, s{S_KVG}, s{S_T0}")
    def su5b():
        e(f"s_lshl_b32 s{S_T0}, s{S_J}, 2", f"s_add_u32 s{S_T0}, s{S_T0}, s{S_W}", f"s_lshl_b32 s{S_T0}, s{S_T0}, 7", f"s_add_u32 s{S_B}, s{S_T0}, {WS_FLAGS+FL_K}",
          f"s_lshl_b32 s{S_T0}, s{S_C}, 2", f"s_add_u32 s{S_B+1}, s{S_B}, s{S_T0}")
    def su6():
        colblk(g, S_T1)
        e(f"s_lshl_b32 s{S_T0}, s{S_W}, 16", f"s_lshl_b32 s{S_T1}, s{S_T1}, 7", f"s_add_u32 s{S_T0}, s{S_T0}, s{S_T1}")
        g.srd(S_A, P_WO, S_T0, 524288)
    def su7():
        e(f"v_lshrrev_b32 v{VXO}, 3, v0", f"v_lshlrev_b32 v{VXO}, 10, v{VXO}", f"v_and_b32 v{VXO+1}, 7, v0", f"v_bfe_u32 v{VXO+2}, v0, 4, 1")
        e(f"v_lshlrev_b32 v{VXO+2}, 2, v{VXO+2}", f"v_xor_b32 v{VXO+1}, v{VXO+1}, v{VXO+2}", f"v_lshl_add_u32 v{VXO}, v{VXO+1}, 4, v{VXO}")
        for k in range(1, 4): e(f"v_add_u32 v{VXO+k}, {7168*k}, v{VXO}")
        e(f"s_lshl_b32 s{S_WOM}, s{S_W}, 13")
    def su10():
        e(f"s_lshl_b32 s{S_T0}, s{S_C}, 2", f"s_add_u32 s{S_T0}, s{S_T0}, s{S_W}", f"s_lshl_b32 s{S_T0}, s{S_T0}, 4", f"s_add_u32 s{S_T0}, s{S_T0}, s{S_J}",
          f"s_mul_i32 s{S_T0}, s{S_T0}, {RO}", f"s_add_u32 s{S_OST}, s{S_T0}, {WS_A2O}")
    for f in (su1, su2, su3, su4, su5, su5b): f()
    e(f"s_mov_b32 s{S_DS}, 0x3f803f80", f"s_lshl_b32 s{S_T0}, s{S_W}, 8", f"s_add_u32 s{S_T0}, s{S_T0}, {L_ZR}", f"v_lshl_add_u32 v{VBO}, v0, 2, s{S_T0}")
    def phik():
        softmax_np(g, DA, PA, KP)
        g.mfma(DA, PA, SEL); g.mfma(DA, PA+4, SEL+4, DA)
        softmax_np(g, DB, PB, KP)
        g.mfma(DB, PB, SEL); g.mfma(DB, PB+4, SEL+4, DB)
        e(f"v_mov_b32 v{ZT}, 0", f"v_mov_b32 v{ZT+1}, 0")
        g.cvt16(PA, DA)
        for q in range(16): e(f"v_mov_b32 v{VA+q}, 0")
        g.cvt16(PB, DB)
        for q in range(8): e(f"v_dot2c_f32_bf16 v{ZT}, s{S_DS}, v{PA+q}", f"v_dot2c_f32_bf16 v{ZT+1}, s{S_DS}, v{PB+q}")
    fill = g.capture(phik)
    npre = o.get('sm_pre', 30)
    g.weave(fill[:npre], wq[:qb]); fill = fill[npre:]; del wq[:qb]
    g.waitvm('wv'); e("s_barrier"); g.prio('t_b8')
    for _ in range(qc): g.play(wq.pop(0))
    g.stamp(3)
    if o.get('onlyS'):
        final_preload(g, 34); final_setup(g); e("s_branch L_final")
    wgemm(1, False, wq, o.get('wq_start', 8), o.get('wq_end', 26), fill)
    g.stamp(5)
    if o.get('khint_early', 1) == 1: g.setflag(S_B+1, KP, False)
    e(f"v_permlane32_swap_b32 v{ZT}, v{ZT+1}", f"v_add_f32 v{ZT}, v{ZT}, v{ZT+1}", f"ds_write_b32 v{VBO}, v{ZT}")
    for a in range(2):
        e(f"s_mov_b64 exec, {sr(S_M,2)}"); g.cvt16(VA+4*a, ACC+8*a, 8)
        e(f"s_mov_b64 exec, {sr(S_NM,2)}"); g.cvt16(VB+4*a, ACC+8*a, 8)
        e("s_mov_b64 exec, -1")
        g.mfma(DB, PA+4*a, VA+4*a, None if a == 0 else DB); g.mfma(DB, PB+4*a, VB+4*a, DB)
    su6(); su10()
    g.waitvm('wq')
    for q in range(4): e(f"ds_write_b128 v{VKW}, {vr(DB+4*q,4)} offset:{q*4096}")
    g.arrive(3, RING)
    if o.get('khint_early', 1) == 2: g.setflag(S_B+1, KP, False)
    if o.get('gate_late'): gate_fin()
    su7(); e(f"v_lshlrev_b32 v{VBO}, 2, v0"); g.rwait(3, RING)
    if o.get('kpoll_at', 2) < 0: g.poll_issue(VBO, S_B, '0xffff', VKW, False)
    for q in range(4): e(f"ds_read_b32 v{KP+q}, v{VZR} offset:{q*256}")
    for q in range(4): e(f"ds_read_b128 {vr(DB+4*q,4)}, v{VKR} offset:{q*1024}")
    e(f"v_mov_b32 v{KP+7}, s{S_NON}", "s_waitcnt lgkmcnt(4)",
      f"v_pk_add_f32 {vr(KP,2)}, {vr(KP,2)}, {vr(KP+2,2)}", "s_waitcnt lgkmcnt(2)")
    e(f"v_pk_add_f32 {vr(DB,2)}, {vr(DB,2)}, {vr(DB+4,2)}", f"v_pk_add_f32 {vr(DB+2,2)}, {vr(DB+2,2)}, {vr(DB+6,2)}", f"v_add_f32 v{KP+6}, v{KP}, v{KP+1}", "s_waitcnt lgkmcnt(0)",
      f"v_pk_add_f32 {vr(DB+8,2)}, {vr(DB+8,2)}, {vr(DB+12,2)}", f"v_pk_add_f32 {vr(DB+10,2)}, {vr(DB+10,2)}, {vr(DB+14,2)}",
      f"v_pk_add_f32 {vr(DB,2)}, {vr(DB,2)}, {vr(DB+8,2)}", f"v_pk_add_f32 {vr(DB+2,2)}, {vr(DB+2,2)}, {vr(DB+10,2)}",
      f"v_cvt_pk_bf16_f32 v{KP+4}, v{DB}, v{DB+1}", f"v_cvt_pk_bf16_f32 v{KP+5}, v{DB+2}, v{DB+3}")
    g.vmem(f"buffer_store_dwordx4 {vr(KP+4,4)}, v{VZ8 if H2 else V_L16}, {sr(S_WS,4)}, s{S_KVP} offen sc1", 'kvst')
    if not o.get('khint_early', 1): g.setflag(S_B+1, KP, False)
    g.stamp(6)
    def wo_groups(kh):
        r = []
        for q in range(8):
            def f(q=q):
                if q % 4 == 0: e(f"s_add_u32 m0, s{S_WOM}, {TREG + kh*32768 + q*1024}", f"s_mov_b32 s{S_DS}, {kh*262144 + q*8192}")
                g.vmem(f"buffer_load_dwordx4 v{VXO+q%4}, {sr(S_A,4)}, s{S_DS} offen offset:{1024*(q%4)} lds", f'wo')
            r.append(g.capture(f))
        return r
    g.prio('t_q')
    wol = wo_groups(1) + wo_groups(0)
    def wo_issue(key):
        n = o.get('wo_sched', {}).get(key, 0); r = wol[:n]; del wol[:n]; return r
    KG, TT = X, 32
    retry = []
    def validated(load, check, tag, cnt):
        lr = g.lab('gr'); lo = g.lab('go'); l2 = g.lab('gq')
        g.waitvm(tag); check()
        e(f"s_cbranch_vccnz {lr}" if not o.get('noval') else "s_nop 0", lo+":")
        def rt():
            e(lr+":", f"s_mov_b32 s{S_T0}, {o.get('timeout', 200000)}", l2+":", f"s_sleep {o.get('rsleep', 4)}"); g.count(cnt); load(False)
            e(f"s_sub_u32 s{S_T0}, s{S_T0}, 1", "s_waitcnt vmcnt(0)", f"s_cbranch_scc1 {lo}"); check()
            e(f"s_cbranch_vccnz {l2}", f"s_branch {lo}", g.lab('role_c')+":")
        retry.append(g.capture(rt))
    def gload(i, track=True):
        e(f"s_add_u32 s{S_T1}, s{S_KVG}, {4096*i}")
        for k in range(4):
            x = f"buffer_load_dwordx4 {vr(KG+16*i+4*k,4)}, v{V_L16}, {sr(S_WS,4)}, s{S_T1} offen offset:{1024*k} sc1"
            g.vmem(x, f'kg{i}') if track else e(x)
    def gcheck(i):
        e(f"v_xor_b32 v{TT+6}, s{S_NON}, v{KG+16*i+3}")
        for k in range(1, 4): e(f"v_bitop3_b32 v{TT+6}, v{TT+6}, s{S_NON}, v{KG+16*i+4*k+3} bitop3:0xf6")
        e(f"v_cmp_ne_u32 vcc, 0, v{TT+6}")
    G1, G2 = X, 68
    def load1(track=True):
        for i in range(4):
            x = f"buffer_load_dwordx4 {vr(G1+4*i,4)}, v{V_L16}, {sr(S_WS,4)}, s{S_KVG} offen offset:{256*i} sc1"
            g.vmem(x, 'kg1') if track else e(x)
    def check1():
        e(f"v_xor_b32 v{TT+6}, s{S_NON}, v{G1+3}")
        for i in range(1, 4): e(f"v_bitop3_b32 v{TT+6}, v{TT+6}, s{S_NON}, v{G1+4*i+3} bitop3:0xf6")
        e(f"v_cmp_ne_u32 vcc, 0, v{TT+6}")
    def load2(track=True):
        x = f"buffer_load_dwordx4 {vr(G2,4)}, v{V_L16}, {sr(S_WS,4)}, s{S_ZG} offen sc1"
        g.vmem(x, 'kg2') if track else e(x)
    def check2(): e(f"v_cmp_ne_u32 vcc, s{S_NON}, v{G2+3}")
    ggr = [] if H2 else [g.capture(lambda i=i: gload(i)) for i in range(4)]
    def first():
        g.prio('t_m')
        g.poll_wait(VBO, S_B, '0xffff', VKW, False, 0x100, o.get('hint_lag', 8))
        if H2:
            e("s_mov_b64 exec, 0xffff"); load1(); e("s_mov_b64 exec, -1")
            e(f"s_add_u32 s{S_B}, s{S_B}, 64", f"s_add_u32 s{S_B+1}, s{S_B+1}, 64")
            if o.get('hint2_at', 0) == 0: g.setflag(S_B+1, VKR, False)
        else:
            for _ in range(o.get('g_pre', 2)): g.play(ggr.pop(0))
        g.prio('t_m2')
    hooks = {}
    if o.get('kpoll_at', 2) >= 0: hooks[o.get('kpoll_at', 2)] = lambda: g.poll_issue(VBO, S_B, '0xffff', VKW, False)
    mid = o.get('mid_at')
    if mid is not None:
        assert mid >= 16
        hooks[mid] = first
    wgemm(0, True, wo_issue('q'), o.get('wo1_start', 4), o.get('wo1_end', 20), hooks=hooks)
    assert len(wol) >= 8
    g.arrive(4, RING); g.prio('t_g')
    g.stamp(7)
    if mid is None: first()
    else:
        for _ in range(min(len(ggr), o.get('g_post', 2))): g.play(ggr.pop(0))
    ng = 0
    g.cvt16(KP, ACC, 8); g.mfma(DA, WPA, KP); g.cvt16(KP+4, ACC+8, 8); g.mfma(DB, WPB, KP+4)
    sm = softmax_np if o.get('smq_np') else softmax
    def hop1():
        e(f"s_mov_b32 s{S_NM}, 0x3f80", f"s_mov_b32 s{S_NM+1}, 0x3f800000", f"v_mov_b32 v{TT+11}, s{S_NON}", "s_mov_b64 exec, 0xffff")
        validated(load1, check1, 'kg1', 1)
        e(f"v_lshlrev_b32 v{TT}, 16, v{G1}", f"v_and_b32 v{TT+1}, 0xffff0000, v{G1}", f"v_lshlrev_b32 v{TT+2}, 16, v{G1+1}", f"v_and_b32 v{TT+3}, 0xffff0000, v{G1+1}",
          f"v_add_f32 v{TT+4}, v{G1+2}, v{G1+6}")
        for i in range(1, 4):
            r = G1+4*i
            e(f"v_dot2c_f32_bf16 v{TT}, s{S_NM}, v{r}", f"v_dot2c_f32_bf16 v{TT+1}, s{S_NM+1}, v{r}", f"v_dot2c_f32_bf16 v{TT+2}, s{S_NM}, v{r+1}", f"v_dot2c_f32_bf16 v{TT+3}, s{S_NM+1}, v{r+1}")
            if i > 1: e(f"v_add_f32 v{TT+4}, v{TT+4}, v{r+2}")
        for md in ("row_ror:4", "row_ror:8"):
            for k in (4, 0, 1, 2, 3): e(f"v_add_f32_dpp v{TT+k}, v{TT+k}, v{TT+k} {md} row_mask:0xf bank_mask:0xf")
        e(f"v_cvt_pk_bf16_f32 v{TT+10}, v{TT+4}, v{TT+4}", f"v_cvt_pk_bf16_f32 v{TT+8}, v{TT}, v{TT+1}", f"v_cvt_pk_bf16_f32 v{TT+9}, v{TT+2}, v{TT+3}", "s_mov_b64 exec, 15")
        g.vmem(f"buffer_store_dwordx4 {vr(TT+8,4)}, v{V_L16}, {sr(S_WS,4)}, s{S_ZP} offen sc1", 'kvst2')
        e("s_mov_b64 exec, -1")
        if o.get('hint2_at', 0) == 1: g.setflag(S_B+1, VKR, False)
        if not o.get('p2_sm'): g.poll_issue(VBO, S_B, '0xffff', VKW, False)
    l2done = False
    if H2 and o.get('hop1_mid', 1) == 2:
        both = g.capture(lambda: (sm(g, DA, PA, RING), sm(g, DB, PB, RING)))
        n1, n2 = o.get('h1_sm', 0), o.get('h2_sm', len(both))
        g.play(both[:n1]); hop1()
        if o.get('p2_sm'):
            g.play(both[n1:o['p2_sm']]); g.poll_issue(VBO, S_B, '0xffff', VKW, False); n1 = o['p2_sm']
        g.play(both[n1:n2])
        if n2 < len(both):
            g.poll_wait(VBO, S_B, '0xffff', VKW, False, 0x100, o.get('hint_lag', 8)); load2(); l2done = True
            g.play(both[n2:])
    elif H2 and o.get('hop1_mid', 1):
        sm(g, DA, PA, RING); hop1(); sm(g, DB, PB, RING)
    else:
        g.weave(g.capture(lambda: (sm(g, DA, PA, RING), sm(g, DB, PB, RING))), ggr[ng:], o.get('g_start', 40), o.get('g_end', 120))
        if H2: hop1()
    g.rwait(4, TT)
    for x in wo_issue('g'): g.play(x)
    e(f"s_lshl_b32 s{S_T0}, s{S_W}, 3", f"s_add_u32 s{S_T0}, s{S_T0}, {L_KVD}", f"v_lshlrev_b32 v106, 5, v0", f"v_add_u32 v102, s{S_T0}, v106", f"v_add_u32 v106, {L_KVD}, v106")
    e("v_bfe_u32 v103, v0, 4, 1", "v_lshlrev_b32 v103, 5, v103", "v_lshrrev_b32 v107, 5, v0", "v_lshl_add_u32 v103, v107, 3, v103", "v_bfe_u32 v107, v0, 2, 2", "v_lshl_add_u32 v103, v107, 1, v103",
      f"s_lshr_b32 s{S_T0}, s{S_W}, 1", f"s_lshl_b32 s{S_T0}, s{S_T0}, 6", f"s_and_b32 s{S_T1}, s{S_W}, 1", f"s_lshl_b32 s{S_T1}, s{S_T1}, 4", f"s_add_u32 s{S_T0}, s{S_T0}, s{S_T1}",
      f"s_add_u32 s{S_T0}, s{S_T0}, {L_ZD}", f"v_add_u32 v103, s{S_T0}, v103")
    e("v_and_b32 v107, 32, v0", f"v_add_u32 v107, {L_ZD}, v107", f"v_cndmask_b32 v104, v107, v106, {sr(S_M,2)}", "v_add_u32 v107, 64, v107", f"v_cndmask_b32 v105, v106, v107, {sr(S_M,2)}")
    e(f"s_lshl_b32 s{S_T0}, s{S_C}, 2", f"s_add_u32 s{S_T0}, s{S_T0}, s{S_W}", f"s_lshl_b32 s{S_T0}, s{S_T0}, 8", f"s_lshr_b32 s{S_T1}, s{S_J}, 3", f"s_lshl_b32 s{S_T1}, s{S_T1}, 7",
      f"s_add_u32 s{S_T0}, s{S_T0}, s{S_T1}", f"s_and_b32 s{S_T1}, s{S_J}, 7", f"s_lshl_b32 s{S_T1}, s{S_T1}, {2 if OCK else 3}", f"s_add_u32 s{S_T0}, s{S_T0}, s{S_T1}", f"s_add_u32 s{S_B+1}, s{S_T0}, {WS_FLAGS+FL_O}")
    e(f"s_mov_b32 s{S_T2}, 0x3f80", f"s_mov_b32 s{S_T3}, 0x3f800000")
    g.stamp(8)
    if H2:
        if not l2done:
            g.poll_wait(VBO, S_B, '0xffff', VKW, False, 0x100, o.get('hint_lag', 8))
            load2()
        if oh == -1: g.setflag(S_B+1, TT+6, False)
        for x in wo_issue('l'): g.play(x)
        validated(load2, check2, 'kg2', 1)
        if oh == 0: g.setflag(S_B+1, TT+6, False)
        g.stamp(9)
        e(f"ds_write_b64 v102, {vr(G2,2)}", f"ds_write_b16 v103, v{G2+2}")
    else:
        for i in range(4):
            validated(lambda t, i=i: gload(i, t), lambda i=i: gcheck(i), f'kg{i}', 1)
            if i == 3 and oh == 0: g.setflag(S_B+1, TT+6, False)
            for k in range(4):
                r = KG+16*i+4*k
                if i == 0 and k == 0:
                    e(f"v_lshlrev_b32 v{TT}, 16, v{r}", f"v_and_b32 v{TT+1}, 0xffff0000, v{r}", f"v_lshlrev_b32 v{TT+2}, 16, v{r+1}", f"v_and_b32 v{TT+3}, 0xffff0000, v{r+1}")
                    continue
                e(f"v_dot2c_f32_bf16 v{TT}, s{S_T2}, v{r}", f"v_dot2c_f32_bf16 v{TT+1}, s{S_T3}, v{r}", f"v_dot2c_f32_bf16 v{TT+2}, s{S_T2}, v{r+1}", f"v_dot2c_f32_bf16 v{TT+3}, s{S_T3}, v{r+1}",
                  f"v_add_f32 v{TT+4}, v{KG+2 if (i == 0 and k == 1) else TT+4}, v{r+2}")
        g.stamp(9)
        e(f"v_cvt_pk_bf16_f32 v{TT+4}, v{TT+4}, v{TT+4}", f"ds_write_b16 v103, v{TT+4}", f"v_cvt_pk_bf16_f32 v{TT}, v{TT}, v{TT+1}", f"v_cvt_pk_bf16_f32 v{TT+1}, v{TT+2}, v{TT+3}", f"ds_write_b64 v102, {vr(TT,2)}")
    wo_in = not wol and o.get('wo_sync5', 1)
    if wo_in: g.waitvm('wo')
    g.arrive(5, 36)
    for x in wo_issue('s'): g.play(x)
    g.rwait(5, 36)
    if oh == 1: g.setflag(S_B+1, TT+6, False)
    g.stamp(10)
    for a in range(2): e(f"ds_read_b128 {vr(32+4*a,4)}, v104 offset:{16*a}", f"ds_read_b128 {vr(40+4*a,4)}, v105 offset:{16*a}")
    VL4 = 21
    e(f"s_mov_b32 s{S_T1}, 0x358637bd", f"v_lshlrev_b32 v{VL4}, {2 if OCK else 3}, v0")
    e("s_waitcnt lgkmcnt(3)"); g.mfma(48, 32, PA)
    e("s_waitcnt lgkmcnt(1)"); g.mfma(48, 36, PA+4, 48); g.mfma(64, 40, PB)
    e("s_waitcnt lgkmcnt(0)"); g.mfma(64, 44, PB+4, 64)
    rowhalf(g, S_T0)
    e(f"s_lshl_b32 s{S_T0}, s{S_T0}, 1", f"s_and_b32 s{S_T2}, s{S_W}, 1", f"s_add_u32 s{S_T0}, s{S_T0}, s{S_T2}",
      f"s_lshr_b32 s{S_T2}, s{S_W}, 1", f"s_lshl_b32 s{S_T2}, s{S_T2}, 3",
      f"s_lshl_b32 s{S_KX}, s{S_C}, 2", f"s_add_u32 s{S_KX}, s{S_KX}, s{S_T0}", f"s_lshl_b32 s{S_KX}, s{S_KX}, 4", f"s_add_u32 s{S_KX}, s{S_KX}, s{S_T2}",
      f"s_lshl_b32 s{S_B}, s{S_KX}, 4", f"s_add_u32 s{S_B}, s{S_B}, {WS_FLAGS+FL_O}")
    for hd, num, den in ((0, 48, 56), (1, 72, 64)):
        e(f"v_add_f32 v{den}, s{S_T1}, v{den}", f"v_rcp_f32 v{den}, v{den}")
        for i in range(8): e(f"v_mul_f32 v{num+i}, v{num+i}, v{den}")
        g.cvt16(80+4*hd, num, 8)
        g.vmem(f"buffer_store_dwordx4 {vr(80+4*hd,4)}, v{V_L16}, {sr(S_WS,4)}, s{S_OST} offen offset:{1024*hd} sc1", 'ost')
    if OCK:
        e("v_add3_u32 v88, v80, v81, v82", "v_add3_u32 v88, v88, v83, v84", "v_add3_u32 v88, v88, v85, v86", "v_add_u32 v88, v88, v87", f"v_sub_u32 v88, s{S_NON}, v88")
        g.vmem(f"buffer_store_dword v88, v{VL4}, {sr(S_WS,4)}, s{S_OST} offen offset:2048 sc1", 'ost')
    if oh == 2: g.setflag(S_B+1, 34, False)
    g.stamp(11)
    g.prio('t_o')
    if OCK:
        final_preload(g, 34)
        if not o.get('opoll_late'): g.poll_issue(VL4, S_B, '0xff', 104, False)
        for x in wol: g.play(x)
    else:
        for x in wo_issue('o'): g.play(x)
    e(f"s_mul_i32 s{S_KX}, s{S_KX}, {RO}", f"s_add_u32 s{S_KX}, s{S_KX}, {WS_A2O}", f"s_mov_b32 s{S_NN}, s{S_NON}", f"s_mov_b32 s{S_NN+1}, s{S_NON}")
    e("v_lshrrev_b32 v96, 5, v0", "v_bfe_u32 v97, v0, 2, 2", "v_lshl_add_u32 v96, v96, 3, v97", "v_lshlrev_b32 v96, 7, v96", "v_bfe_u32 v97, v0, 3, 1", "v_lshl_add_u32 v96, v97, 6, v96",
      "v_bfe_u32 v97, v0, 4, 1", "v_lshl_add_u32 v96, v97, 5, v96", "v_and_b32 v97, 3, v0", "v_lshl_add_u32 v96, v97, 3, v96",
      f"s_lshr_b32 s{S_T0}, s{S_W}, 1", f"s_lshl_b32 s{S_T0}, s{S_T0}, 15", f"s_add_u32 s{S_T0}, s{S_T0}, {TREG}", f"v_add_u32 v96, s{S_T0}, v96", "v_xor_b32 v97, 64, v96")
    def trreads():
        if not wo_in: g.waitvm('wo'); g.arrive(6, 100); g.rwait(6, 100)
        for ks in range(16):
            for ch in range(2):
                for i in range(2): e(f"ds_read_b64_tr_b16 {vr(X+8*ks+4*ch+2*i,2)}, v{96+ch} offset:{ks*2048+i*512}")
        g.arrive(7, 100)
    if not OCK:
        trd = False
        if wo_in: trreads(); trd = True
        g.waitvm('ost'); g.setflag(S_B+1, 34)
        for x in wol: g.play(x)
        final_preload(g, 34)
        tf = o.get('tr_first', 1)
        if not trd and tf == 1: trreads(); trd = True
        e(f"s_lshl_b32 s{S_T0}, s{S_W}, 13", f"s_add_u32 s{S_T0}, s{S_T0}, {TREG}"); part_addr(g, 6, 36, S_T0)
        if o.get('o_delay'): e(f"s_sleep {o['o_delay']}")
        g.poll_issue(VL4, S_B, '0xff', 104)
        if not trd and tf == 0: trreads(); trd = True
        final_setup(g)
        if not trd: g.waitvm('wo'); g.arrive(6, 100)
        g.stamp(12); g.prio('t_a')
        g.poll_wait(VL4, S_B, '0xff', 104, True, 0x10000)
        g.stamp(13)
        for k4 in range(4):
            if k4: e(f"s_add_u32 s{S_KX}, s{S_KX}, 4096")
            for k in range(4): g.vmem(f"buffer_load_dwordx4 {vr(32+16*k4+4*k,4)}, v{V_L16}, {sr(S_WS,4)}, s{S_KX} offen offset:{1024*k} sc1", f'a{4*k4+k}')
            if not trd and k4 == o.get('a2o_pre', 2)-1:
                g.rwait(6, 100); wo_in = True; trreads(); trd = True
        g.rwait(7, 100)
        for ks in range(16):
            g.waitvm(f'a{ks}')
            for ch in range(2): g.mfma(96+16*ch, X+8*ks+4*ch, 32+4*ks, None if ks == 0 else 96+16*ch)
    else:
        rs = RecStream(g, 4, 4, 32, 8, 30, VL4, lambda i, r: (S_KX, (2*i+r)*RECO), S_KX+1, S_KX+2)
        tr_first = o.get('tr_first', 1)
        keep = None
        if tr_first: trreads()
        if o.get('opoll_late'): g.poll_issue(VL4, S_B, '0xff', 104, False)
        final_setup(g)
        g.stamp(12); g.prio('t_a')
        g.poll_wait(VL4, S_B, '0xff', 104, False, 0x10000, o.get('ohint_lag', 8))
        nl = 4 if tr_first else o.get('a2o_pre', 2)
        for i in range(nl): rs.load(i)
        if not tr_first: trreads()
        for i in range(nl, 4): rs.load(i)
        g.rwait(7, 100)
        g.stamp(13)
        for i in range(4):
            rs.need(i, range(i+1, 4))
            for r in range(2):
                for a in range(2):
                    ks = 4*i+2*r+a
                    for ch in range(2): g.mfma(96+16*ch, X+8*ks+4*ch, rs.frag(i, r, a), None if ks == 0 else 96+16*ch)
            if i == 2:
                e(f"s_lshl_b32 s{S_T0}, s{S_W}, 13", f"s_add_u32 s{S_T0}, s{S_T0}, {TREG}"); part_addr(g, 6, 10, S_T0)
        retry += rs.cold
    g.stamp(14)
    for ch in range(2):
        for q in range(4): e(f"ds_write_b128 v{6+q}, {vr(96+16*ch+4*q,4)} offset:{ch*128}")
    e("s_branch L_final")
    e("L_role_cold:")
    for r in retry: g.play(r)

def roleS_start(g):
    e = g.e; o = g.o
    g.vm = []
    VXA, VBA = 12, 6
    e("L_roleS:", "s_setprio 2")
    if o.get('codepre', 1):
        e(f"s_getpc_b64 {sr(S_KX,2)}", "L_pc:",
          f"s_sub_u32 s{S_KX}, s{S_KX}, L_pc-{KNAME}_kernel", f"s_subb_u32 s{S_KX+1}, s{S_KX+1}, 0",
          f"s_lshr_b32 s{S_T0}, s2, 3", f"s_lshl_b32 s{S_T0}, s{S_T0}, 2", f"s_add_u32 s{S_T0}, s{S_T0}, s{S_W}", f"s_lshl_b32 s{S_T0}, s{S_T0}, 8",
          f"v_lshl_add_u32 v98, v0, 7, s{S_T0}", f"v_min_u32 v98, L_codeend-4-{KNAME}_kernel, v98", "s_mov_b64 exec, 3", f"global_load_dword v99, v98, {sr(S_KX,2)}", "s_mov_b64 exec, -1")
    e("v_and_b32 v96, 19, v0", "v_bfe_u32 v97, v0, 2, 1", "v_lshl_add_u32 v96, v97, 3, v96", "v_bfe_u32 v97, v0, 3, 1", "v_lshl_add_u32 v96, v97, 2, v96",
      f"s_lshl_b32 s{S_T0}, s{S_J}, 5", f"v_add_u32 v96, s{S_T0}, v96", "v_lshlrev_b32 v96, 1, v96")
    e(f"s_lshl_b32 s{S_T0}, s{S_R0}, 3", f"s_bitcmp1_b32 s{S_W}, 0", f"s_cselect_b32 s{S_T0}, 0, s{S_T0}", f"s_cselect_b32 s{S_T1}, {L_WPHI-L_GATE}, 0", f"s_add_u32 m0, s{S_T1}, {L_GATE}",
      f"v_add_u32 v97, s{S_T0}, v0", "v_and_b32 v97, 63, v97", "v_lshlrev_b32 v97, 4, v97", f"s_mov_b32 s{S_X+2}, 1024", f"s_mov_b32 s{S_X+3}, 0x20000", f"s_lshl_b32 s{S_T1}, s{S_J}, 10")
    frag_addr(g, VBA, 104, base_c=L_BSL)
    e(f"s_sub_u32 s{S_T0}, s{S_M}, {L_BSL}")
    for k in range(4): e(f"v_add_u32 v{VXA+k}, s{S_T0}, v{VBA+k}")
    e(f"v_mov_b32 v114, {WS_EPOCH}")
    e("s_waitcnt lgkmcnt(0)")
    e(f"s_add_u32 s{S_X}, s{P_WPHI}, s{S_T1}", f"s_addc_u32 s{S_X+1}, s{P_WPHI+1}, 0", f"s_bitcmp1_b32 s{S_W}, 0", f"s_cselect_b64 {sr(S_X,2)}, {sr(S_X,2)}, {sr(P_GATE,2)}")
    e(f"global_load_ushort v100, v96, {sr(P_LDT,2)}", f"global_load_ushort v101, v96, {sr(P_LRE,2)}", f"global_load_ushort v102, v96, {sr(P_LIM,2)}",
      f"global_load_dword v114, v114, {sr(P_WS,2)} sc1")
    e(f"s_cmp_ge_u32 s{S_W}, 2", "s_cbranch_scc1 L_s1", f"buffer_load_dwordx4 v97, {sr(S_X,4)}, 0 offen lds", "L_s1:")
    if o.get('spre'): scalar_prefetch(g, [(P_WO, 512, 0, 4, 128), (P_WQKV, 1536, 0, 4, 128)] if o['spre'] == 1 else [(P_WO, 512, 0, 4, 128)])
    e("s_branch L_role_Smain")

def roleS(g):
    e = g.e; o = g.o
    g.vm = []
    VXA, VBA = 12, 6
    LR, LI, L16R, L16I, LSR, LSI, W0R, W0I, W1R, W1I, CR, CI = range(16, 28)
    PSR, PSI, ER, EI = 28, 29, 30, 31
    VE0, VE1, VSEGR, VN8 = 32, 33, 34, 35
    VCO = 36
    SEL = 40
    UR, UI, RP = 48, 64, 80
    T = 96
    FB = 128
    e("L_role_Smain:", f"s_setprio {o.get('sprioA', 0)}")
    g.srd(S_WS, P_WS, None, WS_SIZE)
    common_late(g)
    make_sel(g, SEL, 104)
    e(f"s_lshl_b32 s{S_T0}, s{S_W}, 9", f"s_add_u32 s{S_T0}, s{S_T0}, {L_SEGZ}", f"v_lshl_add_u32 v{VSEGR}, v0, 3, s{S_T0}", "v_mov_b32 v104, 0", "v_mov_b32 v105, 0")
    e(f"ds_write_b64 v{VSEGR}, v[104:105]")
    g.arrive(0, 104)
    e(f"v_and_b32 v{VN8}, 31, v0", f"v_lshlrev_b32 v{VN8}, 3, v{VN8}")
    e("v_lshrrev_b32 v106, 5, v0", f"s_lshl_b32 s{S_T0}, s{S_W}, 2", f"v_add_u32 v107, s{S_T0}, v106", "v_add_u32 v108, 2, v107")
    e(f"s_lshl_b32 s{S_T0}, s{S_J}, 13", f"s_add_u32 s{S_T0}, s{S_T0}, {WS_E}", f"v_lshl_add_u32 v109, v{VN8}, 1, s{S_T0}", "v_mov_b32 v110, 0x7ffffff0")
    M0, M1 = S_KW, S_KW+2
    S_EST, S_HST = S_KW+4, S_KW+5
    for i, (cp, m, d) in enumerate(((107, M0, VE0), (108, M1, VE1))):
        e(f"v_cmp_gt_u32 {sr(m,2)}, s{S_C}, v{cp}", f"v_lshl_add_u32 v{d}, v{cp}, 9, v109", f"v_cndmask_b32 v{d}, v110, v{d}, {sr(m,2)}")
        e(f"v_sub_u32 v{cp}, s{S_C}, v{cp}", f"v_add_u32 v{cp}, -1, v{cp}", f"v_max_i32 v{cp}, 0, v{cp}", f"v_lshlrev_b32 v{cp}, 7, v{cp}", f"v_cvt_f32_u32 v{cp}, v{cp}")
    e(f"s_lshl_b32 s{S_T0}, s{S_W}, 1", f"v_add_u32 v106, s{S_T0}, v106", "v_lshlrev_b32 v106, 4, v106", "v_cvt_f32_u32 v106, v106")
    e(f"s_mov_b32 s{S_T2}, {LOG2E}")
    colblk(g, S_T0)
    e(f"s_lshl_b32 s{S_T0}, s{S_T0}, 16", f"s_lshl_b32 s{S_T1}, s{S_W}, 8", f"s_add_u32 s{S_T0}, s{S_T0}, s{S_T1}")
    g.srd(S_A, P_CRE, S_T0, 524288); g.srd(S_B, P_CIM, S_T0, 524288)
    e(f"s_lshl_b32 s{S_M0B}, s{S_W}, 14", f"s_add_u32 s{S_M0B}, s{S_M0B}, {SREG}")
    e(f"v_lshrrev_b32 v{VCO}, 3, v0", f"v_lshlrev_b32 v{VCO}, 10, v{VCO}", f"v_and_b32 v109, 7, v0", f"v_lshrrev_b32 v110, 4, v0", f"v_xor_b32 v109, v109, v110",
      f"v_lshl_add_u32 v{VCO}, v109, 4, v{VCO}", f"v_xor_b32 v{VCO+1}, 64, v{VCO}", f"v_add_u32 v{VCO+2}, {2*7168}, v{VCO}", f"v_add_u32 v{VCO+3}, {3*7168}, v{VCO+1}", f"v_add_u32 v{VCO+1}, 7168, v{VCO+1}")
    e(f"s_lshl_b32 s{S_T0}, s{S_J}, 4", f"s_add_u32 s{S_T0}, s{S_T0}, s{S_C}", f"s_lshl_b32 s{S_T0}, s{S_T0}, 9", f"s_add_u32 s{S_EST}, s{S_T0}, {WS_E}")
    e(f"s_lshl_b32 s{S_T0}, s{S_C}, 2", f"s_add_u32 s{S_T0}, s{S_T0}, s{S_W}", f"s_lshl_b32 s{S_T0}, s{S_T0}, 4", f"s_add_u32 s{S_T0}, s{S_T0}, s{S_J}",
      f"s_mul_i32 s{S_T0}, s{S_T0}, {2*REC}", f"s_add_u32 s{S_HST}, s{S_T0}, {WS_A2H}", "v_lshlrev_b32 v5, 2, v0")
    S_EF, S_EPL, M2 = S_WK, S_WK+1, S_WK+2
    e(f"s_lshl_b32 s{S_T0}, s{S_J}, 9", f"s_add_u32 s{S_T0}, s{S_T0}, {WS_FLAGS+FL_E}", f"s_lshl_b32 s{S_T1}, s{S_W}, 7", f"s_add_u32 s{S_EPL}, s{S_T0}, s{S_T1}",
      f"s_lshr_b32 s{S_T1}, s{S_C}, 2", f"s_lshl_b32 s{S_T1}, s{S_T1}, 7", f"s_add_u32 s{S_T0}, s{S_T0}, s{S_T1}", f"s_and_b32 s{S_T1}, s{S_C}, 3", f"s_lshl_b32 s{S_T1}, s{S_T1}, 2",
      f"s_add_u32 s{S_EF}, s{S_T0}, s{S_T1}", f"s_lshl_b32 s{S_T0}, s{S_W}, 2", f"s_sub_i32 s{S_T0}, s{S_C}, s{S_T0}", f"s_max_i32 s{S_T0}, s{S_T0}, 0", f"s_min_i32 s{S_T0}, s{S_T0}, 4",
      f"s_bfm_b64 {sr(M2,2)}, s{S_T0}, 0")
    if o.get('flagwarm', 1):
        e(f"s_cmp_lg_u32 s{S_W}, 3", "s_cbranch_scc1 L_s7", "s_cmp_ge_u32 s2, 192", "s_cbranch_scc1 L_s7", f"s_lshl_b32 s{S_T0}, s2, 8", f"s_add_u32 s{S_T0}, s{S_T0}, {WS_FLAGS}",
          "v_lshlrev_b32 v109, 7, v0", "v_mov_b32 v110, 0", "s_mov_b64 exec, 3", f"buffer_atomic_add v110, v109, {sr(S_WS,4)}, s{S_T0} offen sc1", "s_mov_b64 exec, -1", "L_s7:")
    def cpow(dr, di, n):
        if n is None: e("v_exp_f32 v111, v103", "v_rndne_f32 v113, v104", "v_sub_f32 v112, v104, v113")
        else: e(f"v_mul_f32 v111, {n}, v103", f"v_mul_f32 v112, {n}, v104", "v_exp_f32 v111, v111", "v_rndne_f32 v113, v112", "v_sub_f32 v112, v112, v113")
        e(f"v_cos_f32 v{dr}, v112", f"v_sin_f32 v{di}, v112", f"v_mul_f32 v{dr}, v111, v{dr}", f"v_mul_f32 v{di}, v111, v{di}")
    def params():
        e("v_lshlrev_b32 v100, 16, v100", "v_lshlrev_b32 v101, 16, v101", "v_lshlrev_b32 v102, 16, v102")
        e(f"v_mul_f32 v100, s{S_T2}, v100", "v_exp_f32 v100, v100", "v_cvt_pk_bf16_f32 v100, v100, v100", "v_lshlrev_b32 v100, 16, v100")
        e("v_mul_f32 v103, v100, v101", f"v_mul_f32 v103, s{S_T2}, v103", "v_mul_f32 v104, v100, v102", "v_mul_f32 v104, 0.15915494, v104")
        cpow(LR, LI, None); cpow(L16R, L16I, "0x41800000"); cpow(LSR, LSI, "v106"); cpow(W0R, W0I, "v107"); cpow(W1R, W1I, "v108")
        e(f"v_add_f32 v111, -1.0, v{LR}", "v_mul_f32 v112, v101, v101", "v_fmac_f32 v112, v102, v102", "v_rcp_f32 v112, v112",
          f"v_mul_f32 v{CR}, v111, v101", f"v_fmac_f32 v{CR}, v{LI}, v102", f"v_mul_f32 v{CI}, v{LI}, v101", f"v_fma_f32 v{CI}, -v111, v102, v{CI}",
          "v_add_f32 v112, v112, v112", f"v_mul_f32 v{CR}, v{CR}, v112", f"v_mul_f32 v{CI}, v{CI}, v112")
        e(f"v_mov_b32 v{T+18}, s{S_NON}", f"v_mov_b32 v{T+19}, s{S_NON+1}", f"v_lshlrev_b32 v{T+20}, 1, v{VN8}")
    par = g.capture(params)
    def touch_c():
        l = g.lab('tc')
        e(f"s_cmp_eq_u32 s{S_W}, 3", f"s_cbranch_scc1 {l}", f"s_lshl_b32 s{S_T0}, s2, 11", f"v_lshl_add_u32 v10, v0, 7, s{S_T0}",
          f"s_cmp_eq_u32 s{S_W}, 1", f"s_cselect_b64 {sr(S_KX,2)}, {sr(P_CIM,2)}, {sr(P_CRE,2)}", f"s_cmp_eq_u32 s{S_W}, 2", f"s_cselect_b64 {sr(S_KX,2)}, {sr(P_WO,2)}, {sr(S_KX,2)}",
          "s_mov_b64 exec, 0xffff", f"global_load_dword v10, v10, {sr(S_KX,2)} ; touch", "s_mov_b64 exec, -1", l+":")
    def touch_w(which):
        l = g.lab('tw')
        e(f"s_cmp_lg_u32 s{S_W}, 3", f"s_cbranch_scc1 {l}", f"s_mul_i32 s{S_T0}, s2, 6144", "v_bfe_u32 v11, v0, 3, 1", "v_mul_u32_u24 v11, 3072, v11", "v_and_b32 v117, 23, v0", "v_lshl_add_u32 v11, v117, 7, v11", f"v_add_u32 v11, s{S_T0}, v11",
          f"s_mov_b32 exec_lo, {hex({1:0xffff0000,2:0xffff,3:0xffffffff}[which])}", "s_mov_b32 exec_hi, 0", f"global_load_dword v11, v11, {sr(P_WQKV,2)} ; touch", "s_mov_b64 exec, -1", l+":")
    def touch_x(ptrs, glob):
        l = g.lab('tx')
        if len(ptrs) == 1: e(f"s_cmp_ge_u32 s{S_W}, 2", f"s_cbranch_scc1 {l}")
        e(f"s_lshr_b32 s{S_T0}, s2, {0 if glob else 3}", f"s_lshl_b32 s{S_T0}, s{S_T0}, 1", f"s_and_b32 s{S_T1}, s{S_W}, 1", f"s_add_u32 s{S_T0}, s{S_T0}, s{S_T1}", f"s_lshl_b32 s{S_T0}, s{S_T0}, 13")
        if glob: e(f"s_add_u32 s{S_T0}, s{S_T0}, {32<<20}")
        e(f"v_lshl_add_u32 v118, v0, 7, s{S_T0}", f"s_cmp_ge_u32 s{S_W}, 2", f"s_cselect_b64 {sr(S_KX+2,2)}, {sr(ptrs[-1],2)}, {sr(ptrs[0],2)}",
          f"global_load_dword v118, v118, {sr(S_KX+2,2)} ; touch", l+":")
    def touches(s):
        if o.get('xpre', (None,))[0] == s: touch_x(*o['xpre'][1:])
        if o.get('vpre', 3) == s: touch_c()
        if o.get('wpre', (None,))[0] == s: touch_w(o['wpre'][1])
    touches(-1)
    g.stamp(0)
    def mm(s):
        b = FB+48*(s&1); r = []
        for k in range(4):
            first = (s == 0 and k == 0)
            r.append(g.capture(lambda: g.mfma(UR, b+12*k, b+12*k+4, None if first else UR)))
            r.append(g.capture(lambda: g.mfma(UI, b+12*k, b+12*k+8, None if first else UI)) if (k >= o.get('drop', 0) or first) else [])
            if k < o.get('burn', 0): r[-1] = r[-1] + g.capture(lambda: g.mfma(RP, b+12*k+4, b+12*k+8, None))
        return r
    for s in range(8):
        e("s_waitcnt lgkmcnt(0)", "s_barrier")
        if s == 0: g.stamp(1)
        b = FB+48*(s&1)
        rd = []
        for k in range(4):
            rd += [f"ds_read_b128 {vr(b+12*k,4)}, v{VXA+k} offset:{xsl(s)}",
                   f"ds_read_b128 {vr(b+12*k+4,4)}, v{VBA+k} offset:{(s%3)*8192}",
                   f"ds_read_b128 {vr(b+12*k+8,4)}, v{VBA+k} offset:{(s%3)*8192+4096}"]
        if s == 0:
            e(*rd); g.waitvm0(); epoch_use(g, 114)
        else:
            m = mm(s-1)
            for k in range(8):
                g.play(m[k])
                if k < 4: e(*rd[3*k:3*k+3])
                else:
                    g.play(par[:4]); par = par[4:]
        touches(s)
    assert not par
    g.prio('s_b7')
    m = mm(7)
    for k in range(8):
        if k % 2 == 0: e(f"s_waitcnt lgkmcnt({9-3*(k//2)})")
        g.play(m[k])
    e(f"s_sub_u32 s{S_T0}, s{S_M0B}, {L_BSL}")
    for k in range(4): e(f"v_add_u32 v{VBA+k}, s{S_T0}, v{VBA+k}")
    if o.get('ehint_early', 1):
        e(f"s_cmp_lg_u32 s{S_W}, 3", "s_cbranch_scc1 L_s8", "s_mov_b64 exec, 1", f"buffer_store_dword v{T+18}, off, {sr(S_WS,4)}, s{S_EF} sc1", "s_mov_b64 exec, -1", "L_s8:")
    g.stamp(2)
    def c_groups(pc):
        part, kh2 = pc & 1, pc >> 1; r = []
        for q in range(8):
            def f(q=q):
                if q % 4 == 0: e(f"s_add_u32 m0, s{S_M0B}, {(pc&1)*8192 + q*1024}", f"s_mov_b32 s{S_DS}, {kh2*128 + q*8192}")
                g.vmem(f"buffer_load_dwordx4 v{VCO+q%4}, {sr(S_A if part == 0 else S_B,4)}, s{S_DS} offen offset:{1024*(q%4)} lds", f'c{pc}')
            r.append(g.capture(f))
        return r
    def dma_c(pc):
        for x in c_groups(pc): g.play(x)
    def creg(jj, part, a, ch): return FB + 4*(((jj*2+part)*2+a)*2+ch)
    def read_c(pc):
        part, kh2 = pc & 1, pc >> 1
        for ks in range(4):
            for ch in range(2): e(f"ds_read_b128 {vr(creg(2*kh2+(ks>>1), part, ks&1, ch),4)}, v{VBA+ks} offset:{(pc&1)*8192+ch*4096}")
    g.prio('s_p1')
    pr, pi = UR, UI
    for t in range(1, 16):
        nr, ni = (ER, EI) if t & 1 else (T, T+1)
        e(f"v_fma_f32 v{nr}, v{LR}, v{pr}, v{UR+t}", f"v_fma_f32 v{ni}, v{LR}, v{pi}, v{UI+t}", f"v_fma_f32 v{nr}, -v{LI}, v{pi}, v{nr}", f"v_fma_f32 v{ni}, v{LI}, v{pr}, v{ni}")
        pr, pi = nr, ni
    e(f"ds_write_b64 v{VSEGR}, {vr(ER,2)} offset:{L_SEG-L_SEGZ}", "s_waitcnt lgkmcnt(0)", "s_barrier")
    if o.get('onlyT'):
        final_preload(g, 20); final_setup(g); e("s_branch L_final")
    for k in range(7): e(f"ds_read_b64 {vr(T+2*k,2)}, v{VSEGR} offset:{L_SEG-L_SEGZ-(7-k)*256}")
    def cmac(dr, di, ar, ai, br, bi, cr, ci):
        e(f"v_fma_f32 v{dr}, v{ar}, v{br}, v{cr}", f"v_fma_f32 v{di}, v{ar}, v{bi}, v{ci}", f"v_fma_f32 v{dr}, -v{ai}, v{bi}, v{dr}", f"v_fma_f32 v{di}, v{ai}, v{br}, v{di}")
    for k in range(1, 7):
        e(f"s_waitcnt lgkmcnt({6-k})")
        d = (PSR, PSI) if k == 6 else (T+2*k, T+2*k+1)
        cmac(d[0], d[1], L16R, L16I, T+2*k-2, T+2*k-1, T+2*k, T+2*k+1)
    cmac(T+16, T+17, L16R, L16I, PSR, PSI, ER, EI)
    e(f"s_cmp_lg_u32 s{S_W}, 3", "s_cbranch_scc1 L_s4", "s_mov_b32 exec_lo, 0",
      f"buffer_store_dwordx4 {vr(T+16,4)}, v{T+20}, {sr(S_WS,4)}, s{S_EST} offen sc1")
    if not o.get('ehint_early', 1): e("s_mov_b64 exec, 1", f"buffer_store_dword v{T+18}, off, {sr(S_WS,4)}, s{S_EF} sc1")
    e("s_mov_b64 exec, -1", "L_s4:")
    if o.get('ehint_early', 1): g.poll_issue(5, S_EPL, '15', T+8, False)
    g.stamp(3)
    g.prio('s_es')
    def cmult():
        for t in range(16):
            e(f"v_mul_f32 v{RP+t}, v{CR}, v{UR+t}", f"v_fma_f32 v{RP+t}, -v{CI}, v{UI+t}, v{RP+t}", f"v_mul_f32 v{UI+t}, -v{CR}, v{UI+t}", f"v_fma_f32 v{UI+t}, -v{CI}, v{UR+t}, v{UI+t}")
    cq = c_groups(0) + c_groups(1) + c_groups(2) + c_groups(3)
    cdone = [0]
    def c_issue(n):
        for _ in range(n):
            k = 32-len(cq)
            if k in (16, 24):
                while cdone[0] <= (k-16)//8: c_read()
                e("s_waitcnt lgkmcnt(0)")
            g.play(cq.pop(0))
    def c_read():
        pc = cdone[0]; g.waitvm(f'c{pc}'); e("s_waitcnt lgkmcnt(7)"); read_c(pc); cdone[0] += 1
    n_a, n_b, n_c, n_d = o.get('c_sched', (16, 8, 0, 8))
    g.weave(g.capture(cmult), cq[:n_a]); del cq[:n_a]
    if o.get('e_delay'): e(f"s_sleep {o['e_delay']}")
    l = g.lab('ep'); d = g.lab('ed')
    eld = [f"buffer_load_dwordx4 {vr(T,4)}, v{VE0}, {sr(S_WS,4)}, 0 offen sc1", f"buffer_load_dwordx4 {vr(T+4,4)}, v{VE1}, {sr(S_WS,4)}, 0 offen sc1"]
    echk = [f"v_cmp_ne_u64 vcc, {sr(S_NON,2)}, {vr(T+2,2)}", f"v_cmp_ne_u64 {sr(S_M,2)}, {sr(S_NON,2)}, {vr(T+6,2)}",
            f"s_and_b64 vcc, vcc, {sr(M0,2)}", f"s_and_b64 {sr(S_M,2)}, {sr(S_M,2)}, {sr(M1,2)}", f"s_or_b64 vcc, vcc, {sr(S_M,2)}"]
    if o.get('ehint_early', 1): g.poll_wait(5, S_EPL, sr(M2,2), T+8, False, 0x100, o.get('ehint_lag', 8))
    elif o.get('ehint', 1):
        le = g.lab('en')
        e(f"s_cmp_eq_u64 {sr(M2,2)}, 0", f"s_cbranch_scc1 {le}")
        keep = list(g.vm)
        g.poll_issue(5, S_EPL, sr(M2,2), T+8, False); g.poll_wait(5, S_EPL, sr(M2,2), T+8, False, 0x100)
        g.vm = keep
        e(le+":")
    for x in eld: g.vmem(x, 'eld')
    g.prio('s_cb'); c_issue(n_b); g.prio('s_e')
    e(f"s_lshl_b32 s{S_T0}, s{S_C}, 1", f"s_lshr_b32 s{S_T1}, s{S_W}, 1", f"s_add_u32 s{S_T0}, s{S_T0}, s{S_T1}", f"s_lshl_b32 s{S_T0}, s{S_T0}, 2", f"s_lshr_b32 s{S_T1}, s{S_J}, 2",
      f"s_add_u32 s{S_T0}, s{S_T0}, s{S_T1}", f"s_lshl_b32 s{S_T0}, s{S_T0}, 7", f"s_and_b32 s{S_T1}, s{S_J}, 3", f"s_lshl_b32 s{S_T1}, s{S_T1}, 4", f"s_add_u32 s{S_T0}, s{S_T0}, s{S_T1}",
      f"s_and_b32 s{S_T1}, s{S_W}, 1", f"s_lshl_b32 s{S_T1}, s{S_T1}, 3", f"s_add_u32 s{S_T0}, s{S_T0}, s{S_T1}", f"s_add_u32 s{S_EF}, s{S_T0}, {WS_FLAGS+FL_H}")
    e(f"s_mov_b32 s{S_T0}, {o.get('timeout', 200000)}")
    g.waitvm('eld')
    e(*echk); e(f"s_cbranch_scc0 {d}", l+":"); g.count(1); e(*eld)
    e(f"s_sub_u32 s{S_T0}, s{S_T0}, 1", "s_waitcnt vmcnt(0)", f"s_cbranch_scc1 {d}"); e(*echk)
    e(f"s_cbranch_scc0 {d}", f"s_sleep {o.get('psleep',2)}", f"s_branch {l}", d+":")
    g.stamp(4)
    e(f"v_mul_f32 v{T+8}, v{W0R}, v{T}", f"v_mul_f32 v{T+9}, v{W0R}, v{T+1}", f"v_fma_f32 v{T+8}, -v{W0I}, v{T+1}, v{T+8}", f"v_fma_f32 v{T+9}, v{W0I}, v{T}, v{T+9}")
    cmac(T+8, T+9, W1R, W1I, T+4, T+5, T+8, T+9)
    e(f"ds_write_b64 v{VSEGR}, {vr(T+8,2)} offset:{L_HP-L_SEGZ}", f"v_add_u32 v{VN8}, {L_HP}, v{VN8}")
    g.arrive(1, T); g.rwait(1, T)
    c_issue(n_c)
    def pass2():
        for k in range(8): e(f"ds_read_b64 {vr(T+2*k,2)}, v{VN8} offset:{k*256}")
        for k in range(1, 8):
            e(f"s_waitcnt lgkmcnt({7-k})", f"v_add_f32 v{T}, v{T}, v{T+2*k}", f"v_add_f32 v{T+1}, v{T+1}, v{T+2*k+1}")
        cmac(PSR, PSI, LSR, LSI, T, T+1, PSR, PSI)
        e(f"v_mul_f32 v{ER}, v{CR}, v{PSR}", f"v_fma_f32 v{ER}, -v{CI}, v{PSI}, v{ER}", f"v_mul_f32 v{EI}, -v{CR}, v{PSI}", f"v_fma_f32 v{EI}, -v{CI}, v{PSR}, v{EI}")
        pr, pj = ER, EI
        for t in range(16):
            e(f"v_fmac_f32 v{RP+t}, v{LR}, v{pr}", f"v_fmac_f32 v{UI+t}, v{LR}, v{pj}", f"v_fmac_f32 v{RP+t}, v{LI}, v{pj}", f"v_fma_f32 v{UI+t}, -v{LI}, v{pr}, v{UI+t}")
            pr, pj = RP+t, UI+t
            if t == 8:
                g.cvt16(T, RP, 8); g.cvt16(T+8, UI, 8)
                g.mfma(48, T, SEL); g.mfma(112, T+8, SEL)
        g.cvt16(T+4, RP+8, 8); g.mfma(48, T+4, SEL+4, 48)
        g.cvt16(T+12, UI+8, 8); g.mfma(112, T+12, SEL+4, 112)
    g.prio('s_p2')
    pass2()
    HCK = o.get('hck', 0)
    g.prio('s_st')
    if HCK:
        VL4 = 5
        g.cvt16(64, 48); rec_store(g, 64, 80, VL4, S_HST, 'hst')
        e(f"s_add_u32 s{S_HST}, s{S_HST}, {REC}")
        g.cvt16(72, 112); rec_store(g, 72, 81, VL4, S_HST, 'hst')
        g.setflag(S_EF, 16)
    else:
        for f in range(4):
            src = (48, 56, 112, 120)[f]
            g.cvt16(64+4*f, src, 8)
            g.vmem(f"buffer_store_dwordx4 {vr(64+4*f,4)}, v{V_L16}, {sr(S_WS,4)}, s{S_HST} offen offset:{1024*(f&1)+REC*(f>>1)} sc1", 'hst')
    g.stamp(5)
    g.prio('s_h')
    c_issue(min(n_d, len(cq)))
    rowhalf(g, S_T0)
    e(f"s_lshl_b32 s{S_T1}, s{S_C}, 1", f"s_add_u32 s{S_T0}, s{S_T0}, s{S_T1}", f"s_lshl_b32 s{S_EPL}, s{S_T0}, 2", f"s_add_u32 s{S_EPL}, s{S_EPL}, s{S_W}",
      f"s_lshl_b32 s{S_EPL}, s{S_EPL}, 7", f"s_add_u32 s{S_EPL}, s{S_EPL}, {WS_FLAGS+FL_H}",
      f"s_lshl_b32 s{S_KX}, s{S_T0}, 3", f"s_add_u32 s{S_KX}, s{S_KX}, s{S_W}", f"s_mul_i32 s{S_KX}, s{S_KX}, {8*REC}", f"s_add_u32 s{S_KX}, s{S_KX}, {WS_A2H}", "v_lshlrev_b32 v18, 3, v0")
    ACC = 64
    if not HCK:
        for k in range(1, 8): e(f"s_add_u32 s{S_KX+k}, s{S_KX}, {(k>>1)*2*REC + (k&1)*32*REC}")
        g.prio('s_f')
        g.waitvm('hst'); g.setflag(S_EF, 16)
    else: e(f"s_mov_b32 s{S_NN}, s{S_NON}", f"s_mov_b32 s{S_NN+1}, s{S_NON}", "v_mov_b32 v1, v5")
    g.stamp(6)
    g.prio('s_c3')
    c_issue(len(cq))
    if not HCK: final_preload(g, 20)
    while cdone[0] < 3: c_read()
    if o.get('h_delay'): e(f"s_sleep {o['h_delay']}")
    g.stamp(7)
    g.prio('s_a')
    g.poll_issue(18, S_EPL, '0xff', 16)
    c_read()
    g.poll_wait(18, S_EPL, '0xff', 16, True, 0x10000, o.get('hhint_lag', 0))
    g.stamp(8)
    g.prio('s_g')
    g.cold = []
    if HCK:
        rs = RecStream(g, 8, 3, 16, 10, 6, 1, lambda i, r: (S_KX, (i + 32*r)*REC), S_KX+1, S_KX+2)
        dp = o.get('hck_depth', 2)
        for i in range(dp): rs.load(i)
        e("s_waitcnt lgkmcnt(0)")
        for i in range(8):
            rs.need(i, range(i+1, min(8, i+dp)))
            if dp == 2 and i+2 < 8: rs.load(i+2)
            for a in range(2):
                for rh in range(2):
                    for ch in range(2):
                        acc = ACC+16*(2*rh+ch)
                        g.mfma(acc, creg(i >> 1, i & 1, a, ch), rs.frag(i, rh, a), None if (i == 0 and a == 0) else acc)
            if dp == 3 and i+3 < 8: rs.load(i+3)
        final_preload(g, 20)
        part_addr(g, 6, 22, S_M0B)
        g.cold = rs.cold
    else:
        AB, NB = 16, 6
        steps = [(jj, f) for jj in range(4) for f in range(4)]
        def lda(i):
            jj, f = steps[i]
            for rh in range(2):
                g.vmem(f"buffer_load_dwordx4 {vr(AB+8*(i%NB)+4*rh,4)}, v{V_L16}, {sr(S_WS,4)}, s{S_KX+2*jj+rh} offen offset:{1024*(f&1)+REC*(f>>1)} sc1", f'a{i}')
        nb0 = o.get('a2h_depth', 4)
        for i in range(nb0): lda(i)
        e("s_waitcnt lgkmcnt(0)")
        part_addr(g, 6, 64, S_M0B)
        for i in range(16):
            jj, f = steps[i]
            g.waitvm(f'a{i}')
            if i+nb0 < 16 and nb0 < NB: lda(i+nb0)
            for rh in range(2):
                for ch in range(2):
                    acc = ACC+16*(2*rh+ch)
                    g.mfma(acc, creg(jj, f >> 1, f & 1, ch), AB+8*(i%NB)+4*rh, None if i == 0 else acc)
            if i+nb0 < 16 and nb0 == NB: lda(i+nb0)
    g.stamp(9)
    for rh in range(2):
        for ch in range(2):
            for q in range(4): e(f"ds_write_b128 v{6+q}, {vr(ACC+16*(2*rh+ch)+4*q,4)} offset:{rh*8192+ch*128}")
    final_setup(g)

def final_setup(g):
    e = g.e
    g.srd(S_OUT, P_OUT, None, 4194304)
    e("v_lshrrev_b32 v16, 4, v0", "v_and_b32 v17, 15, v0", "v_xor_b32 v17, v17, v16", "v_lshlrev_b32 v17, 4, v17", "v_lshl_add_u32 v17, v16, 8, v17",
      f"s_lshl_b32 s{S_T0}, s{S_WV}, 11", f"v_add_u32 v17, s{S_T0}, v17", "v_xor_b32 v18, 64, v17", f"v_add_u32 v19, {TREG}, v17", f"v_add_u32 v20, {TREG}, v18")
    e(f"s_lshl_b32 s{S_T0}, s{S_WV}, 5", f"s_add_u32 s{S_T0}, s{S_T0}, {L_G}",
      f"v_lshl_add_u32 v16, v16, 2, s{S_T0}", "v_lshlrev_b32 v5, 1, v5")
    g.waitvm('fin')
    for q in range(2):
        e(f"v_lshlrev_b32 v30, 16, v{V_FX+4+q}", f"v_and_b32 v31, 0xffff0000, v{V_FX+4+q}")
        for i in range(2):
            d = 22+4*i+2*q
            e(f"v_lshlrev_b32 v{d}, 16, v{V_FX+2*i+q}", f"v_and_b32 v{d+1}, 0xffff0000, v{V_FX+2*i+q}", f"v_mul_f32 v{d}, v{d}, v30", f"v_mul_f32 v{d+1}, v{d+1}, v31")

def final(g):
    e = g.e; o = g.o
    e("L_final:")
    e("s_waitcnt lgkmcnt(0)", "s_barrier")
    g.stamp(15)
    e("ds_read_b32 v30, v16", "ds_read_b32 v36, v16 offset:16")
    for i in range(2):
        for k in range(4): e(f"ds_read_b128 {vr(40+24*i+4*k,4)}, v{17+i} offset:{SREG+k*16384+i*1024}")
        for k in range(2): e(f"ds_read_b128 {vr(56+24*i+4*k,4)}, v{19+i} offset:{k*16384+i*1024}")
    e(f"s_mov_b32 s{S_T0}, 0x8000")
    for i in range(2):
        b = 40+24*i; gg = 30 if i == 0 else 36
        e(f"s_waitcnt lgkmcnt({6-6*i})")
        for h in (0, 2):
            e(f"v_pk_add_f32 {vr(b+h,2)}, {vr(22+4*i+h,2)}, {vr(b+h,2)}",
              f"v_pk_add_f32 {vr(b+4+h,2)}, {vr(b+4+h,2)}, {vr(b+8+h,2)}",
              f"v_pk_add_f32 {vr(b+16+h,2)}, {vr(b+16+h,2)}, {vr(b+20+h,2)}",
              f"v_pk_add_f32 {vr(b+h,2)}, {vr(b+h,2)}, {vr(b+12+h,2)}",
              f"v_pk_add_f32 {vr(b+4+h,2)}, {vr(b+4+h,2)}, {vr(b+16+h,2)} neg_lo:[0,1] neg_hi:[0,1]",
              f"v_pk_add_f32 {vr(b+h,2)}, {vr(b+h,2)}, {vr(b+4+h,2)}",
              f"v_pk_fma_f32 {vr(b+h,2)}, {vr(b+h,2)}, {vr(gg,2)}, {vr(b+16+h,2)} op_sel_hi:[1,0,1]")
        e(f"buffer_store_dwordx4 {vr(b,4)}, v5, {sr(S_OUT,4)}, {'0' if i == 0 else 's%d' % S_T0} offen {o.get('outmod','sc1')}")
    e(f"s_or_b32 s{S_T0}, s{S_C}, s{S_J}", f"s_or_b32 s{S_T0}, s{S_T0}, s{S_WV}", "s_cbranch_scc1 L_f1",
      f"v_mov_b32 v16, s{S_NON}", "s_mov_b64 exec, 1", f"buffer_store_dword v16, off, {sr(S_WS,4)}, 0 offset:{WS_EPOCH} sc1", "s_mov_b64 exec, -1", "L_f1:")
    if o.get('stamps'):
        e("s_waitcnt vmcnt(0)")
        g.stamp(16)
        e(f"v_writelane_b32 v{V_STAMP}, s{S_FLOFF}, 30")
        e(f"s_lshl_b32 s{S_T0}, s{S_C}, 4", f"s_add_u32 s{S_T0}, s{S_T0}, s{S_J}", f"s_lshl_b32 s{S_T0}, s{S_T0}, 3", f"s_add_u32 s{S_T0}, s{S_T0}, s{S_WV}",
          f"s_lshl_b32 s{S_T0}, s{S_T0}, 8", f"s_add_u32 s{S_T0}, s{S_T0}, {WS_STAMP}", "v_lshlrev_b32 v16, 2, v0",
          f"buffer_store_dword v{V_STAMP}, v16, {sr(S_WS,4)}, s{S_T0} offen")
    if o.get('amp') is not None:
        e("s_waitcnt vmcnt(0)")
        g.stamp(16)
        e(f"s_cmp_lg_u32 s2, {o.get('ampwg',0)}", "s_cbranch_scc1 L_end", f"s_cmp_lg_u32 s{S_WV}, {o.get('ampwave',0)}", "s_cbranch_scc1 L_end",
          "s_sub_u32 s66, s66, s100", "s_mul_i32 s66, s66, 10", "s_memrealtime s[100:101]", "s_waitcnt lgkmcnt(0)", "s_add_u32 s66, s66, s100",
          "L_amp:", "s_memrealtime s[100:101]", "s_waitcnt lgkmcnt(0)", "s_sub_u32 s67, s100, s66", "s_cmp_lt_i32 s67, 0", "s_cbranch_scc1 L_amp")
    e("L_end:", "s_endpgm")
    e("L_role_coldS:")
    for r in g.cold: g.play(r)
    e("s_endpgm", "L_codeend:")

DEFAULTS = {'wq_start':0,'wq_end':18,'rot':(2,1,1,0),'vpre':7,'flagwarm':0,'wo_sched':{'g':8,'o':8},'ock':0,'sig8':1,
            'hops':2,'mid_at':22,'kpoll_at':0,'khint_early':2,'hint_lag':4,'hop1_mid':2,'h1_sm':30,'c_sched':(0,8,8,8),'timeout':20000,
            'prio':{'s_b7':2,'s_es':0,'t_b8':2,'t_q':0,'s_p2':1,'s_h':0,'t_g':2,'s_g':1,'t_a':0}}
def build(opt):
    opt = {**DEFAULTS, **opt}
    g = G(opt)
    if opt.get('stamps') or opt.get('amp') is not None:
        g.e("s_memrealtime s[100:101]")
    prologue(g)
    if opt.get('stamps'):
        pass
    roleS_start(g); roleT(g); roleS(g); final(g)
    lines = g.L
    if opt.get('stamps') == 1:
        out = []
        for x in lines:
            out.append(x)
            if x in ("L_roleT:", "L_roleS:"):
                out += ["s_waitcnt lgkmcnt(0)", f"v_writelane_b32 v{V_STAMP}, s100, 31"]
        lines = out
    ins, added = fix(lines)
    errs = check_waits(ins)
    for x in errs[:5]: print("WAITCHECK", x, file=sys.stderr)
    ref = open('cdna_kernels/' + KNAME + '.s.ref').read().splitlines() if opt.get('refhdr', True) else []
    hdr = [x for x in ref if x.startswith(';') and '@launch' not in x and 'Override' not in x and 'grid=ceil' not in x]
    txt = "\n".join(hdr) + f"""
; @launch grid=(256,1,1) block=(512,1,1) lds={LDS_BYTES}
.amdgcn_target "amdgcn-amd-amdhsa--gfx950"
.text
.globl {KNAME}_kernel
.p2align 12
.p2align 8
.type {KNAME}_kernel,@function
{KNAME}_kernel:
""" + "\n".join((i.text if i.label else "    " + i.text) for i in ins) + f"""
.section .rodata,"a"
.p2align 6
.amdhsa_kernel {KNAME}_kernel
  .amdhsa_next_free_vgpr 256
  .amdhsa_next_free_sgpr 102
  .amdhsa_accum_offset 256
  .amdhsa_group_segment_fixed_size 0
  .amdhsa_kernarg_size 136
  .amdhsa_user_sgpr_count 2
  .amdhsa_user_sgpr_kernarg_segment_ptr 1
  .amdhsa_system_sgpr_workgroup_id_x 1
.end_amdhsa_kernel
"""
    return txt, len([i for i in ins if i.real]), added, errs

if __name__ == '__main__':
    out = sys.argv[1] if len(sys.argv) > 1 else 'k.s'
    opt = eval(sys.argv[2]) if len(sys.argv) > 2 else {}
    txt, n, added, errs = build(opt)
    open(out, 'w').write(txt)
    print(f"{out}: {n} instructions, {added} nops added, {len(errs)} wait errors")
```
